```python
import torch

def _softmax(x, axis=-1):
    return torch.softmax(x, dim=axis)
def _gelu(x):
    return torch.nn.functional.gelu(x, approximate="tanh")
def _silu(x):
    return torch.nn.functional.silu(x)
def _sigmoid(x):
    return torch.sigmoid(x)
def _layernorm(x, axis=-1, eps=1e-5):
    m = x.mean(dim=axis, keepdim=True)
    v = x.var(dim=axis, keepdim=True, unbiased=False)
    return (x - m) / torch.sqrt(v + eps)
def _scatter_add(tgt, idx, src, axis=0):
    return tgt.clone().index_add_(axis, idx, src)
def _segment_sum(src, seg, n):
    out = torch.zeros((n,) + src.shape[1:], dtype=src.dtype)
    return out.index_add_(0, seg, src)
def _pad(x, pw):
    flat = tuple(v for pair in reversed(pw) for v in pair)
    return torch.nn.functional.pad(x, flat)

kernel_name = 'parallel_sum__grouped_kv_mqa__dense_activation_relu__prompt'

def setup_inputs():

    _w = (lambda a: (lambda t: t.to(torch.bfloat16) if t.is_floating_point() else t)(torch.as_tensor(a)))
    def _A_setup():
        B, S, D, H = 1, 2048, 512, 32
        Dh = D // H
        return {
            "x": _w((lambda *s: torch.randn(*s, dtype=torch.bfloat16) * 0.05)(B, S, D)),
            "wq": _w((lambda *s: torch.randn(*s, dtype=torch.bfloat16) * 0.2)(D, H * Dh)),
            "wk": _w((lambda *s: torch.randn(*s, dtype=torch.bfloat16) * 0.2)(D, Dh)),
            "wv": _w((lambda *s: torch.randn(*s, dtype=torch.bfloat16) * 0.1)(D, Dh)),
            "wo": _w((lambda *s: torch.randn(*s, dtype=torch.bfloat16) * 0.1)(H * Dh, D)),
        }
    _A_in = _A_setup()

    def _B_setup():
        B, S, D, Dff = 1, 2048, 512, 1792
        return {
            "x": _w((lambda *s: torch.randn(*s, dtype=torch.bfloat16) * 0.05)(B, S, D)),
            "w1": _w((lambda *s: torch.randn(*s, dtype=torch.bfloat16) * 0.1)(D, Dff)),
            "w2": _w((lambda *s: torch.randn(*s, dtype=torch.bfloat16) * 0.1)(Dff, D)),
        }
    _B_in = _B_setup()

    return {
        "A_x": _A_in["x"],
        "A_wq": _A_in["wq"],
        "A_wk": _A_in["wk"],
        "A_wv": _A_in["wv"],
        "A_wo": _A_in["wo"],
        "B_x": _B_in["x"],
        "B_w1": _B_in["w1"],
        "B_w2": _B_in["w2"],
    }

def reference(A_x, A_wq, A_wk, A_wv, A_wo, B_x, B_w1, B_w2):
    def _A_ref(x, wq, wk, wv, wo):
        B, S, D = x.shape
        H = 32
        Dh = D // H
        q = (lambda x, *d: x.permute(*d))((x @ wq).reshape(B, S, H, Dh), 0, 2, 1, 3)
        k = x @ wk
        v = x @ wv
        scores = torch.einsum("bhqd,bkd->bhqk", q, k) * (Dh ** -0.5)
        p = _softmax(scores, axis=-1)
        o = torch.einsum("bhqk,bkd->bhqd", p, v)
        return (lambda x, *d: x.permute(*d))(o, 0, 2, 1, 3).reshape(B, S, H * Dh) @ wo

    def _B_ref(x, w1, w2):
        h = torch.einsum("bsd,df->bsf", x, w1)
        zero = torch.zeros_like(h)
        h = torch.maximum(h, zero)
        return torch.einsum("bsf,fd->bsd", h, w2)

    x = A_x
    xn = _layernorm(x, axis=-1)
    return x + _A_ref(xn, A_wq, A_wk, A_wv, A_wo) + _B_ref(xn, B_w1, B_w2)
```

```python
import sys, argparse

NAME = "parallel_sum__grouped_kv_mqa__dense_activation_relu__prompt"

REC = 2112
HALF = 32 * REC
R1, R2, R3 = 0, HALF, 2 * HALF
RING = 6144
CNT = R3 + 4 * RING
C_KVDONE, C_KVST, C_GO1, C_H1, C_G1, C_H2 = 0, 4, 8, 12, 16, 20
LDS_BYTES = 163840
XP = 1040
PP = 272
PIMG = 64 * PP
WS_KV = 0
WS_FLAG = 0x28000
WS_HO = 0x40000
HO_RB = 144 * 2048
WS_DBG = 0xA00000
WS_BYTES = 0x1000000
FOFF = 80.0
QSCALE = 0.25 * 1.4426950408889634
SPIN = 1 << 15

import struct
def f2u(x): return struct.unpack("<I", struct.pack("<f", x))[0]

S_X, S_WQ, S_WKV, S_WO, S_W1, S_W2, S_OUT, S_DBG, S_WS = 4, 8, 12, 16, 20, 24, 28, 32, 36
sW, sRB, sCB = 40, 41, 42
sT0, sT1, sT2, sT3 = 43, 44, 45, 46
sSPIN = 47
sSO = 48
sSTEP = 49
sIT = 50
sHO = 51
sFL = 52
sRETRY = 53
sM = 54
sJ = 56
sSTAMP = 64

def srd(b): return f"s[{b}:{b+3}]"
def vr(b, n=1): return f"v{b}" if n == 1 else f"v[{b}:{b+n-1}]"


class G:
    def __init__(self, debug):
        self.L = []
        self.debug = debug
        self.nlab = 0
        self.nst = 0

    def __call__(self, s):
        for line in s.split("\n"):
            line = line.strip()
            if line:
                self.L.append(line if line.endswith(":") else "    " + line)

    def lab(self, p="L"):
        self.nlab += 1
        return f"{p}_{self.nlab}"

    def stamp(self, i):
        if self.debug:
            self(f"s_memrealtime s[{sSTAMP+2*i}:{sSTAMP+2*i+1}]")

    def nop(self, n):
        while n > 0:
            k = min(n, 16)
            self(f"s_nop {k-1}")
            n -= k

    def arrive(self, c, vC, vONE):
        self(f"""s_mov_b64 exec, 1
        ds_add_u32 v{vC}, v{vONE} offset:{c}
        s_mov_b64 exec, -1""")

    def wait_cnt(self, c, target, vC, vT):
        l = self.lab("WC"); d = self.lab("WD")
        self(f"""s_mov_b32 s{sSPIN}, {SPIN}
        {l}:
        ds_read_b32 v{vT}, v{vC} offset:{c}
        s_waitcnt lgkmcnt(0)
        v_readfirstlane_b32 s{sT0}, v{vT}
        s_sub_u32 s{sSPIN}, s{sSPIN}, 1
        s_cbranch_scc1 {d}
        s_cmp_lt_u32 s{sT0}, {target}
        s_cbranch_scc1 {l}
        {d}:""")

    def poll_flags(self, srdb, vOFF, soff, vT, sleep=1):
        l = self.lab("PF"); d = self.lab("PD")
        self(f"""s_mov_b32 s{sSPIN}, {SPIN}
        {l}:
        buffer_load_dword v{vT}, v{vOFF}, {srd(srdb)}, {soff} offen sc1
        s_waitcnt vmcnt(0)
        v_cmp_ne_u32 vcc, 0, v{vT}
        s_sub_u32 s{sSPIN}, s{sSPIN}, 1
        s_cbranch_scc1 {d}
        s_cmp_eq_u64 vcc, -1
        s_cbranch_scc1 {d}
        s_sleep {sleep}
        s_branch {l}
        {d}:""")


def gen(debug=False):
    g = G(debug)
    vLANE, vC, vONE, vT, vT1, vT2, vT3 = 1, 2, 3, 4, 5, 6, 7
    vL16 = 8
    vDA, vDB = 9, 10
    vXF = 11
    vWF = 12
    vXO = 13
    vXR = 16
    g(f"""
    s_cmp_ge_u32 s2, 256
    s_cbranch_scc1 L_END
    """)
    g.stamp(0)
    g(f"""
    s_load_dwordx2 s[{S_X}:{S_X+1}], s[0:1], 0
    s_load_dwordx2 s[{S_WQ}:{S_WQ+1}], s[0:1], 8
    s_load_dwordx4 s[60:63], s[0:1], 16
    s_load_dwordx2 s[{S_WO}:{S_WO+1}], s[0:1], 32
    s_load_dwordx2 s[{S_W1}:{S_W1+1}], s[0:1], 48
    s_load_dwordx2 s[{S_W2}:{S_W2+1}], s[0:1], 56
    s_load_dwordx2 s[{S_OUT}:{S_OUT+1}], s[0:1], 64
    s_load_dwordx2 s[{S_DBG}:{S_DBG+1}], s[0:1], 72
    s_load_dwordx2 s[{S_WS}:{S_WS+1}], s[0:1], 80
    v_lshrrev_b32 v{vT}, 6, v0
    v_and_b32 v{vLANE}, 63, v0
    s_and_b32 s{sRB}, s2, 31
    v_readfirstlane_b32 s{sW}, v{vT}
    s_lshr_b32 s{sCB}, s2, 5
    s_mov_b32 s{S_X+2}, 2097152
    s_mov_b32 s{S_X+3}, 0x20000
    s_mov_b32 s{S_WQ+2}, 524288
    s_mov_b32 s{S_WQ+3}, 0x20000
    s_mov_b32 s{S_WKV+2}, 16384
    s_mov_b32 s{S_WKV+3}, 0x20000
    s_mov_b32 s{S_WO+2}, 524288
    s_mov_b32 s{S_WO+3}, 0x20000
    s_mov_b32 s{S_W1+2}, 1835008
    s_mov_b32 s{S_W1+3}, 0x20000
    s_mov_b32 s{S_W2+2}, 1835008
    s_mov_b32 s{S_W2+3}, 0x20000
    s_mov_b32 s{S_OUT+2}, 2097152
    s_mov_b32 s{S_OUT+3}, 0x20000
    s_mov_b32 s{S_DBG+2}, 256
    s_mov_b32 s{S_DBG+3}, 0x20000
    s_mov_b32 s{S_WS+2}, {WS_BYTES}
    s_mov_b32 s{S_WS+3}, 0x20000
    v_lshrrev_b32 v{vT}, 3, v{vLANE}
    v_and_b32 v{vT1}, 7, v{vLANE}
    v_lshlrev_b32 v{vT2}, 10, v{vT}
    v_lshl_or_b32 v{vT2}, v{vT1}, 4, v{vT2}
    s_lshl_b32 s{sT0}, s{sRB}, 16
    s_lshl_b32 s{sT1}, s{sW}, 13
    s_add_u32 s{sT0}, s{sT0}, s{sT1}
    s_waitcnt lgkmcnt(0)
    """)
    XR = 32
    for i in range(8):
        g(f"buffer_load_dwordx4 {vr(XR+4*i,4)}, v{vT2}, {srd(S_X)}, s{sT0} offen offset:{i*128}")
    g(f"""
    s_cmp_eq_u32 s{sCB}, 0
    s_cselect_b32 s{S_WKV}, s60, s62
    s_cselect_b32 s{S_WKV+1}, s61, s63
    s_mul_i32 s{sT1}, s{sW}, {8*XP}
    s_add_u32 s{sT1}, s{sT1}, {R2}
    v_mul_u32_u24 v{vT3}, {XP}, v{vT}
    v_lshl_add_u32 v{vT3}, v{vT1}, 4, v{vT3}
    v_add_u32 v{vT3}, s{sT1}, v{vT3}
    v_lshlrev_b32 v{vL16}, 4, v{vLANE}
    v_mov_b32 v{vC}, {CNT}
    v_mov_b32 v{vONE}, 1
    s_mul_i32 s{sHO}, s{sRB}, {HO_RB}
    s_add_u32 s{sHO}, s{sHO}, {WS_HO}
    s_lshl_b32 s{sFL}, s{sRB}, 8
    s_add_u32 s{sFL}, s{sFL}, {WS_FLAG}
    v_lshrrev_b32 v{vXO}, 3, v0
    v_lshlrev_b32 v{vXO}, 10, v{vXO}
    v_lshl_or_b32 v{vXO}, v{vT1}, 4, v{vXO}
    s_lshl_b32 s{sT1}, s{sRB}, 16
    s_lshl_b32 s{sT2}, s{sCB}, 7
    s_add_u32 s{sT1}, s{sT1}, s{sT2}
    v_add_u32 v{vXO}, s{sT1}, v{vXO}
    v_lshrrev_b32 v20, 5, v{vLANE}
    v_bfe_u32 v21, v{vLANE}, 2, 2
    v_lshl_add_u32 v20, v20, 2, v21          ; v20 = row
    v_bfe_u32 v21, v{vLANE}, 4, 1
    v_and_b32 v22, 3, v{vLANE}
    v_lshlrev_b32 v22, 4, v22
    v_lshl_add_u32 v21, v21, 6, v22          ; v21 = colbyte
    v_bfe_u32 v23, v{vLANE}, 2, 2
    v_lshlrev_b32 v23, 6, v23
    v_bfe_u32 v24, v{vLANE}, 4, 1
    v_lshl_add_u32 v23, v24, 5, v23
    v_and_b32 v24, 3, v{vLANE}
    v_lshl_add_u32 v23, v24, 3, v23
    v_lshrrev_b32 v24, 5, v{vLANE}
    s_cmp_ge_u32 s{sW}, 4
    s_cbranch_scc1 L_G_PRE
    """)
    g(f"""
    s_setprio 2
    v_lshl_add_u32 v{vDA}, v20, 10, v21
    v_add_u32 v{vDB}, {8*1024-1024}, v{vDA}
    """)
    lnp = g.lab("NP")
    g(f"""
    s_cmp_ge_u32 s{sCB}, 2
    s_cbranch_scc1 {lnp}
    s_lshl_b32 s{sT0}, s{sW}, 12
    s_add_u32 m0, s{sT0}, {R3}
    s_nop 0""")
    for i in range(4):
        g(f"buffer_load_dwordx4 v{vL16}, {srd(S_WKV)}, s{sT0} offen offset:{i*1024} lds")
    g(f"""
    s_cmp_lg_u32 s{sW}, 0
    s_cbranch_scc1 {lnp}
    s_lshl_b32 s{sT0}, s{sCB}, 7
    s_add_u32 s{sT0}, s{sT0}, s{sFL}
    v_lshlrev_b32 v25, 2, v{vLANE}
    v_mov_b32 v26, 0
    s_mov_b32 exec_hi, 0
    buffer_store_dword v26, v25, {srd(S_WS)}, s{sT0} offen sc1
    s_mov_b64 exec, -1
    {lnp}:
    s_lshl_b32 s{sSO}, s{sW}, 17
    s_lshl_b32 s{sT0}, s{sCB}, 7
    s_add_u32 s{sSO}, s{sSO}, s{sT0}
    s_lshl_b32 s{sT0}, s{sW}, 14
    s_add_u32 m0, s{sT0}, {R1}
    """)
    for i in range(8):
        g(f"""s_nop 0
        buffer_load_dwordx4 v{vDA}, {srd(S_WQ)}, s{sSO} offen lds
        buffer_load_dwordx4 v{vDB}, {srd(S_WQ)}, s{sSO} offen offset:1024 lds""")
        if i < 7:
            g(f"""s_add_u32 s{sSO}, s{sSO}, 16384
            s_add_u32 m0, m0, 2048""")
    g(f"""
    v_mov_b32 v26, 0
    v_lshl_add_u32 v25, v{vLANE}, 2, v{vC}
    s_cmp_lg_u32 s{sW}, 0
    s_cbranch_scc1 L_LN_A
    ds_write_b32 v25, v26
    L_LN_A:
    """)
    def layernorm(after):
        F = 64
        for i in range(8):
            g(f"s_waitcnt vmcnt({after + 7 - i})")
            for d in range(4):
                r = XR + 4 * i + d; f = F + 8 * i + 2 * d
                g(f"v_lshlrev_b32 v{f}, 16, v{r}")
                g(f"v_and_b32 v{f+1}, 0xffff0000, v{r}")
            for d in range(4):
                f = F + 8 * i + 2 * d
                a = 128 + 2 * (d % 2); q = 132 + 2 * (d % 2)
                if i == 0 and d < 2:
                    g(f"v_pk_mul_f32 {vr(q,2)}, {vr(f,2)}, {vr(f,2)}")
                    g(f"v_mov_b32 v{a}, v{f}")
                    g(f"v_mov_b32 v{a+1}, v{f+1}")
                else:
                    g(f"v_pk_add_f32 {vr(a,2)}, {vr(a,2)}, {vr(f,2)}")
                    g(f"v_pk_fma_f32 {vr(q,2)}, {vr(f,2)}, {vr(f,2)}, {vr(q,2)}")
        g(f"""
        v_pk_add_f32 v[128:129], v[128:129], v[130:131]
        v_pk_add_f32 v[132:133], v[132:133], v[134:135]
        v_add_f32 v128, v128, v129
        v_add_f32 v132, v132, v133
        s_nop 1
        v_add_f32_dpp v128, v128, v128 quad_perm:[1,0,3,2] row_mask:0xf bank_mask:0xf
        v_add_f32_dpp v132, v132, v132 quad_perm:[1,0,3,2] row_mask:0xf bank_mask:0xf
        s_nop 1
        v_add_f32_dpp v128, v128, v128 quad_perm:[2,3,0,1] row_mask:0xf bank_mask:0xf
        v_add_f32_dpp v132, v132, v132 quad_perm:[2,3,0,1] row_mask:0xf bank_mask:0xf
        s_nop 1
        v_add_f32_dpp v128, v128, v128 row_half_mirror row_mask:0xf bank_mask:0xf
        v_add_f32_dpp v132, v132, v132 row_half_mirror row_mask:0xf bank_mask:0xf
        v_mul_f32 v128, {f2u(1.0/512):#x}, v128      ; mean
        v_mul_f32 v132, {f2u(1.0/512):#x}, v132      ; E[x^2]
        v_fma_f32 v132, -v128, v128, v132            ; var
        v_max_f32 v132, 0, v132
        v_add_f32 v132, {f2u(1e-5):#x}, v132
        v_rsq_f32 v132, v132
        s_nop 0
        v_mul_f32_e64 v128, -v128, v132              ; -mean*rstd
        """)
        for i in range(8):
            for d in range(4):
                f = F + 8 * i + 2 * d
                g(f"v_pk_fma_f32 {vr(f,2)}, {vr(f,2)}, v[132:133], v[128:129] op_sel_hi:[1,0,0]")
            for d in range(4):
                f = F + 8 * i + 2 * d
                g(f"v_cvt_pk_bf16_f32 v{XR+4*i+d}, v{f}, v{f+1}")
            g(f"ds_write_b128 v{vT3}, {vr(XR+4*i,4)} offset:{i*128}")
    g.stamp(1)
    layernorm(16)
    g("s_waitcnt vmcnt(0) lgkmcnt(0)")
    g.stamp(2)
    g("s_barrier")
    g.stamp(3)
    lq = g.lab("Q")
    g(f"""
    s_cmp_ge_u32 s{sCB}, 2
    s_cbranch_scc1 {lq}
    v_and_b32 v25, 15, v{vLANE}
    v_lshrrev_b32 v26, 4, v{vLANE}
    s_mul_i32 s{sT0}, s{sW}, {16*XP}
    s_add_u32 s{sT0}, s{sT0}, {R2}
    v_mul_u32_u24 v{vXF}, {XP}, v25
    v_lshl_add_u32 v{vXF}, v26, 4, v{vXF}
    v_add_u32 v{vXF}, s{sT0}, v{vXF}
    v_lshlrev_b32 v{vWF}, 8, v26
    v_lshl_add_u32 v{vWF}, v25, 3, v{vWF}
    v_add_u32 v{vWF}, {R3}, v{vWF}
    s_lshl_b32 s{sT0}, s{sRB}, 1
    s_lshr_b32 s{sT1}, s{sW}, 1
    s_add_u32 s{sT0}, s{sT0}, s{sT1}
    s_mul_i32 s{sSO}, s{sT0}, {REC}
    s_and_b32 s{sT1}, s{sW}, 1
    """)
    def kv_chain(isK):
        FB = 32; ACC = 128; NS = 5
        def rd(ks):
            b = FB + 8 * (ks % NS)
            g(f"ds_read_b128 {vr(b,4)}, v{vXF} offset:{ks*64}")
            g(f"ds_read_b64_tr_b16 {vr(b+4,2)}, v{vWF} offset:{ks*1024}")
            g(f"ds_read_b64_tr_b16 {vr(b+6,2)}, v{vWF} offset:{ks*1024+128}")
        for ks in range(4): rd(ks)
        for ks in range(16):
            b = FB + 8 * (ks % NS)
            g(f"s_waitcnt lgkmcnt({min(9, 3*(15-ks))})")
            c = "0" if ks == 0 else vr(ACC, 4)
            if isK: g(f"v_mfma_f32_16x16x32_bf16 {vr(ACC,4)}, {vr(b+4,4)}, {vr(b,4)}, {c}")
            else:   g(f"v_mfma_f32_16x16x32_bf16 {vr(ACC,4)}, {vr(b,4)}, {vr(b+4,4)}, {c}")
            if ks + 4 < 16: rd(ks + 4)
        g.arrive(C_KVDONE, vC, vONE)
    lv = g.lab("V"); lkvs = g.lab("KVS")
    g(f"""s_cmp_eq_u32 s{sCB}, 1
    s_cbranch_scc1 {lv}""")
    kv_chain(True)
    g(f"""
    v_and_b32 v27, 1, v26
    v_lshlrev_b32 v27, 9, v27
    v_lshl_add_u32 v27, v25, 4, v27
    v_lshrrev_b32 v28, 1, v26
    v_lshl_add_u32 v27, v28, 3, v27
    s_lshl_b32 s{sT1}, s{sT1}, 8
    s_add_u32 s{sSO}, s{sSO}, s{sT1}
    s_branch {lkvs}
    {lv}:""")
    kv_chain(False)
    g(f"""
    v_lshrrev_b32 v27, 1, v26
    v_lshlrev_b32 v27, 8, v27
    v_lshl_add_u32 v27, v25, 4, v27
    v_and_b32 v28, 1, v26
    v_lshl_add_u32 v27, v28, 3, v27
    s_mul_i32 s{sT1}, s{sT1}, 544
    s_add_u32 s{sSO}, s{sSO}, s{sT1}
    s_add_u32 s{sSO}, s{sSO}, 1024
    v_lshlrev_b32 v28, 3, v{vLANE}
    v_mov_b32 v30, 0x3f803f80
    v_cmp_gt_u32 vcc, 2, v{vLANE}
    s_nop 1
    v_cndmask_b32 v30, 0, v30, vcc
    v_mov_b32 v31, v30
    s_mov_b64 exec, 0xf
    buffer_store_dwordx2 v[30:31], v28, {srd(S_WS)}, s{sSO} offen offset:512 sc1
    s_mov_b64 exec, -1
    {lkvs}:
    s_nop 4
    v_cvt_pk_bf16_f32 v132, v128, v129
    v_cvt_pk_bf16_f32 v133, v130, v131
    buffer_store_dwordx2 v[132:133], v27, {srd(S_WS)}, s{sSO} offen sc1
    {lq}:""")
    g.stamp(4)
    QACC = 144
    g(f"""
    v_and_b32 v25, 31, v{vLANE}
    s_and_b32 s{sT0}, s{sW}, 1
    s_mul_i32 s{sT0}, s{sT0}, {32*XP}
    s_add_u32 s{sT0}, s{sT0}, {R2}
    v_mul_u32_u24 v{vXF}, {XP}, v25
    v_lshl_add_u32 v{vXF}, v24, 4, v{vXF}
    v_add_u32 v{vXF}, s{sT0}, v{vXF}
    s_lshr_b32 s{sT0}, s{sW}, 1
    s_lshl_b32 s{sT0}, s{sT0}, 8
    v_lshl_add_u32 v{vWF}, v24, 10, v23
    v_add_u32 v{vWF}, s{sT0}, v{vWF}
    """)
    FB = 32; NS = 5
    def rdq(ks):
        b = FB + 8 * (ks % NS)
        g(f"ds_read_b128 {vr(b,4)}, v{vXF} offset:{ks*32}")
        g(f"ds_read_b64_tr_b16 {vr(b+4,2)}, v{vWF} offset:{R1+ks*2048}")
        g(f"ds_read_b64_tr_b16 {vr(b+6,2)}, v{vWF} offset:{R1+ks*2048+512}")
    g("s_waitcnt lgkmcnt(0)")
    for ks in range(4): rdq(ks)
    for ks in range(32):
        b = FB + 8 * (ks % NS)
        g(f"s_waitcnt lgkmcnt({min(9, 3*(31-ks))})")
        c = "0" if ks == 0 else vr(QACC, 16)
        g(f"v_mfma_f32_32x32x16_bf16 {vr(QACC,16)}, {vr(b+4,4)}, {vr(b,4)}, {c}")
        if ks + 4 < 32: rdq(ks + 4)
    g.arrive(C_GO1, vC, vONE)
    lp = g.lab("P")
    g(f"""
    s_cmp_ge_u32 s{sCB}, 2
    s_cbranch_scc1 {lp}
    s_waitcnt vmcnt(0)
    s_mov_b64 exec, 1
    ds_add_rtn_u32 v{vT}, v{vC}, v{vONE} offset:{C_KVST}
    s_waitcnt lgkmcnt(0)
    v_readfirstlane_b32 s{sT0}, v{vT}
    s_lshl_b32 s{sT1}, s{sRB}, 1
    s_add_u32 s{sT1}, s{sT1}, s{sCB}
    s_lshl_b32 s{sT1}, s{sT1}, 2
    v_mov_b32 v{vT}, 0
    s_cmp_lg_u32 s{sT0}, 3
    s_cbranch_scc1 {lp}
    buffer_store_dword v{vONE}, v{vT}, {srd(S_DBG)}, s{sT1} offen sc1
    {lp}:
    s_mov_b64 exec, -1
    """)
    g.stamp(5)
    QA, QB = 24, 28
    g(f"s_mov_b32 s{sT0}, {f2u(QSCALE):#x}")
    g.nop(8)
    for i in range(16):
        g(f"v_mul_f32 v{QACC+i}, s{sT0}, v{QACC+i}")
    for i in range(8):
        g(f"v_cvt_pk_bf16_f32 v{QA+i}, v{QACC+2*i}, v{QACC+2*i+1}")
    lw = g.lab("W")
    g(f"""s_cmp_lg_u32 s{sW}, 0
    s_cbranch_scc1 {lw}
    v_lshlrev_b32 v{vT1}, 2, v{vLANE}""")
    g.poll_flags(S_DBG, vT1, "0", vT)
    g.arrive(C_GO1, vC, vONE)
    g(f"{lw}:")
    g.wait_cnt(C_GO1, 5, vC, vT)
    g.stamp(6)
    def kv_dma(half, sidx):
        base = half * HALF
        g(f"""s_lshl_b32 s{sT0}, s{sidx}, 12
        s_add_u32 s{sSO}, s{sT0}, {WS_KV + base}
        s_add_u32 m0, s{sT0}, {base}""")
        for gi in range(4):
            g("s_nop 0")
            for i in range(4):
                g(f"buffer_load_dwordx4 v{vL16}, {srd(S_WS)}, s{sSO} offen offset:{i*1024} sc1 lds")
            g(f"""s_add_u32 s{sSO}, s{sSO}, 16384
            s_add_u32 m0, m0, 16384""")
        l = g.lab("KD")
        g(f"""s_cmp_lg_u32 s{sidx}, 0
        s_cbranch_scc1 {l}""")
        for i in range(2):
            g(f"buffer_load_dwordx4 v{vL16}, {srd(S_WS)}, s{sSO} offen offset:{i*1024} sc1 lds")
        g(f"{l}:")
    kv_dma(0, sW)
    SA = [32, 48]; SB = [64, 80]; CA, CB_ = 96, 112; OA, OB = 128, 144
    KF = [160, 164]; VF = [168, 176]; vIDX, vKA, vVA = 184, 185, 186
    g(f"""
    v_mov_b32 v{vIDX}, 0xdddddddd
    v_mov_b32 v{vKA}, v{vL16}
    v_and_b32 v{vT}, 31, v{vLANE}
    v_lshrrev_b32 v{vT1}, 5, v{vLANE}
    v_lshlrev_b32 v{vT1}, 8, v{vT1}
    v_lshl_add_u32 v{vT1}, v{vT}, 4, v{vT1}
    v_mov_b32 v{vT2}, 528
    v_mov_b32 v{vT3}, 512
    v_and_b32 v{vVA}, 0x1b, v{vT}
    v_cmp_eq_u32 vcc, 16, v{vVA}
    s_nop 1
    v_cndmask_b32 v{vT2}, v{vT2}, v{vT3}, vcc
    v_cmp_gt_u32 vcc, 16, v{vT}
    s_nop 1
    v_cndmask_b32 v{vVA}, v{vT2}, v{vT1}, vcc
    v_add_u32 v{vVA}, 1024, v{vVA}
    s_mov_b32 s{sRETRY}, 0
    s_waitcnt vmcnt(0)
    """)
    g.arrive(C_H1, vC, vONE)
    g.wait_cnt(C_H1, 4, vC, vT)
    g.stamp(7)
    g("s_setprio 0")
    def qk(S, K, Q, C): g(f"v_mfma_f32_32x32x16_bf16 {vr(S,16)}, {vr(K,4)}, {vr(Q,4)}, {C}")
    def pv(O, V, P): g(f"v_smfmac_f32_32x32x32_bf16 {vr(O,16)}, {vr(V,4)}, {vr(P,8)}, v{vIDX}")
    def max16(S, d):
        g(f"v_max3_f32 v{d}, v{S}, v{S+1}, v{S+2}")
        for i in range(3, 15, 2):
            g(f"v_max3_f32 v{d}, v{d}, v{S+i}, v{S+i+1}")
        g(f"v_max_f32 v{d}, v{d}, v{S+15}")
    def xhalf_max(d, t):
        g(f"""v_mov_b32 v{t}, v{d}
        s_nop 1
        v_permlane32_swap_b32 v{d}, v{t}
        s_nop 1
        v_max_f32 v{d}, v{d}, v{t}""")
    g(f"""ds_read_b128 {vr(KF[0],4)}, v{vKA}
    s_waitcnt lgkmcnt(0)""")
    qk(SA[0], KF[0], QA, "0"); qk(SB[0], KF[0], QB, "0")
    g.nop(12)
    max16(SA[0], vT); max16(SB[0], vT1)
    xhalf_max(vT, vT2); xhalf_max(vT1, vT2)
    g(f"""v_add_f32 v{vT}, {f2u(FOFF):#x}, v{vT}
    v_add_f32 v{vT1}, {f2u(FOFF):#x}, v{vT1}
    L_ATT_START:""")
    for i in range(16):
        g(f"v_sub_f32 v{CA+i}, 0, v{vT}")
        g(f"v_sub_f32 v{CB_+i}, 0, v{vT1}")
    for i in range(16):
        g(f"v_mov_b32 v{OA+i}, 0"); g(f"v_mov_b32 v{OB+i}, 0"); g(f"v_mov_b32 v{SB[1]+i}, 0")
    for i in range(8):
        g(f"v_mov_b32 v{VF[1]+i}, 0")
    g(f"s_mov_b32 s{sIT}, 0")
    qk(SA[0], KF[0], QA, vr(CA, 16))
    g.nop(12)
    g(".p2align 6")
    g("L_ATT:")
    UN = 16
    def exps(S, lo, hi, first64=False):
        for i in range(lo, hi):
            g(f"v_exp_f32{'_e64' if (first64 and i == lo) else ''} v{S+i}, v{S+i}")
    for t in range(UN):
        p = t % 2
        if t == UN - 1:
            l = g.lab("H2")
            g(f"""s_cmp_lg_u32 s{sIT}, 1
            s_cbranch_scc1 {l}""")
            g.wait_cnt(C_H2, 4, vC, vT)
            g(".p2align 3")
            g(f"{l}:")
        qk(SB[p], KF[p], QB, vr(CB_, 16))
        exps(SA[p], 0, 2)
        g(f"ds_read_b128 {vr(KF[1-p],4)}, v{vKA} offset:{(t+1)*REC}")
        g(f"ds_read_b128 {vr(VF[p],4)}, v{vVA} offset:{t*REC}")
        g(f"ds_read_b128 {vr(VF[p]+4,4)}, v{vVA} offset:{t*REC+544}")
        exps(SA[p], 2, 4)
        pv(OB, VF[1-p], SB[1-p])
        exps(SA[p], 4, 10)
        pv(OB, VF[1-p] + 4, SB[1-p] + 8)
        exps(SA[p], 10, 15)
        g("s_waitcnt lgkmcnt(0)")
        exps(SA[p], 15, 16, True)
        qk(SA[1-p], KF[1-p], QA, vr(CA, 16))
        exps(SB[p], 0, 4)
        pv(OA, VF[p], SA[p])
        exps(SB[p], 4, 10)
        pv(OA, VF[p] + 4, SA[p] + 8)
        exps(SB[p], 10, 16)
    g(f"""v_add_u32 v{vKA}, {UN*REC}, v{vKA}
    v_add_u32 v{vVA}, {UN*REC}, v{vVA}
    s_add_u32 s{sIT}, s{sIT}, 1
    s_cmp_lt_u32 s{sIT}, {64//UN}
    s_cbranch_scc1 L_ATT""")
    pv(OB, VF[1], SB[1]); pv(OB, VF[1] + 4, SB[1] + 8)
    g.stamp(8)
    g.nop(12)
    g(f"""v_mov_b32 v{vT2}, {f2u(2.0**110):#x}
    v_fma_f32 v{vT}, v{OA}, 0, v{OA+8}
    v_fma_f32 v{vT1}, v{OB}, 0, v{OB+8}""")
    for i in range(1, 8):
        g(f"v_fma_f32 v{vT}, v{OA+i}, 0, v{vT}")
        g(f"v_fma_f32 v{vT1}, v{OB+i}, 0, v{vT1}")
    g(f"""v_cmp_nlt_f32 vcc, v{vT}, v{vT2}
    v_cmp_nlt_f32 s[{sM}:{sM+1}], v{vT1}, v{vT2}
    s_nop 1
    s_or_b64 vcc, vcc, s[{sM}:{sM+1}]
    s_cmp_eq_u64 vcc, 0
    s_cbranch_scc1 L_ATT_OK
    s_cmp_lg_u32 s{sRETRY}, 0
    s_cbranch_scc1 L_ATT_OK
    s_mov_b32 s{sRETRY}, 1
    v_subrev_u32 v{vKA}, {64*REC}, v{vKA}
    v_subrev_u32 v{vVA}, {64*REC}, v{vVA}
    v_mov_b32 v{vT3}, v{vKA}
    v_mov_b32 v{vT}, 0xff800000
    v_mov_b32 v{vT1}, 0xff800000
    s_mov_b32 s{sIT}, 0
    L_MAXP:
    ds_read_b128 {vr(KF[0],4)}, v{vT3}
    v_add_u32 v{vT3}, {REC}, v{vT3}
    s_waitcnt lgkmcnt(0)""")
    qk(SA[0], KF[0], QA, "0"); qk(SB[0], KF[0], QB, "0")
    g.nop(12)
    for i in range(0, 16, 2):
        g(f"v_max3_f32 v{vT}, v{vT}, v{SA[0]+i}, v{SA[0]+i+1}")
    for i in range(0, 16, 2):
        g(f"v_max3_f32 v{vT1}, v{vT1}, v{SB[0]+i}, v{SB[0]+i+1}")
    g(f"""s_add_u32 s{sIT}, s{sIT}, 1
    s_cmp_lt_u32 s{sIT}, 64
    s_cbranch_scc1 L_MAXP
    ds_read_b128 {vr(KF[0],4)}, v{vKA}""")
    xhalf_max(vT, vT2); xhalf_max(vT1, vT2)
    g(f"""s_waitcnt lgkmcnt(0)
    s_branch L_ATT_START
    L_ATT_OK:
    v_rcp_f32 v{vT}, v{OA+8}
    v_rcp_f32 v{vT1}, v{OB+8}
    s_lshl_b32 s{sT0}, s{sCB}, 13
    s_lshr_b32 s{sT1}, s{sW}, 1
    s_lshl_b32 s{sT1}, s{sT1}, 12
    s_add_u32 s{sT0}, s{sT0}, s{sT1}
    s_and_b32 s{sT1}, s{sW}, 1
    s_lshl_b32 s{sT1}, s{sT1}, 10
    s_add_u32 s{sT0}, s{sT0}, s{sT1}
    s_add_u32 s{sT0}, s{sT0}, s{sHO}
    s_add_u32 s{sT0}, s{sT0}, {112*2048}""")
    for i in range(8):
        g(f"v_mul_f32 v{OA+i}, v{OA+i}, v{vT}")
    for i in range(4):
        g(f"v_cvt_pk_bf16_f32 v{32+i}, v{OA+2*i}, v{OA+2*i+1}")
    g(f"buffer_store_dwordx4 v[32:35], v{vL16}, {srd(S_WS)}, s{sT0} offen sc1")
    for i in range(8):
        g(f"v_mul_f32 v{OB+i}, v{OB+i}, v{vT1}")
    for i in range(4):
        g(f"v_cvt_pk_bf16_f32 v{36+i}, v{OB+2*i}, v{OB+2*i+1}")
    g(f"""buffer_store_dwordx4 v[36:39], v{vL16}, {srd(S_WS)}, s{sT0} offen offset:2048 sc1
    s_lshl_b32 s{sT0}, s{sCB}, 2
    s_add_u32 s{sT0}, s{sT0}, s{sW}
    s_lshl_b32 s{sT0}, s{sT0}, 2
    s_add_u32 s{sT0}, s{sT0}, s{sFL}
    v_mov_b32 v{vT}, 0
    s_waitcnt vmcnt(0)
    s_mov_b64 exec, 1
    buffer_store_dword v{vONE}, v{vT}, {srd(S_WS)}, s{sT0} offen offset:128 sc1
    s_mov_b64 exec, -1
    buffer_load_dwordx4 {vr(vXR,4)}, v{vXO}, {srd(S_X)}, 0 offen""")
    g.stamp(9)
    g("""s_barrier
    s_branch L_FINAL""")

    g(f"""
    L_G_PRE:
    s_setprio 1
    s_sub_u32 s{sJ}, s{sW}, 4
    s_mul_i32 s{sSO}, s{sCB}, 448
    s_lshl_b32 s{sT0}, s{sJ}, 7
    s_add_u32 s{sSO}, s{sSO}, s{sT0}
    s_mov_b32 s{sT1}, 3584
    v_mad_u32_u24 v{vDA}, v20, s{sT1}, v21
    v_add_u32 v{vDB}, {8*3584-1024}, v{vDA}
    s_mov_b32 s{sSTEP}, {16*3584}
    s_cmp_lg_u32 s{sJ}, 3
    s_cbranch_scc1 L_G_P2
    v_lshrrev_b32 v25, 2, v{vLANE}
    v_and_b32 v26, 3, v{vLANE}
    v_lshlrev_b32 v26, 4, v26
    v_mad_u32_u24 v{vDA}, v25, s{sT1}, v26
    v_add_u32 v{vDB}, {16*3584-1024}, v{vDA}
    s_mov_b32 s{sSTEP}, {32*3584}
    L_G_P2:
    s_mul_i32 s{sT3}, s{sJ}, {RING}
    s_add_u32 s{sT3}, s{sT3}, {R3}
    """)
    sRG = sT3
    def fill(slot, sb):
        g(f"""s_add_u32 m0, s{sRG}, {slot*2048}
        s_nop 0
        buffer_load_dwordx4 v{vDA}, {srd(sb)}, s{sSO} offen lds
        buffer_load_dwordx4 v{vDB}, {srd(sb)}, s{sSO} offen offset:1024 lds
        s_add_u32 s{sSO}, s{sSO}, s{sSTEP}""")
    g(f"""s_cmp_lt_u32 s{sCB}, 2
    s_cbranch_scc1 L_G_FAKE""")
    for s_ in range(3): fill(s_, S_W1)
    g(f"""s_branch L_G_LN
    L_G_FAKE:
    s_mov_b32 s{sT0}, s{sSO}""")
    for s_ in range(3):
        g(f"""buffer_load_dwordx4 v[200:203], v{vDA}, {srd(S_W1)}, s{sT0} offen
        buffer_load_dwordx4 v[200:203], v{vDB}, {srd(S_W1)}, s{sT0} offen offset:1024
        s_add_u32 s{sT0}, s{sT0}, s{sSTEP}""")
    g("L_G_LN:")
    g.stamp(1)
    layernorm(6)
    g("s_waitcnt lgkmcnt(0)")
    g.stamp(2)
    g("s_barrier")
    g.stamp(3)
    g(f"""s_cmp_ge_u32 s{sCB}, 2
    s_cbranch_scc1 L_G_G1""")
    g.wait_cnt(C_KVDONE, 4, vC, vT)
    for s_ in range(3): fill(s_, S_W1)
    ACC = 128
    g(f"""L_G_G1:
    v_and_b32 v25, 31, v{vLANE}
    v_mul_u32_u24 v{vXF}, {XP}, v25
    v_lshl_add_u32 v{vXF}, v24, 4, v{vXF}
    v_add_u32 v{vXF}, {R2}, v{vXF}
    s_cmp_eq_u32 s{sJ}, 3
    s_cbranch_scc1 L_G1_N
    v_lshl_add_u32 v{vWF}, v24, 10, v23
    v_add_u32 v{vWF}, s{sRG}, v{vWF}
    """)
    def mf(D, A, B, first): g(f"v_mfma_f32_32x32x16_bf16 {vr(D,16)}, {vr(A,4)}, {vr(B,4)}, {'0' if first else vr(D,16)}")
    FS = [32, 48]
    def rd_w(ks):
        b = FS[ks % 2]; sl = (ks % 3) * 2048
        g(f"ds_read_b128 {vr(b,4)}, v{vXF} offset:{ks*32}")
        g(f"ds_read_b128 {vr(b+4,4)}, v{vXF} offset:{32*XP+ks*32}")
        for mt in range(2):
            for i in range(2):
                g(f"ds_read_b64_tr_b16 {vr(b+8+4*mt+2*i,2)}, v{vWF} offset:{sl+mt*256+i*512}")
    g("s_waitcnt vmcnt(4)")
    rd_w(0)
    g("s_waitcnt lgkmcnt(0)")
    fill(0, S_W1)
    for ks in range(32):
        b = FS[ks % 2]
        if ks + 1 < 32:
            g(f"s_waitcnt vmcnt({min(4, 2*(31-(ks+1)))})")
            rd_w(ks + 1)
        for mt in range(2):
            for nt in range(2):
                mf(ACC + 32*mt + 16*nt, b + 8 + 4*mt, b + 4*nt, ks == 0)
        if ks + 1 < 32:
            g("s_waitcnt lgkmcnt(0)")
            if ks + 4 < 32: fill((ks + 1) % 3, S_W1)
    g.arrive(C_G1, vC, vONE)
    def h_store(mt, sM_):
        for nt in range(2):
            a = ACC + 32*mt + 16*nt; o = 64 + 8 * (2*mt + nt)
            for i in range(8):
                g(f"v_cvt_pk_bf16_f32 v{o+i}, v{a+2*i}, v{a+2*i+1}")
            for i in range(8):
                g(f"v_pk_max_i16 v{o+i}, v{o+i}, 0")
            g(f"buffer_store_dwordx4 {vr(o,4)}, v{vL16}, {srd(S_WS)}, s{sM_} offen offset:{nt*1024} sc1")
            g(f"buffer_store_dwordx4 {vr(o+4,4)}, v{vL16}, {srd(S_WS)}, s{sM_} offen offset:{2048+nt*1024} sc1")
    g(f"""s_mul_i32 s{sT0}, s{sCB}, 7
    s_lshl_b32 s{sT1}, s{sJ}, 1
    s_add_u32 s{sT0}, s{sT0}, s{sT1}
    s_lshl_b32 s{sT0}, s{sT0}, 12
    s_add_u32 s{sT1}, s{sT0}, s{sHO}
    s_add_u32 s{sT2}, s{sT1}, 4096""")
    g.nop(8)
    h_store(0, sT1); h_store(1, sT2)
    g("s_branch L_G1_DONE")
    g(f"""L_G1_N:
    v_lshl_add_u32 v{vWF}, v24, 9, v23
    v_add_u32 v{vWF}, s{sRG}, v{vWF}""")
    FN = [32, 56]
    def rd_n(sl_):
        b = FN[sl_ % 2]; so = (sl_ % 3) * 2048
        for sub in range(2):
            ks = 2 * sl_ + sub; bb = b + 12 * sub
            g(f"ds_read_b128 {vr(bb,4)}, v{vXF} offset:{ks*32}")
            g(f"ds_read_b128 {vr(bb+4,4)}, v{vXF} offset:{32*XP+ks*32}")
            for i in range(2):
                g(f"ds_read_b64_tr_b16 {vr(bb+8+2*i,2)}, v{vWF} offset:{so+sub*1024+i*256}")
    g("s_waitcnt vmcnt(4)")
    rd_n(0)
    g("s_waitcnt lgkmcnt(0)")
    fill(0, S_W1)
    for sl_ in range(16):
        b = FN[sl_ % 2]
        if sl_ + 1 < 16:
            g(f"s_waitcnt vmcnt({min(4, 2*(15-(sl_+1)))})")
            rd_n(sl_ + 1)
        for sub in range(2):
            for nt in range(2):
                mf(ACC + 16*nt, b + 12*sub + 8, b + 12*sub + 4*nt, sl_ == 0 and sub == 0)
        if sl_ + 1 < 16:
            g("s_waitcnt lgkmcnt(0)")
            if sl_ + 4 < 16: fill((sl_ + 1) % 3, S_W1)
    g.arrive(C_G1, vC, vONE)
    g(f"""s_mul_i32 s{sT0}, s{sCB}, 7
    s_add_u32 s{sT0}, s{sT0}, 6
    s_lshl_b32 s{sT0}, s{sT0}, 12
    s_add_u32 s{sT1}, s{sT0}, s{sHO}""")
    g.nop(8)
    h_store(0, sT1)
    g("L_G1_DONE:")
    g.stamp(4)
    NK2 = 28
    g(f"""v_lshl_add_u32 v{vDA}, v20, 10, v21
    v_add_u32 v{vDB}, {8*1024-1024}, v{vDA}
    s_mov_b32 s{sSTEP}, 16384
    s_mul_i32 s{sSO}, s{sJ}, {NK2*16384}
    s_lshl_b32 s{sT0}, s{sCB}, 7
    s_add_u32 s{sSO}, s{sSO}, s{sT0}
    v_lshl_add_u32 v{vWF}, v24, 9, v23
    v_add_u32 v{vWF}, s{sRG}, v{vWF}""")
    g(f"""s_lshl_b32 s{sT0}, s{sCB}, 2
    s_add_u32 s{sT0}, s{sT0}, s{sJ}
    s_lshl_b32 s{sT0}, s{sT0}, 2
    s_add_u32 s{sT1}, s{sT0}, s{sFL}""")
    g.wait_cnt(C_GO1, 5, vC, vT)
    g(f"""v_mov_b32 v{vT}, 0
    s_waitcnt vmcnt(0)
    s_mov_b64 exec, 1
    buffer_store_dword v{vONE}, v{vT}, {srd(S_WS)}, s{sT1} offen sc1
    s_mov_b64 exec, -1""")
    g.wait_cnt(C_G1, 4, vC, vT)
    g(f"s_mov_b32 s{sIT}, s{sSO}")
    kv_dma(1, sJ)
    g(f"""s_mov_b32 s{sSO}, s{sIT}
    s_waitcnt vmcnt(0)""")
    g.arrive(C_H2, vC, vONE)
    g.stamp(5)
    for s_ in range(3): fill(s_, S_W2)
    g(f"""v_and_b32 v{vT1}, 31, v{vLANE}
    v_lshlrev_b32 v{vT1}, 2, v{vT1}""")
    g.poll_flags(S_WS, vT1, f"s{sFL}", vT, sleep=4)
    g.stamp(6)
    HB = [64 + 8*i for i in range(4)]
    WB = [32, 40]
    WO = 192
    sHS = sIT
    g(f"""s_mul_i32 s{sHS}, s{sJ}, {NK2*2048}
    s_add_u32 s{sHS}, s{sHS}, s{sHO}""")
    def ldh(ks):
        b = HB[ks % 4]
        g(f"buffer_load_dwordx4 {vr(b,4)}, v{vL16}, {srd(S_WS)}, s{sHS} offen sc1")
        g(f"buffer_load_dwordx4 {vr(b+4,4)}, v{vL16}, {srd(S_WS)}, s{sHS} offen offset:1024 sc1")
        g(f"s_add_u32 s{sHS}, s{sHS}, 2048")
    def rd2(ks):
        b = WB[ks % 2] if ks < NK2 else WO + 8 * (ks - NK2); sl = (ks % 3) * 2048
        for mt in range(2):
            for i in range(2):
                g(f"ds_read_b64_tr_b16 {vr(b+4*mt+2*i,2)}, v{vWF} offset:{sl+mt*256+i*1024}")
    def fill2(ks):
        if ks == NK2:
            g(f"""s_lshl_b32 s{sSO}, s{sJ}, 17
            s_lshl_b32 s{sT0}, s{sCB}, 7
            s_add_u32 s{sSO}, s{sSO}, s{sT0}""")
        fill(ks % 3, S_W2 if ks < NK2 else S_WO)
    NT = NK2 + 8
    order = []
    def issued(tag, n): order.extend([tag] * n)
    def wait_for(tags):
        last = max(i for i, t in enumerate(order) if t in tags)
        g(f"s_waitcnt vmcnt({len(order) - 1 - last})")
    for ks in range(3):
        ldh(ks); issued(("h", ks), 2)
    rd2(0)
    g("s_waitcnt lgkmcnt(0)")
    fill2(3); issued(("w", 3), 2)
    for ks in range(NT):
        if ks + 1 < NT:
            if ks + 1 >= 3: wait_for([("w", ks + 1)])
            rd2(ks + 1)
        if ks < NK2:
            if ks + 3 < NK2:
                ldh(ks + 3); issued(("h", ks + 3), 2)
            wait_for([("h", ks)])
            b = WB[ks % 2]; hb_ = HB[ks % 4]
            for mt in range(2):
                for nt in range(2):
                    mf(ACC + 32*mt + 16*nt, b + 4*mt, hb_ + 4*nt, ks == 0)
        if ks + 1 < NT:
            g("s_waitcnt lgkmcnt(0)")
            if ks + 4 < NT:
                fill2(ks + 4); issued(("w", ks + 4), 2)
    g(f"buffer_load_dwordx4 {vr(vXR,4)}, v{vXO}, {srd(S_X)}, 0 offen")
    g.stamp(7)
    g(f"""v_and_b32 v{vT1}, 7, v{vLANE}
    v_lshlrev_b32 v{vT1}, 2, v{vT1}
    s_lshl_b32 s{sT1}, s{sJ}, 5
    s_add_u32 s{sT1}, s{sT1}, s{sFL}
    s_add_u32 s{sT1}, s{sT1}, 128""")
    g.poll_flags(S_WS, vT1, f"s{sT1}", vT, sleep=2)
    g.stamp(8)
    OF = 32
    g(f"""s_lshl_b32 s{sT0}, s{sJ}, 14
    s_add_u32 s{sT0}, s{sT0}, s{sHO}
    s_add_u32 s{sT0}, s{sT0}, {112*2048}""")
    for i in range(8):
        if i and i % 2 == 0: g(f"s_add_u32 s{sT0}, s{sT0}, 4096")
        for nt in range(2):
            g(f"buffer_load_dwordx4 {vr(OF+8*i+4*nt,4)}, v{vL16}, {srd(S_WS)}, s{sT0} offen offset:{(i%2)*2048+nt*1024} sc1")
    for i in range(8):
        g(f"s_waitcnt vmcnt({14-2*i})")
        for mt in range(2):
            for nt in range(2):
                mf(ACC + 32*mt + 16*nt, WO + 8*i + 4*mt, OF + 8*i + 4*nt, False)
    g(f"""v_and_b32 v25, 31, v{vLANE}
    v_mul_u32_u24 v25, {PP}, v25
    v_lshl_add_u32 v25, v24, 4, v25
    s_mul_i32 s{sT0}, s{sJ}, {PIMG}
    v_add_u32 v25, s{sT0}, v25""")
    g.stamp(9)
    g("s_barrier")
    g.nop(8)
    for mt in range(2):
        for nt in range(2):
            for q in range(4):
                g(f"ds_write_b128 v25, {vr(ACC+32*mt+16*nt+4*q,4)} offset:{nt*32*PP + mt*128 + q*32}")
    g("s_waitcnt lgkmcnt(0)")
    g(f"""L_FINAL:
    s_barrier
    v_lshrrev_b32 v{vT}, 3, v0
    v_and_b32 v{vT1}, 7, v0
    v_mul_u32_u24 v{vT}, {PP}, v{vT}
    v_lshl_add_u32 v{vT}, v{vT1}, 5, v{vT}""")
    for j in range(4):
        g(f"ds_read_b128 {vr(32+8*j,4)}, v{vT} offset:{j*PIMG}")
        g(f"ds_read_b128 {vr(36+8*j,4)}, v{vT} offset:{j*PIMG+16}")
    g("s_waitcnt vmcnt(0)")
    for d in range(4):
        g(f"v_lshlrev_b32 v{64+2*d}, 16, v{vXR+d}")
        g(f"v_and_b32 v{65+2*d}, 0xffff0000, v{vXR+d}")
    for j in range(4):
        g(f"s_waitcnt lgkmcnt({6-2*j})")
        for d in range(4):
            g(f"v_pk_add_f32 {vr(64+2*d,2)}, {vr(64+2*d,2)}, {vr(32+8*j+2*d,2)}")
    for d in range(4):
        g(f"v_cvt_pk_bf16_f32 v{72+d}, v{64+2*d}, v{65+2*d}")
    g(f"buffer_store_dwordx4 v[72:75], v{vXO}, {srd(S_OUT)}, 0 offen")
    if debug:
        g.stamp(10)
        g(f"""s_waitcnt vmcnt(0)""")
        g.stamp(11)
        g(f"""s_waitcnt lgkmcnt(0)
        s_lshl_b32 s{sT0}, s2, 3
        s_add_u32 s{sT0}, s{sT0}, s{sW}
        s_lshl_b32 s{sT0}, s{sT0}, 6
        s_add_u32 s{sT0}, s{sT0}, {WS_DBG}
        v_mov_b32 v{vT}, 0""")
        for i in range(12):
            g(f"v_writelane_b32 v{vT}, s{sSTAMP+2*i}, {i}")
        g(f"v_writelane_b32 v{vT}, s{sRETRY}, 12")
        g(f"""v_lshlrev_b32 v{vT1}, 2, v{vLANE}
        s_mov_b64 exec, 0xffff
        buffer_store_dword v{vT}, v{vT1}, {srd(S_WS)}, s{sT0} offen""")
    g("L_END:")
    g("s_endpgm")

    ref = open(f"cdna_kernels/{NAME}.s.ref").read().split("\n")
    hdr = [l for l in ref if l.startswith(";") and "@launch" not in l]
    out = hdr + [f"; @launch grid=(256,1,1) block=(512,1,1) lds={LDS_BYTES}",
                 '.amdgcn_target "amdgcn-amd-amdhsa--gfx950"', ".text", f".globl {NAME}_kernel", ".p2align 8",
                 f".type {NAME}_kernel,@function", f"{NAME}_kernel:"] + g.L + [
        '.section .rodata,"a"', ".p2align 6", f".amdhsa_kernel {NAME}_kernel",
        "  .amdhsa_next_free_vgpr 256", "  .amdhsa_next_free_sgpr 102", "  .amdhsa_accum_offset 256",
        "  .amdhsa_group_segment_fixed_size 0", "  .amdhsa_kernarg_size 88", "  .amdhsa_user_sgpr_count 2",
        "  .amdhsa_user_sgpr_kernarg_segment_ptr 1", "  .amdhsa_system_sgpr_workgroup_id_x 1", ".end_amdhsa_kernel", ""]
    return "\n".join(out)


if __name__ == "__main__":
    ap = argparse.ArgumentParser()
    ap.add_argument("-o", default=f"cdna_kernels/{NAME}.s")
    ap.add_argument("--debug", action="store_true")
    a = ap.parse_args()
    open(a.o, "w").write(gen(a.debug))
```

```python
import sys, argparse, struct

NAME = "parallel_sum__grouped_kv_mqa__dense_activation_relu__prompt"

REC = 2112
HALF = 32 * REC
R1, R2, R3 = 0, HALF, 2 * HALF
RING = 6144
CNT = R3 + 4 * RING
C_KVDONE, C_KVST, C_GO1, C_H1, C_G1, C_H2, C_WQ, C_H1B, C_ADONE = 0, 4, 8, 12, 16, 20, 24, 28, 32
LDS_BYTES = 163840
XP = 1040
PP = 272
PIMG = 64 * PP
WS_KV = 0
WS_KVF = 0x40000
WS_HF = 0xC00000
WS_OF = 0xE00000
WS_HO = 0x80000
HO_RB = 144 * 2048
WS_DBG = 0xA00000
WS_BYTES = 0x1000000
FOFF = 80.0
QSCALE = 0.25 * 1.4426950408889634
SPIN = 1 << 15

def f2u(x): return struct.unpack("<I", struct.pack("<f", x))[0]

S_X, S_OUT, S_WS, S_WO, S_W2, S_WQ, S_WKV, S_W1, S_DBG = 4, 8, 12, 16, 20, 24, 28, 32, 36
sW, sRB, sCB = 40, 41, 42
sT0, sT1, sT2, sT3 = 43, 44, 45, 46
sSPIN = 47
sSO = 48
sSTEP = 49
sIT = 50
sHO = 51
sFL = 52
sRETRY = 53
sM = 54
sJ = 56
sPC = 58
sSTAMP = 64
sIDX = 96
sPR = 97
sTM = 98
sN = 100
POLL = 24
NREP = 16

def srd(b): return f"s[{b}:{b+3}]"
def vr(b, n=1): return f"v{b}" if n == 1 else f"v[{b}:{b+n-1}]"


class G:
    def __init__(self, debug):
        self.L = []
        self.tail = []
        self.debug = debug
        self.nlab = 0

    def __call__(self, s):
        for line in s.split("\n"):
            line = line.strip()
            if line:
                self.L.append(line if line.endswith(":") else "    " + line)

    def lab(self, p="L"):
        self.nlab += 1
        return f"{p}_{self.nlab}"

    def stamp(self, i, cyc=False):
        if self.debug:
            self(f"{'s_memtime' if cyc else 's_memrealtime'} s[{sSTAMP+2*i}:{sSTAMP+2*i+1}]")

    def nop(self, n):
        while n > 0:
            k = min(n, 16)
            self(f"s_nop {k-1}")
            n -= k

    def arrive(self, c, vC, vONE):
        self(f"""s_mov_b64 exec, 1
        ds_add_u32 v{vC}, v{vONE} offset:{c}
        s_mov_b64 exec, -1""")

    def wait_cnt(self, c, target, vC, vT, sleep=0):
        l = self.lab("WC"); d = self.lab("WD")
        self(f"""s_mov_b32 s{sSPIN}, {SPIN}
        {l}:
        ds_read_b32 v{vT}, v{vC} offset:{c}
        s_waitcnt lgkmcnt(0)
        v_readfirstlane_b32 s{sT0}, v{vT}
        s_sub_u32 s{sSPIN}, s{sSPIN}, 1
        s_cbranch_scc1 {d}
        s_cmp_ge_u32 s{sT0}, {target}
        s_cbranch_scc1 {d}""")
        if sleep: self(f"s_sleep {sleep}")
        self(f"""s_branch {l}
        {d}:""")

    def poll_flags(self, n, soff, stride, vT, vT1, vLANE, sleep=1):
        l = self.lab("PF"); d = self.lab("PD"); v = self.lab("PV")
        self(f"""s_mov_b32 s{sSPIN}, {NREP-2}
        {l}:""")
        for i in range(n):
            self(f"s_buffer_load_dword s{POLL+i}, {srd(S_WS)}, s{soff} offset:{128*i}")
        self(f"""s_add_u32 s{soff}, s{soff}, {stride}
        s_waitcnt lgkmcnt(0)
        s_xor_b64 s[{sM}:{sM+1}], s[{POLL}:{POLL+1}], s[{sN}:{sN+1}]""")
        for p in range(POLL + 2, POLL + n, 2):
            self(f"""s_xor_b64 s[{p}:{p+1}], s[{p}:{p+1}], s[{sN}:{sN+1}]
            s_or_b64 s[{sM}:{sM+1}], s[{sM}:{sM+1}], s[{p}:{p+1}]""")
        self(f"""s_cbranch_scc0 {d}
        s_sleep {sleep}
        s_sub_u32 s{sSPIN}, s{sSPIN}, 1
        s_cbranch_scc0 {l}
        v_and_b32 v{vT1}, {n-1}, v{vLANE}
        v_lshlrev_b32 v{vT1}, 7, v{vT1}
        s_mov_b32 s{sSPIN}, {SPIN}
        {v}:
        buffer_load_dword v{vT}, v{vT1}, {srd(S_WS)}, s{soff} offen sc1
        s_waitcnt vmcnt(0)
        v_cmp_eq_u32 vcc, s{sN}, v{vT}
        s_sub_u32 s{sSPIN}, s{sSPIN}, 1
        s_cbranch_scc1 {d}
        s_cmp_eq_u64 vcc, -1
        s_cbranch_scc1 {d}
        s_sleep 4
        s_branch {v}
        {d}:""")

    def publish(self, soff, shift, vN, vT, vLANE):
        self(f"""v_lshlrev_b32 v{vT}, {shift}, v{vLANE}
        s_mov_b64 exec, {(1 << NREP) - 1}
        buffer_store_dword v{vN}, v{vT}, {srd(S_WS)}, s{soff} offen sc1
        s_mov_b64 exec, -1""")

    def get_nonce(self, vN, vZ):
        l = self.lab("GN"); d = self.lab("GD")
        self(f"""s_mov_b32 s{sSPIN}, {SPIN}
        {l}:
        v_readfirstlane_b32 s{sN}, v{vN}
        s_sub_u32 s{sSPIN}, s{sSPIN}, 1
        s_cbranch_scc1 {d}
        s_cmp_lg_u32 s{sN}, 0
        s_cbranch_scc1 {d}
        buffer_load_dword v{vN}, v{vZ}, {srd(S_DBG)}, 0 offen sc1
        s_waitcnt vmcnt(0)
        s_branch {l}
        {d}:
        s_mov_b32 s{sN+1}, s{sN}""")


def gen(debug=False, opt=None):
    opt = opt or {}
    O = lambda k, d: opt.get(k, d)
    FOFF = float(O('foff', 80))
    g = G(debug)
    vLANE, vC, vONE, vT, vT1, vT2, vT3 = 1, 2, 3, 4, 5, 6, 7
    vL16 = 8
    vDA, vDB = 9, 10
    vXF = 11
    vWF = 12
    vXO = 13
    vN = 14
    vZ = 15
    vXR = 16
    vDUM = 200
    g(f"""
    s_cmp_ge_u32 s2, 256
    s_cbranch_scc1 L_END
    s_load_dwordx2 s[{S_X}:{S_X+1}], s[0:1], 0
    s_load_dwordx2 s[{S_WQ}:{S_WQ+1}], s[0:1], 8
    s_load_dwordx4 s[60:63], s[0:1], 16
    s_load_dwordx2 s[{S_WO}:{S_WO+1}], s[0:1], 32
    s_load_dwordx2 s[{S_W1}:{S_W1+1}], s[0:1], 48
    s_load_dwordx2 s[{S_W2}:{S_W2+1}], s[0:1], 56
    s_load_dwordx2 s[{S_OUT}:{S_OUT+1}], s[0:1], 64
    s_load_dwordx2 s[{S_DBG}:{S_DBG+1}], s[0:1], 72
    s_load_dwordx2 s[{S_WS}:{S_WS+1}], s[0:1], 80
    s_memrealtime s[{sTM}:{sTM+1}]
    """)
    g.stamp(0)
    g(f"""
    s_getpc_b64 s[{sPC}:{sPC+1}]
    L_PC:
    v_lshrrev_b32 v{vT}, 6, v0
    v_and_b32 v{vLANE}, 63, v0
    s_lshr_b32 s{sIDX}, s2, 3
    v_readfirstlane_b32 s{sW}, v{vT}
    """)
    if O("pfc", 1):
        g(f"""
        v_lshlrev_b32 v27, 7, v0
        v_min_u32 v27, L_CODE_END-L_PC-4, v27
        v_and_b32 v27, -4, v27
        v_mov_b32 v29, s{sPC+1}
        v_add_co_u32 v28, vcc, s{sPC}, v27
        s_cmp_ge_u32 s{sW}, 4
        s_cbranch_scc1 L_NPC
        v_addc_co_u32 v29, vcc, 0, v29, vcc
        global_load_dword v{vDUM}, v[28:29], off
        L_NPC:
        """)
    g(f"""
    s_lshr_b32 s{sPR}, s{sIDX}, 3
    s_and_b32 s{sT0}, s2, 1
    s_lshl_b32 s{sT0}, s{sT0}, 2
    s_add_u32 s{sCB}, s{sT0}, s{sPR}
    s_and_b32 s{sT0}, s2, 6
    s_lshl_b32 s{sT0}, s{sT0}, 2
    s_and_b32 s{sRB}, s{sIDX}, 7
    s_add_u32 s{sRB}, s{sRB}, s{sT0}
    s_mov_b32 s{S_X+2}, 2097152
    s_mov_b32 s{S_X+3}, 0x20000
    v_lshrrev_b32 v{vT}, 3, v{vLANE}
    v_and_b32 v{vT1}, 7, v{vLANE}
    v_lshlrev_b32 v{vT2}, 10, v{vT}
    v_lshl_or_b32 v{vT2}, v{vT1}, 4, v{vT2}
    s_lshl_b32 s{sT0}, s{sRB}, 16
    s_lshl_b32 s{sT1}, s{sW}, 13
    s_add_u32 s{sT0}, s{sT0}, s{sT1}
    s_mov_b32 s{S_DBG+2}, 256
    s_mov_b32 s{S_DBG+3}, 0x20000
    v_mov_b32 v{vZ}, 0
    v_lshlrev_b32 v{vL16}, 4, v{vLANE}
    s_sub_u32 s{sJ}, s{sW}, 4
    s_mov_b32 s{S_WKV+2}, 16384
    s_mov_b32 s{S_WKV+3}, 0x20000
    s_waitcnt lgkmcnt(0)
    """)
    XR = 32
    for i in range(8):
        g(f"buffer_load_dwordx4 {vr(XR+4*i,4)}, v{vT2}, {srd(S_X)}, s{sT0} offen offset:{i*128}")
    g.stamp(1)
    g(f"""
    s_or_b32 s{sT0}, s2, s{sW}
    s_cmp_lg_u32 s{sT0}, 0
    s_cbranch_scc1 L_NN
    s_or_b32 s{sT0}, s{sTM}, 1
    v_mov_b32 v{vN}, s{sT0}
    s_mov_b64 exec, 1
    buffer_store_dword v{vN}, v{vZ}, {srd(S_DBG)}, 0 offen sc1
    s_mov_b64 exec, -1
    L_NN:
    s_cmp_eq_u32 s{sCB}, 0
    s_cselect_b32 s{S_WKV}, s60, s62
    s_cselect_b32 s{S_WKV+1}, s61, s63
    s_cmp_lt_u32 s{sW}, 4
    s_cbranch_scc1 L_NKV
    s_cmp_lg_u32 s{sPR}, 0
    s_cbranch_scc1 L_NKV
    s_lshl_b32 s{sT0}, s{sJ}, 12
    s_add_u32 m0, s{sT0}, {R3}
    s_nop 0""")
    for i in range(4):
        g(f"buffer_load_dwordx4 v{vL16}, {srd(S_WKV)}, s{sT0} offen offset:{i*1024} lds")
    g(f"""
    L_NKV:
    s_mov_b32 s{S_WQ+2}, 524288
    s_mov_b32 s{S_WQ+3}, 0x20000
    s_mov_b32 s{S_WO+2}, 524288
    s_mov_b32 s{S_WO+3}, 0x20000
    s_mov_b32 s{S_W1+2}, 1835008
    s_mov_b32 s{S_W1+3}, 0x20000
    s_mov_b32 s{S_W2+2}, 1835008
    s_mov_b32 s{S_W2+3}, 0x20000
    s_mov_b32 s{S_OUT+2}, 2097152
    s_mov_b32 s{S_OUT+3}, 0x20000
    s_mov_b32 s{S_WS+2}, {WS_BYTES}
    s_mov_b32 s{S_WS+3}, 0x20000
    v_lshrrev_b32 v24, 5, v{vLANE}
    v_bfe_u32 v23, v{vLANE}, 2, 2
    v_lshl_add_u32 v20, v24, 2, v23          ; v20 = row
    v_bfe_u32 v25, v{vLANE}, 4, 1
    v_and_b32 v26, 3, v{vLANE}
    v_lshlrev_b32 v22, 4, v26
    v_lshl_add_u32 v21, v25, 6, v22          ; v21 = colbyte
    s_mul_i32 s{sT1}, s{sW}, {8*XP}
    s_add_u32 s{sT1}, s{sT1}, {R2}
    v_mul_u32_u24 v{vT3}, {XP}, v{vT}
    v_lshl_add_u32 v{vT3}, v{vT1}, 4, v{vT3}
    v_add_u32 v{vT3}, s{sT1}, v{vT3}
    v_mov_b32 v{vC}, {CNT}
    v_mov_b32 v{vONE}, 1
    s_mul_i32 s{sHO}, s{sRB}, {HO_RB}
    s_add_u32 s{sHO}, s{sHO}, {WS_HO}
    s_lshl_b32 s{sFL}, s{sRB}, 16
    s_lshl_b32 s{sT2}, s{sCB}, 9
    s_add_u32 s{sFL}, s{sFL}, s{sT2}
    v_lshrrev_b32 v{vXO}, 3, v0
    v_lshlrev_b32 v{vXO}, 10, v{vXO}
    v_lshl_or_b32 v{vXO}, v{vT1}, 4, v{vXO}
    s_lshl_b32 s{sT1}, s{sRB}, 16
    s_lshl_b32 s{sT2}, s{sCB}, 7
    s_add_u32 s{sT1}, s{sT1}, s{sT2}
    v_add_u32 v{vXO}, s{sT1}, v{vXO}
    v_lshlrev_b32 v23, 6, v23
    v_lshl_add_u32 v23, v25, 5, v23
    v_lshl_add_u32 v23, v26, 3, v23
    v_lshl_add_u32 v27, v{vLANE}, 2, v{vC}
    ds_write_b32 v27, v{vZ}
    s_cmp_ge_u32 s{sW}, 4
    s_cbranch_scc1 L_G_ADDR
    v_lshl_add_u32 v{vDA}, v20, 10, v21
    v_add_u32 v{vDB}, {8*1024-1024}, v{vDA}
    s_lshl_b32 s{sSO}, s{sW}, 17
    s_lshl_b32 s{sT0}, s{sCB}, 7
    s_add_u32 s{sSO}, s{sSO}, s{sT0}
    v_lshrrev_b32 v27, 4, v{vLANE}
    v_and_b32 v28, 15, v{vLANE}
    v_min_u32 v28, 13, v28
    v_lshlrev_b32 v28, 7, v28
    s_mov_b32 s{sT1}, 3584
    v_mad_u32_u24 v27, v27, s{sT1}, v28
    s_lshl_b32 s{sT0}, s{sIDX}, 2
    s_add_u32 s{sT0}, s{sT0}, s{sW}
    s_mul_i32 s{sT0}, s{sT0}, {4*3584}
    s_lshr_b32 s{sT1}, s{sCB}, 2
    s_mul_i32 s{sT1}, s{sT1}, 1792
    s_add_u32 s{sT0}, s{sT0}, s{sT1}
    v_add_u32 v27, s{sT0}, v27
    s_mov_b32 s60, s{S_W1}
    s_mov_b32 s61, s{S_W1+1}
    s_mov_b32 s62, 1835008
    s_branch L_LN
    L_G_ADDR:
    v_lshrrev_b32 v27, 2, v{vLANE}
    v_lshlrev_b32 v27, 10, v27
    v_lshl_add_u32 v27, v26, 7, v27
    s_lshl_b32 s{sT0}, s{sIDX}, 14
    s_lshr_b32 s{sT1}, s{sCB}, 2
    s_lshl_b32 s{sT1}, s{sT1}, 9
    s_add_u32 s{sT0}, s{sT0}, s{sT1}
    v_add_u32 v27, s{sT0}, v27
    s_cmp_eq_u32 s{sJ}, 0
    s_cselect_b32 s62, 524288, 0
    s_mov_b32 s60, s{S_WQ}
    s_mov_b32 s61, s{S_WQ+1}
    s_mul_i32 s{sSO}, s{sCB}, 448
    s_lshl_b32 s{sT0}, s{sJ}, 7
    s_add_u32 s{sSO}, s{sSO}, s{sT0}
    s_mov_b32 s{sT1}, 3584
    v_mad_u32_u24 v{vDA}, v20, s{sT1}, v21
    v_add_u32 v{vDB}, {8*3584-1024}, v{vDA}
    s_mov_b32 s{sSTEP}, {16*3584}
    s_mul_i32 s{sT3}, s{sJ}, {RING}
    s_add_u32 s{sT3}, s{sT3}, {R3}
    s_cmp_lg_u32 s{sJ}, 3
    s_cbranch_scc1 L_LN
    v_lshrrev_b32 v28, 2, v{vLANE}
    v_mad_u32_u24 v{vDA}, v28, s{sT1}, v22
    v_add_u32 v{vDB}, {16*3584-1024}, v{vDA}
    s_mov_b32 s{sSTEP}, {32*3584}
    L_LN:
    s_mov_b32 s63, 0x20000
    """)
    sRG = sT3
    def fill(slot, sb):
        g(f"""s_add_u32 m0, s{sRG}, {slot*2048}
        s_nop 0
        buffer_load_dwordx4 v{vDA}, {srd(sb)}, s{sSO} offen lds
        buffer_load_dwordx4 v{vDB}, {srd(sb)}, s{sSO} offen offset:1024 lds
        s_add_u32 s{sSO}, s{sSO}, s{sSTEP}""")
    F = 64
    PFP = O("pfpos", 7)
    for i in range(8):
        extra = 1 if i > PFP else 0
        g(f"s_waitcnt vmcnt({7 - i + extra})")
        if i == 7: g.stamp(2)
        if i == PFP and O("pf1", 1): g(f"buffer_load_dword v{vDUM}, v27, s[60:63], 0 offen")
        for d in range(4):
            r = XR + 4 * i + d; f = F + 8 * i + 2 * d
            g(f"v_lshlrev_b32 v{f}, 16, v{r}")
            g(f"v_and_b32 v{f+1}, 0xffff0000, v{r}")
        for d in range(4):
            f = F + 8 * i + 2 * d
            a = 128 + 2 * (d % 2); q = 132 + 2 * (d % 2)
            if i == 0 and d < 2:
                g(f"v_pk_mul_f32 {vr(q,2)}, {vr(f,2)}, {vr(f,2)}")
                g(f"v_mov_b32 v{a}, v{f}")
                g(f"v_mov_b32 v{a+1}, v{f+1}")
            else:
                g(f"v_pk_add_f32 {vr(a,2)}, {vr(a,2)}, {vr(f,2)}")
                g(f"v_pk_fma_f32 {vr(q,2)}, {vr(f,2)}, {vr(f,2)}, {vr(q,2)}")
    g(f"""
    v_pk_add_f32 v[128:129], v[128:129], v[130:131]
    v_pk_add_f32 v[132:133], v[132:133], v[134:135]
    v_add_f32 v128, v128, v129
    v_add_f32 v132, v132, v133
    s_nop 1
    v_add_f32_dpp v128, v128, v128 quad_perm:[1,0,3,2] row_mask:0xf bank_mask:0xf
    v_add_f32_dpp v132, v132, v132 quad_perm:[1,0,3,2] row_mask:0xf bank_mask:0xf
    s_nop 1
    v_add_f32_dpp v128, v128, v128 quad_perm:[2,3,0,1] row_mask:0xf bank_mask:0xf
    v_add_f32_dpp v132, v132, v132 quad_perm:[2,3,0,1] row_mask:0xf bank_mask:0xf
    s_nop 1
    v_add_f32_dpp v128, v128, v128 row_half_mirror row_mask:0xf bank_mask:0xf
    v_add_f32_dpp v132, v132, v132 row_half_mirror row_mask:0xf bank_mask:0xf
    v_mul_f32 v128, {f2u(1.0/512):#x}, v128      ; mean
    v_mul_f32 v132, {f2u(1.0/512):#x}, v132      ; E[x^2]
    v_fma_f32 v132, -v128, v128, v132            ; var
    v_max_f32 v132, 0, v132
    v_add_f32 v132, {f2u(1e-5):#x}, v132
    v_rsq_f32 v132, v132
    s_nop 0
    v_mul_f32_e64 v128, -v128, v132              ; -mean*rstd
    """)
    for i in range(8):
        for d in range(4):
            f = F + 8 * i + 2 * d
            g(f"v_pk_fma_f32 {vr(f,2)}, {vr(f,2)}, v[132:133], v[128:129] op_sel_hi:[1,0,0]")
        for d in range(4):
            f = F + 8 * i + 2 * d
            g(f"v_cvt_pk_bf16_f32 v{XR+4*i+d}, v{f}, v{f+1}")
        g(f"ds_write_b128 v{vT3}, {vr(XR+4*i,4)} offset:{i*128}")
    g(f"buffer_load_dword v{vN}, v{vZ}, {srd(S_DBG)}, 0 offen sc1")
    g("s_waitcnt lgkmcnt(0)")
    g.stamp(3)
    g("s_barrier")
    g.stamp(4)
    g(f"""s_cmp_ge_u32 s{sW}, 4
    s_cbranch_scc1 L_G_PRE
    s_setprio 2""")
    QACC = 144
    if O("wqdelay", 1):
        g(f"""s_cmp_lg_u32 s{sPR}, 0
        s_cbranch_scc1 L_WQ""")
        g.wait_cnt(C_KVDONE, 4, vC, vT, sleep=1)
        g("L_WQ:")
    g(f"""s_lshl_b32 s{sT0}, s{sW}, 14
    s_add_u32 m0, s{sT0}, {R1}""")
    for i in range(8):
        g(f"""s_nop 0
        buffer_load_dwordx4 v{vDA}, {srd(S_WQ)}, s{sSO} offen lds
        buffer_load_dwordx4 v{vDB}, {srd(S_WQ)}, s{sSO} offen offset:1024 lds""")
        if i < 7:
            g(f"""s_add_u32 s{sSO}, s{sSO}, 16384
            s_add_u32 m0, m0, 2048""")
    g(f"""
    v_and_b32 v25, 31, v{vLANE}
    s_and_b32 s{sT0}, s{sW}, 1
    s_mul_i32 s{sT0}, s{sT0}, {32*XP}
    s_add_u32 s{sT0}, s{sT0}, {R2}
    v_mul_u32_u24 v{vXF}, {XP}, v25
    v_lshl_add_u32 v{vXF}, v24, 4, v{vXF}
    v_add_u32 v{vXF}, s{sT0}, v{vXF}
    s_lshr_b32 s{sT0}, s{sW}, 1
    s_lshl_b32 s{sT0}, s{sT0}, 8
    v_lshl_add_u32 v{vWF}, v24, 10, v23
    v_add_u32 v{vWF}, s{sT0}, v{vWF}
    """)
    g("s_waitcnt vmcnt(0)")
    g.arrive(C_WQ, vC, vONE)
    g.wait_cnt(C_WQ, 4, vC, vT)
    g.stamp(10)
    FB = 32; NS = 5
    def rdq(ks):
        b = FB + 8 * (ks % NS)
        g(f"ds_read_b128 {vr(b,4)}, v{vXF} offset:{ks*32}")
        g(f"ds_read_b64_tr_b16 {vr(b+4,2)}, v{vWF} offset:{R1+ks*2048}")
        g(f"ds_read_b64_tr_b16 {vr(b+6,2)}, v{vWF} offset:{R1+ks*2048+512}")
    for ks in range(4): rdq(ks)
    for ks in range(32):
        b = FB + 8 * (ks % NS)
        g(f"s_waitcnt lgkmcnt({min(9, 3*(31-ks))})")
        c = "0" if ks == 0 else vr(QACC, 16)
        g(f"v_mfma_f32_32x32x16_bf16 {vr(QACC,16)}, {vr(b+4,4)}, {vr(b,4)}, {c}")
        if ks + 4 < 32: rdq(ks + 4)
    g.stamp(5)
    QA, QB = 24, 28
    g.get_nonce(vN, vZ)
    g.nop(6)
    g(f"s_mov_b32 s{sT0}, {f2u(QSCALE):#x}")
    for i in range(16):
        g(f"v_mul_f32 v{QACC+i}, s{sT0}, v{QACC+i}")
    for i in range(8):
        g(f"v_cvt_pk_bf16_f32 v{QA+i}, v{QACC+2*i}, v{QACC+2*i+1}")
    SA = [32, 48]; SB = [64, 80]; CA, CB_ = 96, 112; OA, OB = 128, 144
    KF = [160, 164]; VF = [168, 176]; vIDX, vKA, vVA = 184, 185, 186
    vPF2, vPFO = 187, 188
    g(f"""
    v_mov_b32 v{vIDX}, 0xdddddddd
    v_mov_b32 v{vKA}, v{vL16}
    v_and_b32 v{vT}, 31, v{vLANE}
    v_lshrrev_b32 v{vT1}, 5, v{vLANE}
    v_lshlrev_b32 v{vT1}, 8, v{vT1}
    v_lshl_add_u32 v{vT1}, v{vT}, 4, v{vT1}
    v_mov_b32 v{vT2}, 528
    v_mov_b32 v{vT3}, 512
    v_and_b32 v{vVA}, 0x1b, v{vT}
    v_cmp_eq_u32 vcc, 16, v{vVA}
    s_nop 1
    v_cndmask_b32 v{vT2}, v{vT2}, v{vT3}, vcc
    v_cmp_gt_u32 vcc, 16, v{vT}
    s_nop 1
    v_cndmask_b32 v{vVA}, v{vT2}, v{vT1}, vcc
    v_add_u32 v{vVA}, 1024, v{vVA}
    s_mov_b32 s{sRETRY}, 0
    v_lshrrev_b32 v{vPF2}, 2, v{vLANE}
    v_and_b32 v{vT}, 3, v{vLANE}
    v_lshlrev_b32 v{vT}, 7, v{vT}
    v_and_b32 v{vPFO}, 3, v{vPF2}
    v_lshl_add_u32 v{vPF2}, v{vPF2}, 10, v{vT}
    v_lshl_add_u32 v{vPFO}, v{vPFO}, 10, v{vT}
    s_lshr_b32 s{sT1}, s{sCB}, 2
    s_lshl_b32 s{sT1}, s{sT1}, 9
    s_mul_i32 s{sT0}, s{sIDX}, {56*1024}
    s_lshl_b32 s{sT2}, s{sW}, 14
    s_add_u32 s{sT0}, s{sT0}, s{sT2}
    s_add_u32 s{sT0}, s{sT0}, s{sT1}
    v_add_u32 v{vPF2}, s{sT0}, v{vPF2}
    s_lshl_b32 s{sT0}, s{sIDX}, 14
    s_lshl_b32 s{sT2}, s{sW}, 12
    s_add_u32 s{sT0}, s{sT0}, s{sT2}
    s_add_u32 s{sT0}, s{sT0}, s{sT1}
    v_add_u32 v{vPFO}, s{sT0}, v{vPFO}
    """)
    for i in range(16):
        g(f"v_mov_b32 v{OA+i}, 0"); g(f"v_mov_b32 v{OB+i}, 0"); g(f"v_mov_b32 v{SB[1]+i}, 0")
    for i in range(8):
        g(f"v_mov_b32 v{VF[1]+i}, 0")
    g(f"""s_lshl_b32 s{sT1}, s{sW}, 11
    s_add_u32 s{sT1}, s{sT1}, {WS_KVF}""")
    g(f"s_setprio {O('spinprio', 0)}")
    g.poll_flags(16, sT1, 8192, vT, vT1, vLANE, sleep=O("kvsleep", 2))
    g.arrive(C_GO1, vC, vONE)
    g.wait_cnt(C_GO1, 4, vC, vT, sleep=1)
    g("s_setprio 2")
    g.stamp(6)
    def kv_dma(half, sidx):
        base = half * HALF
        g(f"""s_lshl_b32 s{sT0}, s{sidx}, 12
        s_add_u32 s{sSO}, s{sT0}, {WS_KV + base}
        s_add_u32 m0, s{sT0}, {base}""")
        for gi in range(4):
            g("s_nop 0")
            for i in range(4):
                g(f"buffer_load_dwordx4 v{vL16}, {srd(S_WS)}, s{sSO} offen offset:{i*1024} sc1 lds")
            g(f"""s_add_u32 s{sSO}, s{sSO}, 16384
            s_add_u32 m0, m0, 16384""")
        l = g.lab("KD")
        g(f"""s_cmp_lg_u32 s{sidx}, 0
        s_cbranch_scc1 {l}""")
        for i in range(2):
            g(f"buffer_load_dwordx4 v{vL16}, {srd(S_WS)}, s{sSO} offen offset:{i*1024} sc1 lds")
        g(f"{l}:")
    kv_dma(0, sW)
    g("s_waitcnt vmcnt(12)")
    g.arrive(C_H1, vC, vONE)
    g.wait_cnt(C_H1, 4, vC, vT)
    g(f"s_setprio {O('aprio', 2)}")
    def qk(S, K, Q, C): g(f"v_mfma_f32_32x32x16_bf16 {vr(S,16)}, {vr(K,4)}, {vr(Q,4)}, {C}")
    def pv(O_, V, P): g(f"v_smfmac_f32_32x32x32_bf16 {vr(O_,16)}, {vr(V,4)}, {vr(P,8)}, v{vIDX}")
    def max16(S, d):
        g(f"v_max3_f32 v{d}, v{S}, v{S+1}, v{S+2}")
        for i in range(3, 15, 2):
            g(f"v_max3_f32 v{d}, v{d}, v{S+i}, v{S+i+1}")
        g(f"v_max_f32 v{d}, v{d}, v{S+15}")
    def xhalf_max(d, t):
        g(f"""v_mov_b32 v{t}, v{d}
        s_nop 1
        v_permlane32_swap_b32 v{d}, v{t}
        s_nop 1
        v_max_f32 v{d}, v{d}, v{t}""")
    g(f"""ds_read_b128 {vr(KF[0],4)}, v{vKA}
    s_waitcnt lgkmcnt(0)""")
    qk(SA[0], KF[0], QA, "0"); qk(SB[0], KF[0], QB, "0")
    g.nop(11)
    max16(SA[0], vT); max16(SB[0], vT1)
    xhalf_max(vT, vT2); xhalf_max(vT1, vT2)
    g(f"""v_add_f32 v{vT}, {f2u(FOFF):#x}, v{vT}
    v_add_f32 v{vT1}, {f2u(FOFF):#x}, v{vT1}
    L_ATT_START:""")
    for i in range(16):
        g(f"v_sub_f32 v{CA+i}, 0, v{vT}")
    g(f"s_mov_b32 s{sIT}, s{sRETRY}")
    g("s_nop 0")
    qk(SA[0], KF[0], QA, vr(CA, 16))
    for i in range(16):
        g(f"v_sub_f32 v{CB_+i}, 0, v{vT1}")
    g.stamp(7); g.stamp(12, True)
    g("s_nop 1")
    g(".p2align 6")
    g("L_ATT:")
    UN = 16
    def exps(S, lo, hi, first64=False):
        for i in range(lo, hi):
            g(f"v_exp_f32{'_e64' if (first64 and i == lo) else ''} v{S+i}, v{S+i}")
    def side(it, fn):
        l = g.lab("SB"); r = g.lab("SR")
        g(f"""s_cmp_eq_u32 s{sIT}, {it}
        s_cbranch_scc1 {l}
        {r}:""")
        main = g.L; g.L = g.tail
        g(f"{l}:"); fn(); g(f"s_branch {r}")
        g.L = main
    def blk_h1b():
        g("s_waitcnt vmcnt(0)")
        g.arrive(C_H1B, vC, vONE)
        if O("pf2", 1):
            g(f"""buffer_load_dword v{vDUM}, v{vPF2}, {srd(S_W2)}, 0 offen
            buffer_load_dword v{vDUM}, v{vPFO}, {srd(S_WO)}, 0 offen""")
    for t in range(UN):
        p = t % 2
        if t == 3: side(0, blk_h1b)
        if t == 7: side(0, lambda: g.wait_cnt(C_H1B, 4, vC, vT))
        if t == UN - 1: side(1, lambda: g.wait_cnt(C_H2, 4, vC, vT))
        qk(SB[p], KF[p], QB, vr(CB_, 16))
        exps(SA[p], 0, 2)
        g(f"ds_read_b128 {vr(KF[1-p],4)}, v{vKA} offset:{(t+1)*REC}")
        g(f"ds_read_b128 {vr(VF[p],4)}, v{vVA} offset:{t*REC}")
        g(f"ds_read_b128 {vr(VF[p]+4,4)}, v{vVA} offset:{t*REC+544}")
        exps(SA[p], 2, 4)
        pv(OB, VF[1-p], SB[1-p])
        exps(SA[p], 4, 10)
        pv(OB, VF[1-p] + 4, SB[1-p] + 8)
        exps(SA[p], 10, 15)
        g("s_waitcnt lgkmcnt(0)")
        exps(SA[p], 15, 16, True)
        qk(SA[1-p], KF[1-p], QA, vr(CA, 16))
        exps(SB[p], 0, 4)
        pv(OA, VF[p], SA[p])
        exps(SB[p], 4, 10)
        pv(OA, VF[p] + 4, SA[p] + 8)
        exps(SB[p], 10, 16)
    g(f"""v_add_u32 v{vKA}, {UN*REC}, v{vKA}
    v_add_u32 v{vVA}, {UN*REC}, v{vVA}
    s_add_u32 s{sIT}, s{sIT}, 1
    s_bitcmp0_b32 s{sIT}, 2
    s_cbranch_scc1 L_ATT""")
    pv(OB, VF[1], SB[1]); pv(OB, VF[1] + 4, SB[1] + 8)
    g.stamp(8); g.stamp(13, True)
    g(f"""s_setprio 2
    v_mov_b32 v{vT2}, {f2u(2.0**110):#x}
    v_fma_f32 v{vT}, v{OA}, 0, v{OA+8}""")
    for i in range(1, 8):
        g(f"v_fma_f32 v{vT}, v{OA+i}, 0, v{vT}")
    g(f"""v_rcp_f32 v{vT3}, v{OA+8}
    s_lshl_b32 s{sT0}, s{sCB}, 13
    s_lshr_b32 s{sT1}, s{sW}, 1
    s_lshl_b32 s{sT1}, s{sT1}, 12
    s_add_u32 s{sT0}, s{sT0}, s{sT1}
    s_and_b32 s{sT1}, s{sW}, 1
    s_lshl_b32 s{sT1}, s{sT1}, 10
    s_add_u32 s{sT0}, s{sT0}, s{sT1}
    s_add_u32 s{sT0}, s{sT0}, s{sHO}
    s_add_u32 s{sSO}, s{sT0}, {112*2048}
    v_fma_f32 v{vT1}, v{OB}, 0, v{OB+8}""")
    for i in range(1, 8):
        g(f"v_fma_f32 v{vT1}, v{OB+i}, 0, v{vT1}")
    g(f"""v_cmp_nlt_f32 vcc, v{vT}, v{vT2}
    v_cmp_nlt_f32 s[{sM}:{sM+1}], v{vT1}, v{vT2}
    v_rcp_f32 v{vT1}, v{OB+8}
    s_nop 0
    s_or_b64 vcc, vcc, s[{sM}:{sM+1}]
    s_cmp_lg_u64 vcc, 0
    s_cbranch_scc1 L_FALLBACK
    L_ATT_OK:""")
    main = g.L; g.L = g.tail
    g(f"""L_FALLBACK:
    s_cmp_lg_u32 s{sRETRY}, 0
    s_cbranch_scc1 L_ATT_OK
    s_mov_b32 s{sRETRY}, 16
    v_subrev_u32 v{vKA}, {64*REC}, v{vKA}
    v_subrev_u32 v{vVA}, {64*REC}, v{vVA}
    v_mov_b32 v{vT3}, v{vKA}
    v_mov_b32 v{vT}, 0xff800000
    v_mov_b32 v{vT1}, 0xff800000
    s_mov_b32 s{sIT}, 0
    L_MAXP:
    ds_read_b128 {vr(KF[0],4)}, v{vT3}
    v_add_u32 v{vT3}, {REC}, v{vT3}
    s_waitcnt lgkmcnt(0)""")
    qk(SA[0], KF[0], QA, "0"); qk(SB[0], KF[0], QB, "0")
    g.nop(12)
    for i in range(0, 16, 2):
        g(f"v_max3_f32 v{vT}, v{vT}, v{SA[0]+i}, v{SA[0]+i+1}")
    for i in range(0, 16, 2):
        g(f"v_max3_f32 v{vT1}, v{vT1}, v{SB[0]+i}, v{SB[0]+i+1}")
    g(f"""s_add_u32 s{sIT}, s{sIT}, 1
    s_cmp_lt_u32 s{sIT}, 64
    s_cbranch_scc1 L_MAXP
    ds_read_b128 {vr(KF[0],4)}, v{vKA}""")
    xhalf_max(vT, vT2); xhalf_max(vT1, vT2)
    for i in range(16):
        g(f"v_mov_b32 v{OA+i}, 0"); g(f"v_mov_b32 v{OB+i}, 0"); g(f"v_mov_b32 v{SB[1]+i}, 0")
    for i in range(8):
        g(f"v_mov_b32 v{VF[1]+i}, 0")
    g(f"""s_waitcnt lgkmcnt(0)
    s_branch L_ATT_START""")
    g.L = main
    for i in range(8):
        g(f"v_mul_f32 v{OA+i}, v{OA+i}, v{vT3}")
    for i in range(4):
        g(f"v_cvt_pk_bf16_f32 v{32+i}, v{OA+2*i}, v{OA+2*i+1}")
    g(f"buffer_store_dwordx4 v[32:35], v{vL16}, {srd(S_WS)}, s{sSO} offen sc1")
    for i in range(8):
        g(f"v_mul_f32 v{OB+i}, v{OB+i}, v{vT1}")
    for i in range(4):
        g(f"v_cvt_pk_bf16_f32 v{36+i}, v{OB+2*i}, v{OB+2*i+1}")
    g(f"""buffer_store_dwordx4 v[36:39], v{vL16}, {srd(S_WS)}, s{sSO} offen offset:2048 sc1
    s_lshl_b32 s{sT0}, s{sW}, 7
    s_add_u32 s{sT0}, s{sT0}, s{sFL}
    s_add_u32 s{sT0}, s{sT0}, {WS_OF}""")
    g.arrive(C_ADONE, vC, vONE)
    g("s_waitcnt vmcnt(0)")
    g.publish(sT0, 12, vN, vT, vLANE)
    g(f"""buffer_load_dwordx4 {vr(vXR,4)}, v{vXO}, {srd(S_X)}, 0 offen""")
    g.stamp(9)
    g("""s_barrier
    s_branch L_FINAL""")

    g(f"""
    L_G_PRE:
    s_setprio {O('gprio', 0)}""")
    g(f"""
    s_cmp_eq_u32 s{sPR}, 0
    s_cbranch_scc1 L_G_KV""")
    for s_ in range(3): fill(s_, S_W1)
    g(f"""s_branch L_G_G1
    L_G_KV:
    s_setprio 3
    v_and_b32 v25, 15, v{vLANE}
    v_lshrrev_b32 v26, 4, v{vLANE}
    s_mul_i32 s{sT0}, s{sJ}, {16*XP}
    s_add_u32 s{sT0}, s{sT0}, {R2}
    v_mul_u32_u24 v{vXF}, {XP}, v25
    v_lshl_add_u32 v{vXF}, v26, 4, v{vXF}
    v_add_u32 v{vXF}, s{sT0}, v{vXF}
    v_lshlrev_b32 v{vWF}, 8, v26
    v_lshl_add_u32 v{vWF}, v25, 3, v{vWF}
    v_add_u32 v{vWF}, {R3}, v{vWF}
    s_lshl_b32 s{sT0}, s{sRB}, 1
    s_lshr_b32 s{sT1}, s{sJ}, 1
    s_add_u32 s{sT0}, s{sT0}, s{sT1}
    s_mul_i32 s{sT2}, s{sT0}, {REC}
    s_and_b32 s{sT1}, s{sJ}, 1
    """)
    def kv_chain(isK):
        FB = 32; ACC = 128; NS = 5
        def rd(ks):
            b = FB + 8 * (ks % NS)
            g(f"ds_read_b128 {vr(b,4)}, v{vXF} offset:{ks*64}")
            g(f"ds_read_b64_tr_b16 {vr(b+4,2)}, v{vWF} offset:{ks*1024}")
            g(f"ds_read_b64_tr_b16 {vr(b+6,2)}, v{vWF} offset:{ks*1024+128}")
        for ks in range(4): rd(ks)
        for ks in range(16):
            b = FB + 8 * (ks % NS)
            g(f"s_waitcnt lgkmcnt({min(9, 3*(15-ks))})")
            c = "0" if ks == 0 else vr(ACC, 4)
            if isK: g(f"v_mfma_f32_16x16x32_bf16 {vr(ACC,4)}, {vr(b+4,4)}, {vr(b,4)}, {c}")
            else:   g(f"v_mfma_f32_16x16x32_bf16 {vr(ACC,4)}, {vr(b,4)}, {vr(b+4,4)}, {c}")
            if ks + 4 < 16: rd(ks + 4)
    g(f"""s_cmp_lg_u32 s{sCB}, 0
    s_cbranch_scc1 L_V""")
    kv_chain(True)
    g(f"""
    v_and_b32 v27, 1, v26
    v_lshlrev_b32 v27, 9, v27
    v_lshl_add_u32 v27, v25, 4, v27
    v_lshrrev_b32 v28, 1, v26
    v_lshl_add_u32 v27, v28, 3, v27
    s_lshl_b32 s{sT1}, s{sT1}, 8
    s_add_u32 s{sT2}, s{sT2}, s{sT1}
    s_branch L_KVS
    L_V:""")
    kv_chain(False)
    g(f"""
    v_lshrrev_b32 v27, 1, v26
    v_lshlrev_b32 v27, 8, v27
    v_lshl_add_u32 v27, v25, 4, v27
    v_and_b32 v28, 1, v26
    v_lshl_add_u32 v27, v28, 3, v27
    s_mul_i32 s{sT1}, s{sT1}, 544
    s_add_u32 s{sT2}, s{sT2}, s{sT1}
    s_add_u32 s{sT2}, s{sT2}, 1024
    v_lshlrev_b32 v28, 3, v{vLANE}
    v_mov_b32 v30, 0x3f803f80
    v_cmp_gt_u32 vcc, 2, v{vLANE}
    s_nop 1
    v_cndmask_b32 v30, 0, v30, vcc
    v_mov_b32 v31, v30
    s_mov_b64 exec, 0xf
    buffer_store_dwordx2 v[30:31], v28, {srd(S_WS)}, s{sT2} offen offset:512 sc1
    s_mov_b64 exec, -1
    L_KVS:
    s_nop 2
    v_cvt_pk_bf16_f32 v132, v128, v129
    v_cvt_pk_bf16_f32 v133, v130, v131
    buffer_store_dwordx2 v[132:133], v27, {srd(S_WS)}, s{sT2} offen sc1""")
    g.arrive(C_KVDONE, vC, vONE)
    g.stamp(11)
    g("s_waitcnt vmcnt(0)")
    g(f"""s_mov_b64 exec, 1
    ds_add_rtn_u32 v{vT}, v{vC}, v{vONE} offset:{C_KVST}
    s_mov_b64 exec, -1""")
    g.get_nonce(vN, vZ)
    g(f"""s_lshl_b32 s{sT1}, s{sRB}, 8
    s_lshl_b32 s{sT2}, s{sCB}, 5
    s_add_u32 s{sT1}, s{sT1}, s{sT2}
    s_add_u32 s{sT1}, s{sT1}, {WS_KVF}
    s_waitcnt lgkmcnt(0)
    v_readfirstlane_b32 s{sT0}, v{vT}
    s_setprio {O('gprio', 0)}
    s_nop 2
    s_cmp_lg_u32 s{sT0}, 3
    s_cbranch_scc1 L_G_NF""")
    g.publish(sT1, 13, vN, vT, vLANE)
    g("L_G_NF:")
    g.stamp(10)
    g.wait_cnt(C_KVDONE, 4, vC, vT)
    for s_ in range(3): fill(s_, S_W1)
    g("L_G_G1:")
    g.stamp(5)
    ACC = 128
    g(f"""
    v_and_b32 v25, 31, v{vLANE}
    v_mul_u32_u24 v{vXF}, {XP}, v25
    v_lshl_add_u32 v{vXF}, v24, 4, v{vXF}
    v_add_u32 v{vXF}, {R2}, v{vXF}
    s_cmp_eq_u32 s{sJ}, 3
    s_cbranch_scc1 L_G1_N
    v_lshl_add_u32 v{vWF}, v24, 10, v23
    v_add_u32 v{vWF}, s{sRG}, v{vWF}
    """)
    def mf(D, A, B, first): g(f"v_mfma_f32_32x32x16_bf16 {vr(D,16)}, {vr(A,4)}, {vr(B,4)}, {'0' if first else vr(D,16)}")
    FS = [32, 48]
    def rd_w(ks):
        b = FS[ks % 2]; sl = (ks % 3) * 2048
        g(f"ds_read_b128 {vr(b,4)}, v{vXF} offset:{ks*32}")
        g(f"ds_read_b128 {vr(b+4,4)}, v{vXF} offset:{32*XP+ks*32}")
        for mt in range(2):
            for i in range(2):
                g(f"ds_read_b64_tr_b16 {vr(b+8+4*mt+2*i,2)}, v{vWF} offset:{sl+mt*256+i*512}")
    g("s_waitcnt vmcnt(4)")
    rd_w(0)
    g("s_waitcnt lgkmcnt(0)")
    fill(0, S_W1)
    for ks in range(32):
        b = FS[ks % 2]
        if ks + 1 < 32:
            g(f"s_waitcnt vmcnt({min(4, 2*(31-(ks+1)))})")
            rd_w(ks + 1)
        for mt in range(2):
            for nt in range(2):
                mf(ACC + 32*mt + 16*nt, b + 8 + 4*mt, b + 4*nt, ks == 0)
        if ks + 1 < 32:
            g("s_waitcnt lgkmcnt(0)")
            if ks + 4 < 32: fill((ks + 1) % 3, S_W1)
    g.arrive(C_G1, vC, vONE)
    def h_store(mt, sM_):
        for nt in range(2):
            a = ACC + 32*mt + 16*nt; o = 64 + 8 * (2*mt + nt)
            for i in range(8):
                g(f"v_cvt_pk_bf16_f32 v{o+i}, v{a+2*i}, v{a+2*i+1}")
            for i in range(8):
                g(f"v_pk_max_i16 v{o+i}, v{o+i}, 0")
            g(f"buffer_store_dwordx4 {vr(o,4)}, v{vL16}, {srd(S_WS)}, s{sM_} offen offset:{nt*1024} sc1")
            g(f"buffer_store_dwordx4 {vr(o+4,4)}, v{vL16}, {srd(S_WS)}, s{sM_} offen offset:{2048+nt*1024} sc1")
    g(f"""s_mul_i32 s{sT0}, s{sCB}, 7
    s_lshl_b32 s{sT1}, s{sJ}, 1
    s_add_u32 s{sT0}, s{sT0}, s{sT1}
    s_lshl_b32 s{sT0}, s{sT0}, 12
    s_add_u32 s{sT1}, s{sT0}, s{sHO}
    s_add_u32 s{sT2}, s{sT1}, 4096""")
    g.nop(8)
    h_store(0, sT1); h_store(1, sT2)
    g("s_branch L_G1_DONE")
    g(f"""L_G1_N:
    v_lshl_add_u32 v{vWF}, v24, 9, v23
    v_add_u32 v{vWF}, s{sRG}, v{vWF}""")
    FN = [32, 56]
    def rd_n(sl_):
        b = FN[sl_ % 2]; so = (sl_ % 3) * 2048
        for sub in range(2):
            ks = 2 * sl_ + sub; bb = b + 12 * sub
            g(f"ds_read_b128 {vr(bb,4)}, v{vXF} offset:{ks*32}")
            g(f"ds_read_b128 {vr(bb+4,4)}, v{vXF} offset:{32*XP+ks*32}")
            for i in range(2):
                g(f"ds_read_b64_tr_b16 {vr(bb+8+2*i,2)}, v{vWF} offset:{so+sub*1024+i*256}")
    g("s_waitcnt vmcnt(4)")
    rd_n(0)
    g("s_waitcnt lgkmcnt(0)")
    fill(0, S_W1)
    for sl_ in range(16):
        b = FN[sl_ % 2]
        if sl_ + 1 < 16:
            g(f"s_waitcnt vmcnt({min(4, 2*(15-(sl_+1)))})")
            rd_n(sl_ + 1)
        for sub in range(2):
            for nt in range(2):
                mf(ACC + 16*nt, b + 12*sub + 8, b + 12*sub + 4*nt, sl_ == 0 and sub == 0)
        if sl_ + 1 < 16:
            g("s_waitcnt lgkmcnt(0)")
            if sl_ + 4 < 16: fill((sl_ + 1) % 3, S_W1)
    g.arrive(C_G1, vC, vONE)
    g(f"""s_mul_i32 s{sT0}, s{sCB}, 7
    s_add_u32 s{sT0}, s{sT0}, 6
    s_lshl_b32 s{sT0}, s{sT0}, 12
    s_add_u32 s{sT1}, s{sT0}, s{sHO}""")
    g.nop(8)
    h_store(0, sT1)
    g("L_G1_DONE:")
    g.stamp(6)
    NK2 = 28
    g(f"""v_lshl_add_u32 v{vDA}, v20, 10, v21
    v_add_u32 v{vDB}, {8*1024-1024}, v{vDA}
    s_mov_b32 s{sSTEP}, 16384
    v_lshl_add_u32 v{vWF}, v24, 9, v23
    v_add_u32 v{vWF}, s{sRG}, v{vWF}""")
    g.get_nonce(vN, vZ)
    g(f"""s_lshl_b32 s{sT1}, s{sJ}, 7
    s_add_u32 s{sT1}, s{sT1}, s{sFL}
    s_add_u32 s{sT1}, s{sT1}, {WS_HF}
    s_waitcnt vmcnt(0)""")
    g.publish(sT1, 12, vN, vT, vLANE)
    g.wait_cnt(C_GO1, 4, vC, vT, sleep=2)
    g.wait_cnt(C_G1, 4, vC, vT, sleep=2)
    kv_dma(1, sJ)
    g(f"""s_mul_i32 s{sSO}, s{sJ}, {NK2*16384}
    s_lshl_b32 s{sT0}, s{sCB}, 7
    s_add_u32 s{sSO}, s{sSO}, s{sT0}""")
    for s_ in range(3): fill(s_, S_W2)
    g("s_waitcnt vmcnt(6)")
    g.arrive(C_H2, vC, vONE)
    g.stamp(7)
    if O("gidle", 0): g("s_branch L_G_SKIP")
    g(f"""s_lshl_b32 s{sT1}, s{sRB}, 16
    s_lshl_b32 s{sT0}, s{sJ}, 10
    s_add_u32 s{sT1}, s{sT1}, s{sT0}
    s_add_u32 s{sT1}, s{sT1}, {WS_HF}""")
    g.poll_flags(8, sT1, 4096, vT, vT1, vLANE, sleep=8)
    g("s_waitcnt vmcnt(0)")
    g.stamp(8)
    NH = O("nh", 4)
    HB = [64 + 8*i for i in range(NH)]
    WB = [32, 40]
    WO = 192
    sHS = sIT
    g(f"""s_mul_i32 s{sHS}, s{sJ}, {NK2*2048}
    s_add_u32 s{sHS}, s{sHS}, s{sHO}""")
    def ldh(ks):
        b = HB[ks % NH]
        g(f"buffer_load_dwordx4 {vr(b,4)}, v{vL16}, {srd(S_WS)}, s{sHS} offen sc1")
        g(f"buffer_load_dwordx4 {vr(b+4,4)}, v{vL16}, {srd(S_WS)}, s{sHS} offen offset:1024 sc1")
        g(f"s_add_u32 s{sHS}, s{sHS}, 2048")
    def rd2(ks):
        b = WB[ks % 2] if ks < NK2 else WO + 8 * (ks - NK2); sl = (ks % 3) * 2048
        for mt in range(2):
            for i in range(2):
                g(f"ds_read_b64_tr_b16 {vr(b+4*mt+2*i,2)}, v{vWF} offset:{sl+mt*256+i*1024}")
    def fill2(ks):
        if ks == NK2:
            g(f"""s_lshl_b32 s{sSO}, s{sJ}, 17
            s_lshl_b32 s{sT0}, s{sCB}, 7
            s_add_u32 s{sSO}, s{sSO}, s{sT0}""")
        fill(ks % 3, S_W2 if ks < NK2 else S_WO)
    NT = NK2 + 8
    order = []
    def issued(tag, n): order.extend([tag] * n)
    def wait_for(tags):
        last = max(i for i, t in enumerate(order) if t in tags)
        g(f"s_waitcnt vmcnt({len(order) - 1 - last})")
    for ks in range(NH - 1):
        ldh(ks); issued(("h", ks), 2)
    rd2(0)
    g("s_waitcnt lgkmcnt(0)")
    fill2(3); issued(("w", 3), 2)
    for ks in range(NT):
        if ks + 1 < NT:
            if ks + 1 >= 3: wait_for([("w", ks + 1)])
            rd2(ks + 1)
        if ks < NK2:
            if ks + NH - 1 < NK2:
                ldh(ks + NH - 1); issued(("h", ks + NH - 1), 2)
            wait_for([("h", ks)])
            b = WB[ks % 2]; hb_ = HB[ks % NH]
            for mt in range(2):
                for nt in range(2):
                    mf(ACC + 32*mt + 16*nt, b + 4*mt, hb_ + 4*nt, ks == 0)
        if ks + 1 < NT:
            g("s_waitcnt lgkmcnt(0)")
            if ks + 4 < NT:
                fill2(ks + 4); issued(("w", ks + 4), 2)
    g(f"buffer_load_dwordx4 {vr(vXR,4)}, v{vXO}, {srd(S_X)}, 0 offen")
    g.stamp(9)
    g(f"""L_G_SKIP:
    s_lshl_b32 s{sT1}, s{sJ}, 10
    s_lshl_b32 s{sT0}, s{sRB}, 16
    s_add_u32 s{sT1}, s{sT1}, s{sT0}
    s_add_u32 s{sT1}, s{sT1}, {WS_OF}
    s_lshl_b32 s{sT2}, s{sJ}, 14
    s_add_u32 s{sT2}, s{sT2}, s{sHO}
    s_add_u32 s{sT2}, s{sT2}, {112*2048}
    v_and_b32 v25, 31, v{vLANE}
    v_mul_u32_u24 v25, {PP}, v25
    v_lshl_add_u32 v25, v24, 4, v25
    s_mul_i32 s{sT0}, s{sJ}, {PIMG}
    v_add_u32 v25, s{sT0}, v25""")
    g.wait_cnt(C_ADONE, O("adone", 1), vC, vT, sleep=4)
    g("s_setprio 3")
    g.poll_flags(8, sT1, 4096, vT, vT1, vLANE, sleep=O("osleep", 1))
    g.stamp(12)
    OF = 32
    for i in range(8):
        if i and i % 2 == 0: g(f"s_add_u32 s{sT2}, s{sT2}, 4096")
        for nt in range(2):
            g(f"buffer_load_dwordx4 {vr(OF+8*i+4*nt,4)}, v{vL16}, {srd(S_WS)}, s{sT2} offen offset:{(i%2)*2048+nt*1024} sc1")
    for i in range(8):
        g(f"s_waitcnt vmcnt({14-2*i})")
        for mt in range(2):
            for nt in range(2):
                mf(ACC + 32*mt + 16*nt, WO + 8*i + 4*mt, OF + 8*i + 4*nt, False)
    g.stamp(13)
    g("s_barrier")
    g.nop(8)
    for mt in range(2):
        for nt in range(2):
            for q in range(4):
                g(f"ds_write_b128 v25, {vr(ACC+32*mt+16*nt+4*q,4)} offset:{nt*32*PP + mt*128 + q*32}")
    g("s_waitcnt lgkmcnt(0)")
    g(f"""L_FINAL:
    v_lshrrev_b32 v{vT}, 3, v0
    v_and_b32 v{vT1}, 7, v0
    v_mul_u32_u24 v{vT}, {PP}, v{vT}
    v_lshl_add_u32 v{vT}, v{vT1}, 5, v{vT}
    s_barrier""")
    for j in range(4):
        g(f"ds_read_b128 {vr(32+8*j,4)}, v{vT} offset:{j*PIMG}")
        g(f"ds_read_b128 {vr(36+8*j,4)}, v{vT} offset:{j*PIMG+16}")
    g("s_waitcnt vmcnt(0)")
    for d in range(4):
        g(f"v_lshlrev_b32 v{64+2*d}, 16, v{vXR+d}")
        g(f"v_and_b32 v{65+2*d}, 0xffff0000, v{vXR+d}")
    for j in range(4):
        g(f"s_waitcnt lgkmcnt({6-2*j})")
        for d in range(4):
            g(f"v_pk_add_f32 {vr(64+2*d,2)}, {vr(64+2*d,2)}, {vr(32+8*j+2*d,2)}")
    for d in range(4):
        g(f"v_cvt_pk_bf16_f32 v{72+d}, v{64+2*d}, v{65+2*d}")
    g(f"buffer_store_dwordx4 v[72:75], v{vXO}, {srd(S_OUT)}, 0 offen")
    if debug:
        g.stamp(14)
        g(f"""s_waitcnt vmcnt(0)""")
        g.stamp(15)
        g(f"""s_waitcnt lgkmcnt(0)
        s_lshl_b32 s{sT0}, s2, 3
        s_add_u32 s{sT0}, s{sT0}, s{sW}
        s_lshl_b32 s{sT0}, s{sT0}, 7
        s_add_u32 s{sT0}, s{sT0}, {WS_DBG}
        v_mov_b32 v{vT}, 0""")
        for i in range(16):
            g(f"v_writelane_b32 v{vT}, s{sSTAMP+2*i}, {i}")
        g(f"v_writelane_b32 v{vT}, s{sRETRY}, 16")
        g(f"v_writelane_b32 v{vT}, s{sRB}, 17")
        g(f"v_writelane_b32 v{vT}, s{sCB}, 18")
        g(f"""v_lshlrev_b32 v{vT1}, 2, v{vLANE}
        s_mov_b32 exec_hi, 0
        buffer_store_dword v{vT}, v{vT1}, {srd(S_WS)}, s{sT0} offen""")
    g("L_END:")
    g("s_endpgm")
    g.L += g.tail
    g("L_CODE_END:")

    ref = open(f"cdna_kernels/{NAME}.s.ref").read().split("\n")
    hdr = [l for l in ref if l.startswith(";") and "@launch" not in l]
    out = hdr + [f"; @launch grid=(256,1,1) block=(512,1,1) lds={LDS_BYTES}",
                 '.amdgcn_target "amdgcn-amd-amdhsa--gfx950"', ".text", f".globl {NAME}_kernel", ".p2align 8",
                 f".type {NAME}_kernel,@function", f"{NAME}_kernel:"] + g.L + [
        '.section .rodata,"a"', ".p2align 6", f".amdhsa_kernel {NAME}_kernel",
        "  .amdhsa_next_free_vgpr 256", "  .amdhsa_next_free_sgpr 102", "  .amdhsa_accum_offset 256",
        "  .amdhsa_group_segment_fixed_size 0", "  .amdhsa_kernarg_size 88", "  .amdhsa_user_sgpr_count 2",
        "  .amdhsa_user_sgpr_kernarg_segment_ptr 1", "  .amdhsa_system_sgpr_workgroup_id_x 1", ".end_amdhsa_kernel", ""]
    return "\n".join(out)


if __name__ == "__main__":
    ap = argparse.ArgumentParser()
    ap.add_argument("-o", default=f"cdna_kernels/{NAME}.s")
    ap.add_argument("--debug", action="store_true")
    ap.add_argument("opts", nargs="*")
    a = ap.parse_args()
    opt = {k: int(v) for k, v in (o.split("=") for o in a.opts)}
    open(a.o, "w").write(gen(a.debug, opt))
```

```python
import sys, argparse, struct

NAME = "parallel_sum__grouped_kv_mqa__dense_activation_relu__prompt"

REC = 2112
HALF = 32 * REC
R1, R2, R3 = 0, HALF, 2 * HALF
RING = 6144
CNT = R3 + 4 * RING
C_KVDONE, C_KVST, C_GO1, C_H1, C_G1, C_H2, C_WQ, C_H1B, C_ADONE = 0, 4, 8, 12, 16, 20, 24, 28, 32
LDS_BYTES = 163840
XP = 1040
PP = 272
PIMG = 64 * PP
WS_KV = 0
WS_KVF = 0x40000
WS_HF = 0xC00000
WS_OF = 0xE00000
WS_HO = 0x80000
HO_RB = 144 * 2048
WS_DBG = 0xA00000
WS_BYTES = 0x1000000
FOFF = 80.0
QSCALE = 0.25 * 1.4426950408889634
SPIN = 1 << 15

def f2u(x): return struct.unpack("<I", struct.pack("<f", x))[0]

S_X, S_OUT, S_WS, S_WO, S_W2, S_WQ, S_WKV, S_W1, S_DBG = 4, 8, 12, 16, 20, 24, 28, 32, 36
sW, sRB, sCB = 40, 41, 42
sT0, sT1, sT2, sT3 = 43, 44, 45, 46
sSPIN = 47
sSO = 48
sSTEP = 49
sIT = 50
sHO = 51
sFL = 52
sRETRY = 53
sM = 54
sJ = 56
sPC = 58
sSTAMP = 64
sIDX = 96
sPR = 97
sTM = 98
sN = 100
POLL = 24
NREP = 16

def srd(b): return f"s[{b}:{b+3}]"
def vr(b, n=1): return f"v{b}" if n == 1 else f"v[{b}:{b+n-1}]"


class G:
    def __init__(self, debug):
        self.L = []
        self.tail = []
        self.debug = debug
        self.nlab = 0

    def __call__(self, s):
        for line in s.split("\n"):
            line = line.strip()
            if line:
                self.L.append(line if line.endswith(":") else "    " + line)

    def lab(self, p="L"):
        self.nlab += 1
        return f"{p}_{self.nlab}"

    def stamp(self, i, cyc=False):
        if self.debug:
            self(f"{'s_memtime' if cyc else 's_memrealtime'} s[{sSTAMP+2*i}:{sSTAMP+2*i+1}]")

    def nop(self, n):
        while n > 0:
            k = min(n, 16)
            self(f"s_nop {k-1}")
            n -= k

    def arrive(self, c, vC, vONE):
        self(f"""s_mov_b64 exec, 1
        ds_add_u32 v{vC}, v{vONE} offset:{c}
        s_mov_b64 exec, -1""")

    def wait_cnt(self, c, target, vC, vT, sleep=0):
        l = self.lab("WC"); d = self.lab("WD")
        self(f"""s_mov_b32 s{sSPIN}, {SPIN}
        {l}:
        ds_read_b32 v{vT}, v{vC} offset:{c}
        s_waitcnt lgkmcnt(0)
        v_readfirstlane_b32 s{sT0}, v{vT}
        s_sub_u32 s{sSPIN}, s{sSPIN}, 1
        s_cbranch_scc1 {d}
        s_cmp_ge_u32 s{sT0}, {target}
        s_cbranch_scc1 {d}""")
        if sleep: self(f"s_sleep {sleep}")
        self(f"""s_branch {l}
        {d}:""")

    def poll_flags(self, n, soff, stride, vT, vT1, vLANE, sleep=1):
        l = self.lab("PF"); d = self.lab("PD"); v = self.lab("PV")
        self(f"""s_mov_b32 s{sSPIN}, {NREP-2}
        {l}:""")
        for i in range(n):
            self(f"s_buffer_load_dword s{POLL+i}, {srd(S_WS)}, s{soff} offset:{128*i}")
        self(f"""s_add_u32 s{soff}, s{soff}, {stride}
        s_waitcnt lgkmcnt(0)
        s_xor_b64 s[{sM}:{sM+1}], s[{POLL}:{POLL+1}], s[{sN}:{sN+1}]""")
        for p in range(POLL + 2, POLL + n, 2):
            self(f"""s_xor_b64 s[{p}:{p+1}], s[{p}:{p+1}], s[{sN}:{sN+1}]
            s_or_b64 s[{sM}:{sM+1}], s[{sM}:{sM+1}], s[{p}:{p+1}]""")
        self(f"""s_cbranch_scc0 {d}
        s_sleep {sleep}
        s_sub_u32 s{sSPIN}, s{sSPIN}, 1
        s_cbranch_scc0 {l}
        v_and_b32 v{vT1}, {n-1}, v{vLANE}
        v_lshlrev_b32 v{vT1}, 7, v{vT1}
        s_mov_b32 s{sSPIN}, {SPIN}
        {v}:
        buffer_load_dword v{vT}, v{vT1}, {srd(S_WS)}, s{soff} offen sc1
        s_waitcnt vmcnt(0)
        v_cmp_eq_u32 vcc, s{sN}, v{vT}
        s_sub_u32 s{sSPIN}, s{sSPIN}, 1
        s_cbranch_scc1 {d}
        s_cmp_eq_u64 vcc, -1
        s_cbranch_scc1 {d}
        s_sleep 4
        s_branch {v}
        {d}:""")

    def publish(self, soff, shift, vN, vT, vLANE):
        self(f"""v_lshlrev_b32 v{vT}, {shift}, v{vLANE}
        s_mov_b64 exec, {(1 << NREP) - 1}
        buffer_store_dword v{vN}, v{vT}, {srd(S_WS)}, s{soff} offen sc1
        s_mov_b64 exec, -1""")

    def get_nonce(self, vN, vZ):
        l = self.lab("GN"); d = self.lab("GD")
        self(f"""s_mov_b32 s{sSPIN}, {SPIN}
        {l}:
        v_readfirstlane_b32 s{sN}, v{vN}
        s_sub_u32 s{sSPIN}, s{sSPIN}, 1
        s_cbranch_scc1 {d}
        s_cmp_lg_u32 s{sN}, 0
        s_cbranch_scc1 {d}
        buffer_load_dword v{vN}, v{vZ}, {srd(S_DBG)}, 0 offen sc1
        s_waitcnt vmcnt(0)
        s_branch {l}
        {d}:
        s_mov_b32 s{sN+1}, s{sN}""")


def gen(debug=False, opt=None):
    opt = opt or {}
    O = lambda k, d: opt.get(k, d)
    FOFF = float(O('foff', 80))
    g = G(debug)
    vLANE, vC, vONE, vT, vT1, vT2, vT3 = 1, 2, 3, 4, 5, 6, 7
    vL16 = 8
    vDA, vDB = 9, 10
    vXF = 11
    vWF = 12
    vXO = 13
    vN = 14
    vZ = 15
    vXR = 16
    vDUM = 200
    g(f"""
    s_cmp_ge_u32 s2, 256
    s_cbranch_scc1 L_END
    s_load_dwordx2 s[{S_X}:{S_X+1}], s[0:1], 0
    s_load_dwordx2 s[{S_WQ}:{S_WQ+1}], s[0:1], 8
    s_load_dwordx4 s[60:63], s[0:1], 16
    s_load_dwordx2 s[{S_WO}:{S_WO+1}], s[0:1], 32
    s_load_dwordx2 s[{S_W1}:{S_W1+1}], s[0:1], 48
    s_load_dwordx2 s[{S_W2}:{S_W2+1}], s[0:1], 56
    s_load_dwordx2 s[{S_OUT}:{S_OUT+1}], s[0:1], 64
    s_load_dwordx2 s[{S_DBG}:{S_DBG+1}], s[0:1], 72
    s_load_dwordx2 s[{S_WS}:{S_WS+1}], s[0:1], 80
    s_memrealtime s[{sTM}:{sTM+1}]
    """)
    g.stamp(0)
    g(f"""
    s_getpc_b64 s[{sPC}:{sPC+1}]
    L_PC:
    v_lshrrev_b32 v{vT}, 6, v0
    v_and_b32 v{vLANE}, 63, v0
    s_lshr_b32 s{sIDX}, s2, 3
    v_readfirstlane_b32 s{sW}, v{vT}
    """)
    if O("pfc", 1):
        g(f"""
        v_lshlrev_b32 v27, 7, v0
        v_min_u32 v27, L_CODE_END-L_PC-4, v27
        v_and_b32 v27, -4, v27
        v_mov_b32 v29, s{sPC+1}
        v_add_co_u32 v28, vcc, s{sPC}, v27
        s_cmp_ge_u32 s{sW}, 4
        s_cbranch_scc1 L_NPC
        v_addc_co_u32 v29, vcc, 0, v29, vcc
        global_load_dword v{vDUM}, v[28:29], off
        L_NPC:
        """)
    g(f"""
    s_lshr_b32 s{sPR}, s{sIDX}, 3
    s_and_b32 s{sT0}, s2, 1
    s_lshl_b32 s{sT0}, s{sT0}, 2
    s_add_u32 s{sCB}, s{sT0}, s{sPR}
    s_and_b32 s{sT0}, s2, 6
    s_lshl_b32 s{sT0}, s{sT0}, 2
    s_and_b32 s{sRB}, s{sIDX}, 7
    s_add_u32 s{sRB}, s{sRB}, s{sT0}
    s_mov_b32 s{S_X+2}, 2097152
    s_mov_b32 s{S_X+3}, 0x20000
    v_lshrrev_b32 v{vT}, 3, v{vLANE}
    v_and_b32 v{vT1}, 7, v{vLANE}
    v_lshlrev_b32 v{vT2}, 10, v{vT}
    v_lshl_or_b32 v{vT2}, v{vT1}, 4, v{vT2}
    s_lshl_b32 s{sT0}, s{sRB}, 16
    s_lshl_b32 s{sT1}, s{sW}, 13
    s_add_u32 s{sT0}, s{sT0}, s{sT1}
    s_mov_b32 s{S_DBG+2}, 256
    s_mov_b32 s{S_DBG+3}, 0x20000
    v_mov_b32 v{vZ}, 0
    v_lshlrev_b32 v{vL16}, 4, v{vLANE}
    s_sub_u32 s{sJ}, s{sW}, 4
    s_mov_b32 s{S_WKV+2}, 16384
    s_mov_b32 s{S_WKV+3}, 0x20000
    s_waitcnt lgkmcnt(0)
    """)
    XR = 32
    for i in range(8):
        g(f"buffer_load_dwordx4 {vr(XR+4*i,4)}, v{vT2}, {srd(S_X)}, s{sT0} offen offset:{i*128}")
    g.stamp(1)
    g(f"""
    s_or_b32 s{sT0}, s2, s{sW}
    s_cmp_lg_u32 s{sT0}, 0
    s_cbranch_scc1 L_NN
    s_or_b32 s{sT0}, s{sTM}, 1
    v_mov_b32 v{vN}, s{sT0}
    s_mov_b64 exec, 1
    buffer_store_dword v{vN}, v{vZ}, {srd(S_DBG)}, 0 offen sc1
    s_mov_b64 exec, -1
    L_NN:
    s_cmp_eq_u32 s{sCB}, 0
    s_cselect_b32 s{S_WKV}, s60, s62
    s_cselect_b32 s{S_WKV+1}, s61, s63
    s_cmp_lt_u32 s{sW}, 4
    s_cbranch_scc1 L_NKV
    s_cmp_lg_u32 s{sPR}, 0
    s_cbranch_scc1 L_NKV
    s_lshl_b32 s{sT0}, s{sJ}, 12
    s_add_u32 m0, s{sT0}, {R3}
    s_nop 0""")
    for i in range(4):
        g(f"buffer_load_dwordx4 v{vL16}, {srd(S_WKV)}, s{sT0} offen offset:{i*1024} lds")
    g(f"""
    L_NKV:
    s_mov_b32 s{S_WQ+2}, 524288
    s_mov_b32 s{S_WQ+3}, 0x20000
    s_mov_b32 s{S_WO+2}, 524288
    s_mov_b32 s{S_WO+3}, 0x20000
    s_mov_b32 s{S_W1+2}, 1835008
    s_mov_b32 s{S_W1+3}, 0x20000
    s_mov_b32 s{S_W2+2}, 1835008
    s_mov_b32 s{S_W2+3}, 0x20000
    s_mov_b32 s{S_OUT+2}, 2097152
    s_mov_b32 s{S_OUT+3}, 0x20000
    s_mov_b32 s{S_WS+2}, {WS_BYTES}
    s_mov_b32 s{S_WS+3}, 0x20000
    v_lshrrev_b32 v24, 5, v{vLANE}
    v_bfe_u32 v23, v{vLANE}, 2, 2
    v_lshl_add_u32 v20, v24, 2, v23          ; v20 = row
    v_bfe_u32 v25, v{vLANE}, 4, 1
    v_and_b32 v26, 3, v{vLANE}
    v_lshlrev_b32 v22, 4, v26
    v_lshl_add_u32 v21, v25, 6, v22          ; v21 = colbyte
    s_mul_i32 s{sT1}, s{sW}, {8*XP}
    s_add_u32 s{sT1}, s{sT1}, {R2}
    v_mul_u32_u24 v{vT3}, {XP}, v{vT}
    v_lshl_add_u32 v{vT3}, v{vT1}, 4, v{vT3}
    v_add_u32 v{vT3}, s{sT1}, v{vT3}
    v_mov_b32 v{vC}, {CNT}
    v_mov_b32 v{vONE}, 1
    s_mul_i32 s{sHO}, s{sRB}, {HO_RB}
    s_add_u32 s{sHO}, s{sHO}, {WS_HO}
    s_lshl_b32 s{sFL}, s{sRB}, 16
    s_lshl_b32 s{sT2}, s{sCB}, 9
    s_add_u32 s{sFL}, s{sFL}, s{sT2}
    v_lshrrev_b32 v{vXO}, 3, v0
    v_lshlrev_b32 v{vXO}, 10, v{vXO}
    v_lshl_or_b32 v{vXO}, v{vT1}, 4, v{vXO}
    s_lshl_b32 s{sT1}, s{sRB}, 16
    s_lshl_b32 s{sT2}, s{sCB}, 7
    s_add_u32 s{sT1}, s{sT1}, s{sT2}
    v_add_u32 v{vXO}, s{sT1}, v{vXO}
    v_lshlrev_b32 v23, 6, v23
    v_lshl_add_u32 v23, v25, 5, v23
    v_lshl_add_u32 v23, v26, 3, v23
    v_lshl_add_u32 v27, v{vLANE}, 2, v{vC}
    ds_write_b32 v27, v{vZ}
    s_cmp_ge_u32 s{sW}, 4
    s_cbranch_scc1 L_G_ADDR
    v_lshl_add_u32 v{vDA}, v20, 10, v21
    v_add_u32 v{vDB}, {8*1024-1024}, v{vDA}
    s_lshl_b32 s{sSO}, s{sW}, 17
    s_lshl_b32 s{sT0}, s{sCB}, 7
    s_add_u32 s{sSO}, s{sSO}, s{sT0}
    v_lshrrev_b32 v27, 4, v{vLANE}
    v_and_b32 v28, 15, v{vLANE}
    v_min_u32 v28, 13, v28
    v_lshlrev_b32 v28, 7, v28
    s_mov_b32 s{sT1}, 3584
    v_mad_u32_u24 v27, v27, s{sT1}, v28
    s_lshl_b32 s{sT0}, s{sIDX}, 2
    s_add_u32 s{sT0}, s{sT0}, s{sW}
    s_mul_i32 s{sT0}, s{sT0}, {4*3584}
    s_lshr_b32 s{sT1}, s{sCB}, 2
    s_mul_i32 s{sT1}, s{sT1}, 1792
    s_add_u32 s{sT0}, s{sT0}, s{sT1}
    v_add_u32 v27, s{sT0}, v27
    s_mov_b32 s60, s{S_W1}
    s_mov_b32 s61, s{S_W1+1}
    s_mov_b32 s62, 1835008
    s_branch L_LN
    L_G_ADDR:
    v_lshrrev_b32 v27, 2, v{vLANE}
    v_lshlrev_b32 v27, 10, v27
    v_lshl_add_u32 v27, v26, 7, v27
    s_lshl_b32 s{sT0}, s{sIDX}, 14
    s_lshr_b32 s{sT1}, s{sCB}, 2
    s_lshl_b32 s{sT1}, s{sT1}, 9
    s_add_u32 s{sT0}, s{sT0}, s{sT1}
    v_add_u32 v27, s{sT0}, v27
    s_cmp_eq_u32 s{sJ}, 0
    s_cselect_b32 s62, 524288, 0
    s_mov_b32 s60, s{S_WQ}
    s_mov_b32 s61, s{S_WQ+1}
    s_mul_i32 s{sSO}, s{sCB}, 448
    s_lshl_b32 s{sT0}, s{sJ}, 7
    s_add_u32 s{sSO}, s{sSO}, s{sT0}
    s_mov_b32 s{sT1}, 3584
    v_mad_u32_u24 v{vDA}, v20, s{sT1}, v21
    v_add_u32 v{vDB}, {8*3584-1024}, v{vDA}
    s_mov_b32 s{sSTEP}, {16*3584}
    s_mul_i32 s{sT3}, s{sJ}, {RING}
    s_add_u32 s{sT3}, s{sT3}, {R3}
    s_cmp_lg_u32 s{sJ}, 3
    s_cbranch_scc1 L_LN
    v_lshrrev_b32 v28, 2, v{vLANE}
    v_mad_u32_u24 v{vDA}, v28, s{sT1}, v22
    v_add_u32 v{vDB}, {16*3584-1024}, v{vDA}
    s_mov_b32 s{sSTEP}, {32*3584}
    L_LN:
    s_mov_b32 s63, 0x20000
    """)
    sRG = sT3
    def fill(slot, sb):
        g(f"""s_add_u32 m0, s{sRG}, {slot*2048}
        s_nop 0
        buffer_load_dwordx4 v{vDA}, {srd(sb)}, s{sSO} offen lds
        buffer_load_dwordx4 v{vDB}, {srd(sb)}, s{sSO} offen offset:1024 lds
        s_add_u32 s{sSO}, s{sSO}, s{sSTEP}""")
    F = 64
    PFP = O("pfpos", 7)
    for i in range(8):
        extra = 1 if i > PFP else 0
        g(f"s_waitcnt vmcnt({7 - i + extra})")
        if i == 7: g.stamp(2)
        if i == PFP and O("pf1", 1): g(f"buffer_load_dword v{vDUM}, v27, s[60:63], 0 offen")
        for d in range(4):
            r = XR + 4 * i + d; f = F + 8 * i + 2 * d
            g(f"v_lshlrev_b32 v{f}, 16, v{r}")
            g(f"v_and_b32 v{f+1}, 0xffff0000, v{r}")
        for d in range(4):
            f = F + 8 * i + 2 * d
            a = 128 + 2 * (d % 2); q = 132 + 2 * (d % 2)
            if i == 0 and d < 2:
                g(f"v_pk_mul_f32 {vr(q,2)}, {vr(f,2)}, {vr(f,2)}")
                g(f"v_mov_b32 v{a}, v{f}")
                g(f"v_mov_b32 v{a+1}, v{f+1}")
            else:
                g(f"v_pk_add_f32 {vr(a,2)}, {vr(a,2)}, {vr(f,2)}")
                g(f"v_pk_fma_f32 {vr(q,2)}, {vr(f,2)}, {vr(f,2)}, {vr(q,2)}")
    g(f"""
    v_pk_add_f32 v[128:129], v[128:129], v[130:131]
    v_pk_add_f32 v[132:133], v[132:133], v[134:135]
    v_add_f32 v128, v128, v129
    v_add_f32 v132, v132, v133
    s_nop 1
    v_add_f32_dpp v128, v128, v128 quad_perm:[1,0,3,2] row_mask:0xf bank_mask:0xf
    v_add_f32_dpp v132, v132, v132 quad_perm:[1,0,3,2] row_mask:0xf bank_mask:0xf
    s_nop 1
    v_add_f32_dpp v128, v128, v128 quad_perm:[2,3,0,1] row_mask:0xf bank_mask:0xf
    v_add_f32_dpp v132, v132, v132 quad_perm:[2,3,0,1] row_mask:0xf bank_mask:0xf
    s_nop 1
    v_add_f32_dpp v128, v128, v128 row_half_mirror row_mask:0xf bank_mask:0xf
    v_add_f32_dpp v132, v132, v132 row_half_mirror row_mask:0xf bank_mask:0xf
    v_mul_f32 v128, {f2u(1.0/512):#x}, v128      ; mean
    v_mul_f32 v132, {f2u(1.0/512):#x}, v132      ; E[x^2]
    v_fma_f32 v132, -v128, v128, v132            ; var
    v_max_f32 v132, 0, v132
    v_add_f32 v132, {f2u(1e-5):#x}, v132
    v_rsq_f32 v132, v132
    s_nop 0
    v_mul_f32_e64 v128, -v128, v132              ; -mean*rstd
    """)
    for i in range(8):
        for d in range(4):
            f = F + 8 * i + 2 * d
            g(f"v_pk_fma_f32 {vr(f,2)}, {vr(f,2)}, v[132:133], v[128:129] op_sel_hi:[1,0,0]")
        for d in range(4):
            f = F + 8 * i + 2 * d
            g(f"v_cvt_pk_bf16_f32 v{XR+4*i+d}, v{f}, v{f+1}")
        g(f"ds_write_b128 v{vT3}, {vr(XR+4*i,4)} offset:{i*128}")
    g(f"buffer_load_dword v{vN}, v{vZ}, {srd(S_DBG)}, 0 offen sc1")
    g("s_waitcnt lgkmcnt(0)")
    g.stamp(3)
    g("s_barrier")
    g.stamp(4)
    g(f"""s_cmp_ge_u32 s{sW}, 4
    s_cbranch_scc1 L_G_PRE
    s_setprio 2""")
    QACC = 144
    if O("wqdelay", 1):
        g(f"""s_cmp_lg_u32 s{sPR}, 0
        s_cbranch_scc1 L_WQ""")
        g.wait_cnt(C_KVDONE, 4, vC, vT, sleep=1)
        g("L_WQ:")
    g(f"""s_lshl_b32 s{sT0}, s{sW}, 14
    s_add_u32 m0, s{sT0}, {R1}""")
    for i in range(8):
        g(f"""s_nop 0
        buffer_load_dwordx4 v{vDA}, {srd(S_WQ)}, s{sSO} offen lds
        buffer_load_dwordx4 v{vDB}, {srd(S_WQ)}, s{sSO} offen offset:1024 lds""")
        if i < 7:
            g(f"""s_add_u32 s{sSO}, s{sSO}, 16384
            s_add_u32 m0, m0, 2048""")
    g(f"""
    v_and_b32 v25, 31, v{vLANE}
    s_and_b32 s{sT0}, s{sW}, 1
    s_mul_i32 s{sT0}, s{sT0}, {32*XP}
    s_add_u32 s{sT0}, s{sT0}, {R2}
    v_mul_u32_u24 v{vXF}, {XP}, v25
    v_lshl_add_u32 v{vXF}, v24, 4, v{vXF}
    v_add_u32 v{vXF}, s{sT0}, v{vXF}
    s_lshr_b32 s{sT0}, s{sW}, 1
    s_lshl_b32 s{sT0}, s{sT0}, 8
    v_lshl_add_u32 v{vWF}, v24, 10, v23
    v_add_u32 v{vWF}, s{sT0}, v{vWF}
    """)
    g("s_waitcnt vmcnt(0)")
    g.arrive(C_WQ, vC, vONE)
    g.wait_cnt(C_WQ, 4, vC, vT)
    g.stamp(10)
    FB = 32; NS = 5
    def rdq(ks):
        b = FB + 8 * (ks % NS)
        g(f"ds_read_b128 {vr(b,4)}, v{vXF} offset:{ks*32}")
        g(f"ds_read_b64_tr_b16 {vr(b+4,2)}, v{vWF} offset:{R1+ks*2048}")
        g(f"ds_read_b64_tr_b16 {vr(b+6,2)}, v{vWF} offset:{R1+ks*2048+512}")
    for ks in range(4): rdq(ks)
    for ks in range(32):
        b = FB + 8 * (ks % NS)
        g(f"s_waitcnt lgkmcnt({min(9, 3*(31-ks))})")
        c = "0" if ks == 0 else vr(QACC, 16)
        g(f"v_mfma_f32_32x32x16_bf16 {vr(QACC,16)}, {vr(b+4,4)}, {vr(b,4)}, {c}")
        if ks + 4 < 32: rdq(ks + 4)
    g.stamp(5)
    QA, QB = 24, 28
    g.get_nonce(vN, vZ)
    g.nop(6)
    g(f"s_mov_b32 s{sT0}, {f2u(QSCALE):#x}")
    for i in range(16):
        g(f"v_mul_f32 v{QACC+i}, s{sT0}, v{QACC+i}")
    for i in range(8):
        g(f"v_cvt_pk_bf16_f32 v{QA+i}, v{QACC+2*i}, v{QACC+2*i+1}")
    SA = [32, 48]; SB = [64, 80]; CA, CB_ = 96, 112; OA, OB = 128, 144
    KF = [160, 164]; VF = [168, 176]; vIDX, vKA, vVA = 184, 185, 186
    vPF2, vPFO = 187, 188
    g(f"""
    v_mov_b32 v{vIDX}, 0xdddddddd
    v_mov_b32 v{vKA}, v{vL16}
    v_and_b32 v{vT}, 31, v{vLANE}
    v_lshrrev_b32 v{vT1}, 5, v{vLANE}
    v_lshlrev_b32 v{vT1}, 8, v{vT1}
    v_lshl_add_u32 v{vT1}, v{vT}, 4, v{vT1}
    v_mov_b32 v{vT2}, 528
    v_mov_b32 v{vT3}, 512
    v_and_b32 v{vVA}, 0x1b, v{vT}
    v_cmp_eq_u32 vcc, 16, v{vVA}
    s_nop 1
    v_cndmask_b32 v{vT2}, v{vT2}, v{vT3}, vcc
    v_cmp_gt_u32 vcc, 16, v{vT}
    s_nop 1
    v_cndmask_b32 v{vVA}, v{vT2}, v{vT1}, vcc
    v_add_u32 v{vVA}, 1024, v{vVA}
    s_mov_b32 s{sRETRY}, 0
    v_lshrrev_b32 v{vPF2}, 2, v{vLANE}
    v_and_b32 v{vT}, 3, v{vLANE}
    v_lshlrev_b32 v{vT}, 7, v{vT}
    v_and_b32 v{vPFO}, 3, v{vPF2}
    v_lshl_add_u32 v{vPF2}, v{vPF2}, 10, v{vT}
    v_lshl_add_u32 v{vPFO}, v{vPFO}, 10, v{vT}
    s_lshr_b32 s{sT1}, s{sCB}, 2
    s_lshl_b32 s{sT1}, s{sT1}, 9
    s_mul_i32 s{sT0}, s{sIDX}, {56*1024}
    s_lshl_b32 s{sT2}, s{sW}, 14
    s_add_u32 s{sT0}, s{sT0}, s{sT2}
    s_add_u32 s{sT0}, s{sT0}, s{sT1}
    v_add_u32 v{vPF2}, s{sT0}, v{vPF2}
    s_lshl_b32 s{sT0}, s{sIDX}, 14
    s_lshl_b32 s{sT2}, s{sW}, 12
    s_add_u32 s{sT0}, s{sT0}, s{sT2}
    s_add_u32 s{sT0}, s{sT0}, s{sT1}
    v_add_u32 v{vPFO}, s{sT0}, v{vPFO}
    """)
    for i in range(16):
        g(f"v_mov_b32 v{OA+i}, 0"); g(f"v_mov_b32 v{OB+i}, 0"); g(f"v_mov_b32 v{SB[1]+i}, 0")
    for i in range(8):
        g(f"v_mov_b32 v{VF[1]+i}, 0")
    g(f"""s_lshl_b32 s{sT1}, s{sW}, 11
    s_add_u32 s{sT1}, s{sT1}, {WS_KVF}""")
    g(f"s_setprio {O('spinprio', 0)}")
    g.poll_flags(16, sT1, 8192, vT, vT1, vLANE, sleep=O("kvsleep", 2))
    g.arrive(C_GO1, vC, vONE)
    g.wait_cnt(C_GO1, 4, vC, vT, sleep=1)
    g("s_setprio 2")
    g.stamp(6)
    def kv_dma(half, sidx):
        base = half * HALF
        g(f"""s_lshl_b32 s{sT0}, s{sidx}, 12
        s_add_u32 s{sSO}, s{sT0}, {WS_KV + base}
        s_add_u32 m0, s{sT0}, {base}""")
        for gi in range(4):
            g("s_nop 0")
            for i in range(4):
                g(f"buffer_load_dwordx4 v{vL16}, {srd(S_WS)}, s{sSO} offen offset:{i*1024} sc1 lds")
            g(f"""s_add_u32 s{sSO}, s{sSO}, 16384
            s_add_u32 m0, m0, 16384""")
        l = g.lab("KD")
        g(f"""s_cmp_lg_u32 s{sidx}, 0
        s_cbranch_scc1 {l}""")
        for i in range(2):
            g(f"buffer_load_dwordx4 v{vL16}, {srd(S_WS)}, s{sSO} offen offset:{i*1024} sc1 lds")
        g(f"{l}:")
    kv_dma(0, sW)
    g("s_waitcnt vmcnt(12)")
    g.arrive(C_H1, vC, vONE)
    g.wait_cnt(C_H1, 4, vC, vT)
    g(f"s_setprio {O('aprio', 2)}")
    def qk(S, K, Q, C): g(f"v_mfma_f32_32x32x16_bf16 {vr(S,16)}, {vr(K,4)}, {vr(Q,4)}, {C}")
    def pv(O_, V, P): g(f"v_smfmac_f32_32x32x32_bf16 {vr(O_,16)}, {vr(V,4)}, {vr(P,8)}, v{vIDX}")
    def max16(S, d):
        g(f"v_max3_f32 v{d}, v{S}, v{S+1}, v{S+2}")
        for i in range(3, 15, 2):
            g(f"v_max3_f32 v{d}, v{d}, v{S+i}, v{S+i+1}")
        g(f"v_max_f32 v{d}, v{d}, v{S+15}")
    def xhalf_max(d, t):
        g(f"""v_mov_b32 v{t}, v{d}
        s_nop 1
        v_permlane32_swap_b32 v{d}, v{t}
        s_nop 1
        v_max_f32 v{d}, v{d}, v{t}""")
    g(f"""ds_read_b128 {vr(KF[0],4)}, v{vKA}
    s_waitcnt lgkmcnt(0)""")
    qk(SA[0], KF[0], QA, "0"); qk(SB[0], KF[0], QB, "0")
    g.nop(11)
    max16(SA[0], vT); max16(SB[0], vT1)
    xhalf_max(vT, vT2); xhalf_max(vT1, vT2)
    g(f"""v_add_f32 v{vT}, {f2u(FOFF):#x}, v{vT}
    v_add_f32 v{vT1}, {f2u(FOFF):#x}, v{vT1}
    L_ATT_START:""")
    for i in range(16):
        g(f"v_sub_f32 v{CA+i}, 0, v{vT}")
    g(f"s_mov_b32 s{sIT}, s{sRETRY}")
    g("s_nop 0")
    qk(SA[0], KF[0], QA, vr(CA, 16))
    for i in range(16):
        g(f"v_sub_f32 v{CB_+i}, 0, v{vT1}")
    g.stamp(7); g.stamp(12, True)
    g("s_nop 1")
    g(".p2align 6")
    g("L_ATT:")
    UN = 16
    def exps(S, lo, hi, first64=False):
        for i in range(lo, hi):
            g(f"v_exp_f32{'_e64' if (first64 and i == lo) else ''} v{S+i}, v{S+i}")
    def side(it, fn):
        l = g.lab("SB"); r = g.lab("SR")
        g(f"""s_cmp_eq_u32 s{sIT}, {it}
        s_cbranch_scc1 {l}
        {r}:""")
        main = g.L; g.L = g.tail
        g(f"{l}:"); fn(); g(f"s_branch {r}")
        g.L = main
    def blk_h1b():
        g("s_waitcnt vmcnt(0)")
        g.arrive(C_H1B, vC, vONE)
        if O("pf2", 1):
            g(f"""buffer_load_dword v{vDUM}, v{vPF2}, {srd(S_W2)}, 0 offen
            buffer_load_dword v{vDUM}, v{vPFO}, {srd(S_WO)}, 0 offen""")
    for t in range(UN):
        p = t % 2
        if t == 3: side(0, blk_h1b)
        if t == 7: side(0, lambda: g.wait_cnt(C_H1B, 4, vC, vT))
        if t == UN - 1: side(1, lambda: g.wait_cnt(C_H2, 4, vC, vT))
        qk(SB[p], KF[p], QB, vr(CB_, 16))
        exps(SA[p], 0, 2)
        g(f"ds_read_b128 {vr(KF[1-p],4)}, v{vKA} offset:{(t+1)*REC}")
        g(f"ds_read_b128 {vr(VF[p],4)}, v{vVA} offset:{t*REC}")
        g(f"ds_read_b128 {vr(VF[p]+4,4)}, v{vVA} offset:{t*REC+544}")
        exps(SA[p], 2, 4)
        pv(OB, VF[1-p], SB[1-p])
        exps(SA[p], 4, 10)
        pv(OB, VF[1-p] + 4, SB[1-p] + 8)
        exps(SA[p], 10, 15)
        g("s_waitcnt lgkmcnt(0)")
        exps(SA[p], 15, 16, True)
        qk(SA[1-p], KF[1-p], QA, vr(CA, 16))
        exps(SB[p], 0, 4)
        pv(OA, VF[p], SA[p])
        exps(SB[p], 4, 10)
        pv(OA, VF[p] + 4, SA[p] + 8)
        exps(SB[p], 10, 16)
    g(f"""v_add_u32 v{vKA}, {UN*REC}, v{vKA}
    v_add_u32 v{vVA}, {UN*REC}, v{vVA}
    s_add_u32 s{sIT}, s{sIT}, 1
    s_bitcmp0_b32 s{sIT}, 2
    s_cbranch_scc1 L_ATT""")
    pv(OB, VF[1], SB[1]); pv(OB, VF[1] + 4, SB[1] + 8)
    g.stamp(8); g.stamp(13, True)
    g(f"""s_setprio 2
    v_mov_b32 v{vT2}, {f2u(2.0**110):#x}
    v_fma_f32 v{vT}, v{OA}, 0, v{OA+8}""")
    for i in range(1, 8):
        g(f"v_fma_f32 v{vT}, v{OA+i}, 0, v{vT}")
    g(f"""v_rcp_f32 v{vT3}, v{OA+8}
    s_lshl_b32 s{sT0}, s{sCB}, 13
    s_lshr_b32 s{sT1}, s{sW}, 1
    s_lshl_b32 s{sT1}, s{sT1}, 12
    s_add_u32 s{sT0}, s{sT0}, s{sT1}
    s_and_b32 s{sT1}, s{sW}, 1
    s_lshl_b32 s{sT1}, s{sT1}, 10
    s_add_u32 s{sT0}, s{sT0}, s{sT1}
    s_add_u32 s{sT0}, s{sT0}, s{sHO}
    s_add_u32 s{sSO}, s{sT0}, {112*2048}
    v_fma_f32 v{vT1}, v{OB}, 0, v{OB+8}""")
    for i in range(1, 8):
        g(f"v_fma_f32 v{vT1}, v{OB+i}, 0, v{vT1}")
    g(f"""v_cmp_nlt_f32 vcc, v{vT}, v{vT2}
    v_cmp_nlt_f32 s[{sM}:{sM+1}], v{vT1}, v{vT2}
    v_rcp_f32 v{vT1}, v{OB+8}
    s_nop 0
    s_or_b64 vcc, vcc, s[{sM}:{sM+1}]
    s_cmp_lg_u64 vcc, 0
    s_cbranch_scc1 L_FALLBACK
    L_ATT_OK:""")
    main = g.L; g.L = g.tail
    g(f"""L_FALLBACK:
    s_cmp_lg_u32 s{sRETRY}, 0
    s_cbranch_scc1 L_ATT_OK
    s_mov_b32 s{sRETRY}, 16
    v_subrev_u32 v{vKA}, {64*REC}, v{vKA}
    v_subrev_u32 v{vVA}, {64*REC}, v{vVA}
    v_mov_b32 v{vT3}, v{vKA}
    v_mov_b32 v{vT}, 0xff800000
    v_mov_b32 v{vT1}, 0xff800000
    s_mov_b32 s{sIT}, 0
    L_MAXP:
    ds_read_b128 {vr(KF[0],4)}, v{vT3}
    v_add_u32 v{vT3}, {REC}, v{vT3}
    s_waitcnt lgkmcnt(0)""")
    qk(SA[0], KF[0], QA, "0"); qk(SB[0], KF[0], QB, "0")
    g.nop(12)
    for i in range(0, 16, 2):
        g(f"v_max3_f32 v{vT}, v{vT}, v{SA[0]+i}, v{SA[0]+i+1}")
    for i in range(0, 16, 2):
        g(f"v_max3_f32 v{vT1}, v{vT1}, v{SB[0]+i}, v{SB[0]+i+1}")
    g(f"""s_add_u32 s{sIT}, s{sIT}, 1
    s_cmp_lt_u32 s{sIT}, 64
    s_cbranch_scc1 L_MAXP
    ds_read_b128 {vr(KF[0],4)}, v{vKA}""")
    xhalf_max(vT, vT2); xhalf_max(vT1, vT2)
    for i in range(16):
        g(f"v_mov_b32 v{OA+i}, 0"); g(f"v_mov_b32 v{OB+i}, 0"); g(f"v_mov_b32 v{SB[1]+i}, 0")
    for i in range(8):
        g(f"v_mov_b32 v{VF[1]+i}, 0")
    g(f"""s_waitcnt lgkmcnt(0)
    s_branch L_ATT_START""")
    g.L = main
    for i in range(8):
        g(f"v_mul_f32 v{OA+i}, v{OA+i}, v{vT3}")
    for i in range(4):
        g(f"v_cvt_pk_bf16_f32 v{32+i}, v{OA+2*i}, v{OA+2*i+1}")
    g(f"buffer_store_dwordx4 v[32:35], v{vL16}, {srd(S_WS)}, s{sSO} offen sc1")
    for i in range(8):
        g(f"v_mul_f32 v{OB+i}, v{OB+i}, v{vT1}")
    for i in range(4):
        g(f"v_cvt_pk_bf16_f32 v{36+i}, v{OB+2*i}, v{OB+2*i+1}")
    g(f"""buffer_store_dwordx4 v[36:39], v{vL16}, {srd(S_WS)}, s{sSO} offen offset:2048 sc1
    s_lshl_b32 s{sT0}, s{sW}, 7
    s_add_u32 s{sT0}, s{sT0}, s{sFL}
    s_add_u32 s{sT0}, s{sT0}, {WS_OF}""")
    g.arrive(C_ADONE, vC, vONE)
    g("s_waitcnt vmcnt(0)")
    g.publish(sT0, 12, vN, vT, vLANE)
    g(f"""buffer_load_dwordx4 {vr(vXR,4)}, v{vXO}, {srd(S_X)}, 0 offen""")
    g.stamp(9)
    g("""s_barrier
    s_branch L_FINAL""")

    g(f"""
    L_G_PRE:
    s_setprio {O('gprio', 0)}""")
    g(f"""
    s_cmp_eq_u32 s{sPR}, 0
    s_cbranch_scc1 L_G_KV""")
    for s_ in range(3): fill(s_, S_W1)
    g(f"""s_branch L_G_G1
    L_G_KV:
    s_setprio 3
    v_and_b32 v25, 15, v{vLANE}
    v_lshrrev_b32 v26, 4, v{vLANE}
    s_mul_i32 s{sT0}, s{sJ}, {16*XP}
    s_add_u32 s{sT0}, s{sT0}, {R2}
    v_mul_u32_u24 v{vXF}, {XP}, v25
    v_lshl_add_u32 v{vXF}, v26, 4, v{vXF}
    v_add_u32 v{vXF}, s{sT0}, v{vXF}
    v_lshlrev_b32 v{vWF}, 8, v26
    v_lshl_add_u32 v{vWF}, v25, 3, v{vWF}
    v_add_u32 v{vWF}, {R3}, v{vWF}
    s_lshl_b32 s{sT0}, s{sRB}, 1
    s_lshr_b32 s{sT1}, s{sJ}, 1
    s_add_u32 s{sT0}, s{sT0}, s{sT1}
    s_mul_i32 s{sT2}, s{sT0}, {REC}
    s_and_b32 s{sT1}, s{sJ}, 1
    """)
    def kv_chain(isK):
        FB = 32; ACC = 128; NS = 5
        def rd(ks):
            b = FB + 8 * (ks % NS)
            g(f"ds_read_b128 {vr(b,4)}, v{vXF} offset:{ks*64}")
            g(f"ds_read_b64_tr_b16 {vr(b+4,2)}, v{vWF} offset:{ks*1024}")
            g(f"ds_read_b64_tr_b16 {vr(b+6,2)}, v{vWF} offset:{ks*1024+128}")
        for ks in range(4): rd(ks)
        for ks in range(16):
            b = FB + 8 * (ks % NS)
            g(f"s_waitcnt lgkmcnt({min(9, 3*(15-ks))})")
            c = "0" if ks == 0 else vr(ACC, 4)
            if isK: g(f"v_mfma_f32_16x16x32_bf16 {vr(ACC,4)}, {vr(b+4,4)}, {vr(b,4)}, {c}")
            else:   g(f"v_mfma_f32_16x16x32_bf16 {vr(ACC,4)}, {vr(b,4)}, {vr(b+4,4)}, {c}")
            if ks + 4 < 16: rd(ks + 4)
    g(f"""s_cmp_lg_u32 s{sCB}, 0
    s_cbranch_scc1 L_V""")
    kv_chain(True)
    g(f"""
    v_and_b32 v27, 1, v26
    v_lshlrev_b32 v27, 9, v27
    v_lshl_add_u32 v27, v25, 4, v27
    v_lshrrev_b32 v28, 1, v26
    v_lshl_add_u32 v27, v28, 3, v27
    s_lshl_b32 s{sT1}, s{sT1}, 8
    s_add_u32 s{sT2}, s{sT2}, s{sT1}
    s_branch L_KVS
    L_V:""")
    kv_chain(False)
    g(f"""
    v_lshrrev_b32 v27, 1, v26
    v_lshlrev_b32 v27, 8, v27
    v_lshl_add_u32 v27, v25, 4, v27
    v_and_b32 v28, 1, v26
    v_lshl_add_u32 v27, v28, 3, v27
    s_mul_i32 s{sT1}, s{sT1}, 544
    s_add_u32 s{sT2}, s{sT2}, s{sT1}
    s_add_u32 s{sT2}, s{sT2}, 1024
    v_lshlrev_b32 v28, 3, v{vLANE}
    v_mov_b32 v30, 0x3f803f80
    v_cmp_gt_u32 vcc, 2, v{vLANE}
    s_nop 1
    v_cndmask_b32 v30, 0, v30, vcc
    v_mov_b32 v31, v30
    s_mov_b64 exec, 0xf
    buffer_store_dwordx2 v[30:31], v28, {srd(S_WS)}, s{sT2} offen offset:512 sc1
    s_mov_b64 exec, -1
    L_KVS:
    s_nop 2
    v_cvt_pk_bf16_f32 v132, v128, v129
    v_cvt_pk_bf16_f32 v133, v130, v131
    buffer_store_dwordx2 v[132:133], v27, {srd(S_WS)}, s{sT2} offen sc1""")
    g.arrive(C_KVDONE, vC, vONE)
    g.stamp(11)
    g("s_waitcnt vmcnt(0)")
    g(f"""s_mov_b64 exec, 1
    ds_add_rtn_u32 v{vT}, v{vC}, v{vONE} offset:{C_KVST}
    s_mov_b64 exec, -1""")
    g.get_nonce(vN, vZ)
    g(f"""s_lshl_b32 s{sT1}, s{sRB}, 8
    s_lshl_b32 s{sT2}, s{sCB}, 5
    s_add_u32 s{sT1}, s{sT1}, s{sT2}
    s_add_u32 s{sT1}, s{sT1}, {WS_KVF}
    s_waitcnt lgkmcnt(0)
    v_readfirstlane_b32 s{sT0}, v{vT}
    s_setprio {O('gprio', 0)}
    s_nop 2
    s_cmp_lg_u32 s{sT0}, 3
    s_cbranch_scc1 L_G_NF""")
    g.publish(sT1, 13, vN, vT, vLANE)
    g("L_G_NF:")
    g.stamp(10)
    g.wait_cnt(C_KVDONE, 4, vC, vT)
    for s_ in range(3): fill(s_, S_W1)
    g("L_G_G1:")
    g.stamp(5)
    ACC = 128
    g(f"""
    v_and_b32 v25, 31, v{vLANE}
    v_mul_u32_u24 v{vXF}, {XP}, v25
    v_lshl_add_u32 v{vXF}, v24, 4, v{vXF}
    v_add_u32 v{vXF}, {R2}, v{vXF}
    s_cmp_eq_u32 s{sJ}, 3
    s_cbranch_scc1 L_G1_N
    v_lshl_add_u32 v{vWF}, v24, 10, v23
    v_add_u32 v{vWF}, s{sRG}, v{vWF}
    """)
    def mf(D, A, B, first): g(f"v_mfma_f32_32x32x16_bf16 {vr(D,16)}, {vr(A,4)}, {vr(B,4)}, {'0' if first else vr(D,16)}")
    FS = [32, 48]
    def rd_w(ks):
        b = FS[ks % 2]; sl = (ks % 3) * 2048
        g(f"ds_read_b128 {vr(b,4)}, v{vXF} offset:{ks*32}")
        g(f"ds_read_b128 {vr(b+4,4)}, v{vXF} offset:{32*XP+ks*32}")
        for mt in range(2):
            for i in range(2):
                g(f"ds_read_b64_tr_b16 {vr(b+8+4*mt+2*i,2)}, v{vWF} offset:{sl+mt*256+i*512}")
    g("s_waitcnt vmcnt(4)")
    rd_w(0)
    g("s_waitcnt lgkmcnt(0)")
    fill(0, S_W1)
    for ks in range(32):
        b = FS[ks % 2]
        if ks + 1 < 32:
            g(f"s_waitcnt vmcnt({min(4, 2*(31-(ks+1)))})")
            rd_w(ks + 1)
        for mt in range(2):
            for nt in range(2):
                mf(ACC + 32*mt + 16*nt, b + 8 + 4*mt, b + 4*nt, ks == 0)
        if ks + 1 < 32:
            g("s_waitcnt lgkmcnt(0)")
            if ks + 4 < 32: fill((ks + 1) % 3, S_W1)
    g.arrive(C_G1, vC, vONE)
    def h_store(mt, sM_):
        for nt in range(2):
            a = ACC + 32*mt + 16*nt; o = 64 + 8 * (2*mt + nt)
            for i in range(8):
                g(f"v_cvt_pk_bf16_f32 v{o+i}, v{a+2*i}, v{a+2*i+1}")
            for i in range(8):
                g(f"v_pk_max_i16 v{o+i}, v{o+i}, 0")
            g(f"buffer_store_dwordx4 {vr(o,4)}, v{vL16}, {srd(S_WS)}, s{sM_} offen offset:{nt*1024} sc1")
            g(f"buffer_store_dwordx4 {vr(o+4,4)}, v{vL16}, {srd(S_WS)}, s{sM_} offen offset:{2048+nt*1024} sc1")
    g(f"""s_mul_i32 s{sT0}, s{sCB}, 7
    s_lshl_b32 s{sT1}, s{sJ}, 1
    s_add_u32 s{sT0}, s{sT0}, s{sT1}
    s_lshl_b32 s{sT0}, s{sT0}, 12
    s_add_u32 s{sT1}, s{sT0}, s{sHO}
    s_add_u32 s{sT2}, s{sT1}, 4096""")
    g.nop(8)
    h_store(0, sT1); h_store(1, sT2)
    g("s_branch L_G1_DONE")
    g(f"""L_G1_N:
    v_lshl_add_u32 v{vWF}, v24, 9, v23
    v_add_u32 v{vWF}, s{sRG}, v{vWF}""")
    FN = [32, 56]
    def rd_n(sl_):
        b = FN[sl_ % 2]; so = (sl_ % 3) * 2048
        for sub in range(2):
            ks = 2 * sl_ + sub; bb = b + 12 * sub
            g(f"ds_read_b128 {vr(bb,4)}, v{vXF} offset:{ks*32}")
            g(f"ds_read_b128 {vr(bb+4,4)}, v{vXF} offset:{32*XP+ks*32}")
            for i in range(2):
                g(f"ds_read_b64_tr_b16 {vr(bb+8+2*i,2)}, v{vWF} offset:{so+sub*1024+i*256}")
    g("s_waitcnt vmcnt(4)")
    rd_n(0)
    g("s_waitcnt lgkmcnt(0)")
    fill(0, S_W1)
    for sl_ in range(16):
        b = FN[sl_ % 2]
        if sl_ + 1 < 16:
            g(f"s_waitcnt vmcnt({min(4, 2*(15-(sl_+1)))})")
            rd_n(sl_ + 1)
        for sub in range(2):
            for nt in range(2):
                mf(ACC + 16*nt, b + 12*sub + 8, b + 12*sub + 4*nt, sl_ == 0 and sub == 0)
        if sl_ + 1 < 16:
            g("s_waitcnt lgkmcnt(0)")
            if sl_ + 4 < 16: fill((sl_ + 1) % 3, S_W1)
    g.arrive(C_G1, vC, vONE)
    g(f"""s_mul_i32 s{sT0}, s{sCB}, 7
    s_add_u32 s{sT0}, s{sT0}, 6
    s_lshl_b32 s{sT0}, s{sT0}, 12
    s_add_u32 s{sT1}, s{sT0}, s{sHO}""")
    g.nop(8)
    h_store(0, sT1)
    g("L_G1_DONE:")
    g.stamp(6)
    NK2 = 28
    g(f"""v_lshl_add_u32 v{vDA}, v20, 10, v21
    v_add_u32 v{vDB}, {8*1024-1024}, v{vDA}
    s_mov_b32 s{sSTEP}, 16384
    v_lshl_add_u32 v{vWF}, v24, 9, v23
    v_add_u32 v{vWF}, s{sRG}, v{vWF}""")
    g.get_nonce(vN, vZ)
    g(f"""s_lshl_b32 s{sT1}, s{sJ}, 7
    s_add_u32 s{sT1}, s{sT1}, s{sFL}
    s_add_u32 s{sT1}, s{sT1}, {WS_HF}
    s_waitcnt vmcnt(0)""")
    g.publish(sT1, 12, vN, vT, vLANE)
    g.wait_cnt(C_GO1, 4, vC, vT, sleep=2)
    g.wait_cnt(C_G1, 4, vC, vT, sleep=2)
    kv_dma(1, sJ)
    g(f"""s_mul_i32 s{sSO}, s{sJ}, {NK2*16384}
    s_lshl_b32 s{sT0}, s{sCB}, 7
    s_add_u32 s{sSO}, s{sSO}, s{sT0}""")
    for s_ in range(3): fill(s_, S_W2)
    g("s_waitcnt vmcnt(6)")
    g.arrive(C_H2, vC, vONE)
    g.stamp(7)
    if O("gidle", 0): g("s_branch L_G_SKIP")
    g(f"""s_lshl_b32 s{sT1}, s{sRB}, 16
    s_lshl_b32 s{sT0}, s{sJ}, 10
    s_add_u32 s{sT1}, s{sT1}, s{sT0}
    s_add_u32 s{sT1}, s{sT1}, {WS_HF}""")
    g.poll_flags(8, sT1, 4096, vT, vT1, vLANE, sleep=8)
    g("s_waitcnt vmcnt(0)")
    g.stamp(8)
    NH = O("nh", 4)
    HB = [64 + 8*i for i in range(NH)]
    WB = [32, 40]
    WO = 192
    sHS = sIT
    g(f"""s_mul_i32 s{sHS}, s{sJ}, {NK2*2048}
    s_add_u32 s{sHS}, s{sHS}, s{sHO}""")
    def ldh(ks):
        b = HB[ks % NH]
        g(f"buffer_load_dwordx4 {vr(b,4)}, v{vL16}, {srd(S_WS)}, s{sHS} offen sc1")
        g(f"buffer_load_dwordx4 {vr(b+4,4)}, v{vL16}, {srd(S_WS)}, s{sHS} offen offset:1024 sc1")
        g(f"s_add_u32 s{sHS}, s{sHS}, 2048")
    def rd2(ks):
        b = WB[ks % 2] if ks < NK2 else WO + 8 * (ks - NK2); sl = (ks % 3) * 2048
        for mt in range(2):
            for i in range(2):
                g(f"ds_read_b64_tr_b16 {vr(b+4*mt+2*i,2)}, v{vWF} offset:{sl+mt*256+i*1024}")
    def fill2(ks):
        if ks == NK2:
            g(f"""s_lshl_b32 s{sSO}, s{sJ}, 17
            s_lshl_b32 s{sT0}, s{sCB}, 7
            s_add_u32 s{sSO}, s{sSO}, s{sT0}""")
        fill(ks % 3, S_W2 if ks < NK2 else S_WO)
    NT = NK2 + 8
    order = []
    def issued(tag, n): order.extend([tag] * n)
    def wait_for(tags):
        last = max(i for i, t in enumerate(order) if t in tags)
        g(f"s_waitcnt vmcnt({len(order) - 1 - last})")
    for ks in range(NH - 1):
        ldh(ks); issued(("h", ks), 2)
    rd2(0)
    g("s_waitcnt lgkmcnt(0)")
    fill2(3); issued(("w", 3), 2)
    for ks in range(NT):
        if ks + 1 < NT:
            if ks + 1 >= 3: wait_for([("w", ks + 1)])
            rd2(ks + 1)
        if ks < NK2:
            if ks + NH - 1 < NK2:
                ldh(ks + NH - 1); issued(("h", ks + NH - 1), 2)
            wait_for([("h", ks)])
            b = WB[ks % 2]; hb_ = HB[ks % NH]
            for mt in range(2):
                for nt in range(2):
                    mf(ACC + 32*mt + 16*nt, b + 4*mt, hb_ + 4*nt, ks == 0)
        if ks + 1 < NT:
            g("s_waitcnt lgkmcnt(0)")
            if ks + 4 < NT:
                fill2(ks + 4); issued(("w", ks + 4), 2)
    g(f"buffer_load_dwordx4 {vr(vXR,4)}, v{vXO}, {srd(S_X)}, 0 offen")
    g.stamp(9)
    g(f"""L_G_SKIP:
    s_lshl_b32 s{sT1}, s{sJ}, 10
    s_lshl_b32 s{sT0}, s{sRB}, 16
    s_add_u32 s{sT1}, s{sT1}, s{sT0}
    s_add_u32 s{sT1}, s{sT1}, {WS_OF}
    s_lshl_b32 s{sT2}, s{sJ}, 14
    s_add_u32 s{sT2}, s{sT2}, s{sHO}
    s_add_u32 s{sT2}, s{sT2}, {112*2048}
    v_and_b32 v25, 31, v{vLANE}
    v_mul_u32_u24 v25, {PP}, v25
    v_lshl_add_u32 v25, v24, 4, v25
    s_mul_i32 s{sT0}, s{sJ}, {PIMG}
    v_add_u32 v25, s{sT0}, v25""")
    g.wait_cnt(C_ADONE, O("adone", 1), vC, vT, sleep=4)
    g("s_setprio 3")
    g.poll_flags(8, sT1, 4096, vT, vT1, vLANE, sleep=O("osleep", 1))
    g.stamp(12)
    OF = 32
    for i in range(8):
        if i and i % 2 == 0: g(f"s_add_u32 s{sT2}, s{sT2}, 4096")
        for nt in range(2):
            g(f"buffer_load_dwordx4 {vr(OF+8*i+4*nt,4)}, v{vL16}, {srd(S_WS)}, s{sT2} offen offset:{(i%2)*2048+nt*1024} sc1")
    for i in range(8):
        g(f"s_waitcnt vmcnt({14-2*i})")
        for mt in range(2):
            for nt in range(2):
                mf(ACC + 32*mt + 16*nt, WO + 8*i + 4*mt, OF + 8*i + 4*nt, False)
    g.stamp(13)
    g("s_barrier")
    g.nop(8)
    for mt in range(2):
        for nt in range(2):
            for q in range(4):
                g(f"ds_write_b128 v25, {vr(ACC+32*mt+16*nt+4*q,4)} offset:{nt*32*PP + mt*128 + q*32}")
    g("s_waitcnt lgkmcnt(0)")
    g(f"""L_FINAL:
    v_lshrrev_b32 v{vT}, 3, v0
    v_and_b32 v{vT1}, 7, v0
    v_mul_u32_u24 v{vT}, {PP}, v{vT}
    v_lshl_add_u32 v{vT}, v{vT1}, 5, v{vT}
    s_barrier""")
    for j in range(4):
        g(f"ds_read_b128 {vr(32+8*j,4)}, v{vT} offset:{j*PIMG}")
        g(f"ds_read_b128 {vr(36+8*j,4)}, v{vT} offset:{j*PIMG+16}")
    g("s_waitcnt vmcnt(0)")
    for d in range(4):
        g(f"v_lshlrev_b32 v{64+2*d}, 16, v{vXR+d}")
        g(f"v_and_b32 v{65+2*d}, 0xffff0000, v{vXR+d}")
    for j in range(4):
        g(f"s_waitcnt lgkmcnt({6-2*j})")
        for d in range(4):
            g(f"v_pk_add_f32 {vr(64+2*d,2)}, {vr(64+2*d,2)}, {vr(32+8*j+2*d,2)}")
    for d in range(4):
        g(f"v_cvt_pk_bf16_f32 v{72+d}, v{64+2*d}, v{65+2*d}")
    g(f"buffer_store_dwordx4 v[72:75], v{vXO}, {srd(S_OUT)}, 0 offen")
    if debug:
        g.stamp(14)
        g(f"""s_waitcnt vmcnt(0)""")
        g.stamp(15)
        g(f"""s_waitcnt lgkmcnt(0)
        s_lshl_b32 s{sT0}, s2, 3
        s_add_u32 s{sT0}, s{sT0}, s{sW}
        s_lshl_b32 s{sT0}, s{sT0}, 7
        s_add_u32 s{sT0}, s{sT0}, {WS_DBG}
        v_mov_b32 v{vT}, 0""")
        for i in range(16):
            g(f"v_writelane_b32 v{vT}, s{sSTAMP+2*i}, {i}")
        g(f"v_writelane_b32 v{vT}, s{sRETRY}, 16")
        g(f"v_writelane_b32 v{vT}, s{sRB}, 17")
        g(f"v_writelane_b32 v{vT}, s{sCB}, 18")
        g(f"""v_lshlrev_b32 v{vT1}, 2, v{vLANE}
        s_mov_b32 exec_hi, 0
        buffer_store_dword v{vT}, v{vT1}, {srd(S_WS)}, s{sT0} offen""")
        if O("dbgmax", 0):
            g(f"""s_load_dwordx2 s[{S_DBG}:{S_DBG+1}], s[0:1], 72
            s_mov_b32 s{S_DBG+2}, 256
            s_mov_b32 s{S_DBG+3}, 0x20000
            v_subrev_u32 v{vT}, s{sN}, v{vT}
            s_waitcnt lgkmcnt(0)
            s_cmp_lg_u32 s{sW}, {O("dbgmax", 0) - 1}
            s_cbranch_scc1 L_END
            s_mov_b64 exec, 0xfffe
            buffer_atomic_smax v{vT}, v{vT1}, {srd(S_DBG)}, 0 offen""")
    g("L_END:")
    g("s_endpgm")
    g.L += g.tail
    g("L_CODE_END:")

    ref = open(f"cdna_kernels/{NAME}.s.ref").read().split("\n")
    hdr = [l for l in ref if l.startswith(";") and "@launch" not in l]
    out = hdr + [f"; @launch grid=(256,1,1) block=(512,1,1) lds={LDS_BYTES}",
                 '.amdgcn_target "amdgcn-amd-amdhsa--gfx950"', ".text", f".globl {NAME}_kernel", ".p2align 8",
                 f".type {NAME}_kernel,@function", f"{NAME}_kernel:"] + g.L + [
        '.section .rodata,"a"', ".p2align 6", f".amdhsa_kernel {NAME}_kernel",
        "  .amdhsa_next_free_vgpr 256", "  .amdhsa_next_free_sgpr 102", "  .amdhsa_accum_offset 256",
        "  .amdhsa_group_segment_fixed_size 0", "  .amdhsa_kernarg_size 88", "  .amdhsa_user_sgpr_count 2",
        "  .amdhsa_user_sgpr_kernarg_segment_ptr 1", "  .amdhsa_system_sgpr_workgroup_id_x 1", ".end_amdhsa_kernel", ""]
    return "\n".join(out)


if __name__ == "__main__":
    ap = argparse.ArgumentParser()
    ap.add_argument("-o", default=f"cdna_kernels/{NAME}.s")
    ap.add_argument("--debug", action="store_true")
    ap.add_argument("opts", nargs="*")
    a = ap.parse_args()
    opt = {k: int(v) for k, v in (o.split("=") for o in a.opts)}
    open(a.o, "w").write(gen(a.debug, opt))
```

```python
import sys, argparse, struct

NAME = "parallel_sum__grouped_kv_mqa__dense_activation_relu__prompt"

REC = 2112
HALF = 32 * REC
R1, R2, R3 = 0, HALF, 2 * HALF
RING = 6144
CNT = R3 + 4 * RING
C_KVDONE, C_KVST, C_QD, C_H1, C_G1, C_H2, C_WQ, C_H1B, C_ADONE, C_H1C, C_PUB, C_XN, C_WQI, C_WQ2 = 0, 4, 8, 12, 16, 20, 24, 28, 32, 36, 40, 44, 48, 52
LDS_BYTES = 163840
XP = 1040
PP = 272
PIMG = 64 * PP
WS_KV = 0
WS_KVF = 0x40000
WS_HF = 0xC00000
WS_OF = 0xE00000
WS_HO = 0x80000
HO_RB = 144 * 2048
WS_DBG = 0xA00000
WS_BYTES = 0x1000000
FOFF = 80.0
QSCALE = 0.25 * 1.4426950408889634
SPIN = 1 << 15

def f2u(x): return struct.unpack("<I", struct.pack("<f", x))[0]

S_X, S_OUT, S_WS, S_WO, S_W2, S_WQ, S_WKV, S_W1, S_DBG = 4, 8, 12, 16, 20, 24, 28, 32, 36
sW, sRB, sCB = 40, 41, 42
sT0, sT1, sT2, sT3 = 43, 44, 45, 46
sSPIN = 47
sSO = 48
sSTEP = 49
sIT = 50
sHO = 51
sFL = 52
sRETRY = 53
sM = 54
sJ = 56
sPC = 58
sSTAMP = 64
sIDX = 96
sKVO = 3
sOO = 59
sMT = 57
sPR = 97
sTM = 98
sN = 100
POLL = 24
NREP = 16

def srd(b): return f"s[{b}:{b+3}]"
def vr(b, n=1): return f"v{b}" if n == 1 else f"v[{b}:{b+n-1}]"


class G:
    def __init__(self, debug):
        self.L = []
        self.tail = []
        self.debug = debug
        self.nlab = 0

    def __call__(self, s):
        for line in s.split("\n"):
            line = line.strip()
            if line:
                self.L.append(line if line.endswith(":") else "    " + line)

    def lab(self, p="L"):
        self.nlab += 1
        return f"{p}_{self.nlab}"

    def stamp(self, i, cyc=False):
        if self.debug:
            self(f"{'s_memtime' if cyc else 's_memrealtime'} s[{sSTAMP+2*i}:{sSTAMP+2*i+1}]")

    def nop(self, n):
        while n > 0:
            k = min(n, 16)
            self(f"s_nop {k-1}")
            n -= k

    def arrive(self, c, vC, vONE):
        self(f"""s_mov_b64 exec, 1
        ds_add_u32 v{vC}, v{vONE} offset:{c}
        s_mov_b64 exec, -1""")

    def wait_cnt(self, c, target, vC, vT, sleep=0):
        l = self.lab("WC"); d = self.lab("WD")
        self(f"""s_mov_b32 s{sSPIN}, {SPIN}
        {l}:
        ds_read_b32 v{vT}, v{vC} offset:{c}
        s_waitcnt lgkmcnt(0)
        v_readfirstlane_b32 s{sT0}, v{vT}
        s_sub_u32 s{sSPIN}, s{sSPIN}, 1
        s_cbranch_scc1 {d}
        s_cmp_ge_u32 s{sT0}, {target}
        s_cbranch_scc1 {d}""")
        if sleep: self(f"s_sleep {sleep}")
        self(f"""s_branch {l}
        {d}:""")

    def poll_issue(self, n, soff, stride):
        for i in range(n):
            self(f"s_buffer_load_dword s{POLL+i}, {srd(S_WS)}, s{soff} offset:{128*i}")
        self(f"s_add_u32 s{soff}, s{soff}, {stride}")

    def poll_flags(self, n, soff, stride, vT, vT1, vLANE, sleep=1, issued=False):
        l = self.lab("PF"); d = self.lab("PD"); v = self.lab("PV"); c = self.lab("PC")
        self(f"s_mov_b32 s{sSPIN}, {NREP-2}")
        if issued: self(f"s_branch {c}")
        self(f"{l}:")
        self.poll_issue(n, soff, stride)
        self(f"""{c}:
        s_waitcnt lgkmcnt(0)
        s_xor_b64 s[{sM}:{sM+1}], s[{POLL}:{POLL+1}], s[{sN}:{sN+1}]""")
        for p in range(POLL + 2, POLL + n, 2):
            self(f"""s_xor_b64 s[{p}:{p+1}], s[{p}:{p+1}], s[{sN}:{sN+1}]
            s_or_b64 s[{sM}:{sM+1}], s[{sM}:{sM+1}], s[{p}:{p+1}]""")
        self(f"s_cbranch_scc0 {d}")
        if sleep: self(f"s_sleep {sleep}")
        self(f"""s_sub_u32 s{sSPIN}, s{sSPIN}, 1
        s_cbranch_scc0 {l}
        v_min_u32 v{vT1}, {n-1}, v{vLANE}
        v_lshlrev_b32 v{vT1}, 7, v{vT1}
        s_mov_b32 s{sSPIN}, {SPIN}
        {v}:
        buffer_load_dword v{vT}, v{vT1}, {srd(S_WS)}, s{soff} offen sc1
        s_waitcnt vmcnt(0)
        v_cmp_eq_u32 vcc, s{sN}, v{vT}
        s_sub_u32 s{sSPIN}, s{sSPIN}, 1
        s_cbranch_scc1 {d}
        s_cmp_eq_u64 vcc, -1
        s_cbranch_scc1 {d}
        s_sleep 4
        s_branch {v}
        {d}:""")

    def publish(self, soff, shift, vN, vT, vLANE):
        self(f"""v_lshlrev_b32 v{vT}, {shift}, v{vLANE}
        s_mov_b64 exec, {(1 << NREP) - 1}
        buffer_store_dword v{vN}, v{vT}, {srd(S_WS)}, s{soff} offen sc1
        s_mov_b64 exec, -1""")

    def get_nonce(self, vN, vZ):
        l = self.lab("GN"); d = self.lab("GD")
        self(f"""s_mov_b32 s{sSPIN}, {SPIN}
        {l}:
        v_readfirstlane_b32 s{sN}, v{vN}
        s_sub_u32 s{sSPIN}, s{sSPIN}, 1
        s_cbranch_scc1 {d}
        s_cmp_lg_u32 s{sN}, 0
        s_cbranch_scc1 {d}
        buffer_load_dword v{vN}, v{vZ}, {srd(S_DBG)}, 0 offen sc1
        s_waitcnt vmcnt(0)
        s_branch {l}
        {d}:
        s_mov_b32 s{sN+1}, s{sN}""")


def gen(debug=False, opt=None):
    opt = opt or {}
    O = lambda k, d: opt.get(k, d)
    FOFF = float(O('foff', 80))
    g = G(debug)
    vLANE, vC, vONE, vT, vT1, vT2, vT3 = 1, 2, 3, 4, 5, 6, 7
    vL16 = 8
    vDA, vDB = 9, 10
    vXF = 11
    vWF = 12
    vXO = 13
    vN = 14
    vZ = 15
    vXR = 16
    vDUM = 210
    g(f"""
    s_cmp_ge_u32 s2, 256
    s_cbranch_scc1 L_END
    s_load_dwordx2 s[{S_X}:{S_X+1}], s[0:1], 0
    s_load_dwordx2 s[{S_WQ}:{S_WQ+1}], s[0:1], 8
    s_load_dwordx4 s[60:63], s[0:1], 16
    s_load_dwordx2 s[{S_WO}:{S_WO+1}], s[0:1], 32
    s_load_dwordx2 s[{S_W1}:{S_W1+1}], s[0:1], 48
    s_load_dwordx2 s[{S_W2}:{S_W2+1}], s[0:1], 56
    s_load_dwordx2 s[{S_OUT}:{S_OUT+1}], s[0:1], 64
    s_load_dwordx2 s[{S_DBG}:{S_DBG+1}], s[0:1], 72
    s_load_dwordx2 s[{S_WS}:{S_WS+1}], s[0:1], 80
    s_memrealtime s[{sTM}:{sTM+1}]
    """)
    g.stamp(0)
    g(f"""
    s_getpc_b64 s[{sPC}:{sPC+1}]
    L_PC:
    v_lshrrev_b32 v{vT}, 6, v0
    v_and_b32 v{vLANE}, 63, v0
    s_lshr_b32 s{sIDX}, s2, 3
    v_readfirstlane_b32 s{sW}, v{vT}
    """)
    if O("pfc", 1):
        g(f"""
        v_lshlrev_b32 v27, 7, v0
        v_min_u32 v27, L_CODE_END-L_PC-4, v27
        v_and_b32 v27, -4, v27
        v_mov_b32 v29, s{sPC+1}
        v_add_co_u32 v28, vcc, s{sPC}, v27
        s_cmp_ge_u32 s{sW}, 4
        s_cbranch_scc1 L_NPC
        v_addc_co_u32 v29, vcc, 0, v29, vcc
        global_load_dword v{vDUM}, v[28:29], off
        L_NPC:
        """)
    g(f"""
    s_lshr_b32 s{sPR}, s{sIDX}, 3
    s_and_b32 s{sT0}, s2, 1
    s_lshl_b32 s{sT0}, s{sT0}, 2
    s_add_u32 s{sCB}, s{sT0}, s{sPR}
    s_and_b32 s{sT0}, s2, 6
    s_lshr_b32 s{sT0}, s{sT0}, 1
    s_and_b32 s{sRB}, s{sIDX}, 7
    s_lshl_b32 s{sRB}, s{sRB}, 2
    s_add_u32 s{sRB}, s{sRB}, s{sT0}
    s_mov_b32 s{S_X+2}, 2097152
    s_mov_b32 s{S_X+3}, 0x20000
    v_lshrrev_b32 v{vT}, 3, v{vLANE}
    v_and_b32 v{vT1}, 7, v{vLANE}
    v_lshlrev_b32 v{vT2}, 10, v{vT}
    v_lshl_or_b32 v{vT2}, v{vT1}, 4, v{vT2}
    s_and_b32 s{sT2}, s{sPR}, {1 if O('xswap', 1) else 0}
    s_lshl_b32 s{sT2}, s{sT2}, 2
    s_xor_b32 s{sSTEP}, s{sW}, s{sT2}
    s_lshl_b32 s{sT0}, s{sRB}, 16
    s_lshl_b32 s{sT1}, s{sSTEP}, 13
    s_add_u32 s{sT0}, s{sT0}, s{sT1}
    s_mov_b32 s{S_DBG+2}, 256
    s_mov_b32 s{S_DBG+3}, 0x20000
    v_mov_b32 v{vZ}, 0
    v_lshlrev_b32 v{vL16}, 4, v{vLANE}
    s_sub_u32 s{sJ}, s{sW}, 4
    s_mov_b32 s{S_WKV+2}, 16384
    s_mov_b32 s{S_WKV+3}, 0x20000
    v_lshlrev_b32 v27, 10, v{vT}
    v_lshl_or_b32 v27, v{vT1}, 7, v27
    s_add_u32 s{sT1}, s{sT0}, 32768
    v_lshlrev_b32 v28, 7, v{vLANE}
    s_lshl_b32 s{sT2}, s{sJ}, 13
    v_lshrrev_b32 v30, 2, v{vLANE}
    v_lshlrev_b32 v30, 10, v30
    v_and_b32 v31, 3, v{vLANE}
    v_lshl_add_u32 v30, v31, 7, v30
    s_sub_u32 s{sSO}, s{sIDX}, 8
    s_mul_i32 s{sT3}, s{sW}, 24
    s_add_u32 s{sSO}, s{sSO}, s{sT3}
    s_lshl_b32 s{sSO}, s{sSO}, 14
    s_lshr_b32 s{sT3}, s{sCB}, 2
    s_lshl_b32 s{sT3}, s{sT3}, 9
    s_add_u32 s{sSO}, s{sSO}, s{sT3}
    s_mov_b32 s{S_WQ+2}, 524288
    s_mov_b32 s{S_WQ+3}, 0x20000
    v_mov_b32 v{vC}, {CNT}
    v_mov_b32 v{vONE}, 1
    v_lshl_add_u32 v29, v{vLANE}, 2, v{vC}
    ds_write_b32 v29, v{vZ}
    s_cmp_lt_u32 s{sCB}, 4
    s_waitcnt lgkmcnt(0)
    s_barrier
    s_cselect_b32 s{S_WKV}, s60, s62
    s_cselect_b32 s{S_WKV+1}, s61, s63
    """)
    if O("pfstart", 0):
        g(f"""s_cmp_eq_u32 s{sPR}, 0
        s_cbranch_scc1 L_PFQ
        s_cmp_ge_u32 s{sW}, 2
        s_cbranch_scc1 L_PFQ
        buffer_load_dword v{vDUM}, v30, {srd(S_WQ)}, s{sSO} offen
        L_PFQ:""")
    if O("pfkv", 1):
        g(f"""s_cmp_lg_u32 s{sPR}, 1
        s_cbranch_scc1 L_PFE
        s_cmp_lg_u32 s{sW}, 0
        s_cbranch_scc1 L_PFE
        s_and_b32 s{sT2}, s{sIDX}, 7
        s_lshl_b32 s{sT2}, s{sT2}, 11
        s_mov_b64 exec, 0xffff
        buffer_load_dword v{vDUM}, v28, {srd(S_WKV)}, s{sT2} offen
        s_mov_b64 exec, -1
        L_PFE:""")
    XR = 32
    def xloads():
        for i in range(8):
            g(f"buffer_load_dwordx4 {vr(XR+4*i,4)}, v{vT2}, {srd(S_X)}, s{sT1} offen offset:{i*128}")
        g.stamp(1)
    g(f"s_mov_b32 s{sT1}, s{sT0}")
    if not O("nfirst", 1): xloads()
    g(f"""
    s_or_b32 s{sT0}, s2, s{sW}
    s_cmp_lg_u32 s{sT0}, 0
    s_cbranch_scc1 L_NN
    s_or_b32 s{sT0}, s{sTM}, 1
    v_mov_b32 v{vN}, s{sT0}
    s_mov_b64 exec, 1
    buffer_store_dword v{vN}, v{vZ}, {srd(S_DBG)}, 0 offen sc1
    s_mov_b64 exec, -1
    L_NN:""")
    if O("nfirst", 1): xloads()
    g(f"""
    s_cmp_lt_u32 s{sW}, 4
    s_cbranch_scc1 L_NKV
    s_cmp_lg_u32 s{sPR}, 0
    s_cbranch_scc1 L_NKV
    s_mul_i32 s{sT1}, s{sJ}, 4224
    s_add_u32 m0, s{sT1}, {R3}
    s_lshl_b32 s{sT0}, s{sJ}, 12""")
    for i in range(4):
        g(f"buffer_load_dwordx4 v{vL16}, {srd(S_WKV)}, s{sT0} offen offset:{i*1024} lds")
    g(f"""
    L_NKV:
    s_mov_b32 s{S_WQ+2}, 524288
    s_mov_b32 s{S_WQ+3}, 0x20000
    s_mov_b32 s{S_WO+2}, 524288
    s_mov_b32 s{S_WO+3}, 0x20000
    s_mov_b32 s{S_W1+2}, 1835008
    s_mov_b32 s{S_W1+3}, 0x20000
    s_mov_b32 s{S_W2+2}, 1835008
    s_mov_b32 s{S_W2+3}, 0x20000
    s_mov_b32 s{S_OUT+2}, 2097152
    s_mov_b32 s{S_OUT+3}, 0x20000
    s_mov_b32 s{S_WS+2}, {WS_BYTES}
    s_mov_b32 s{S_WS+3}, 0x20000
    v_lshrrev_b32 v24, 5, v{vLANE}
    v_bfe_u32 v23, v{vLANE}, 2, 2
    v_lshl_add_u32 v20, v24, 2, v23          ; v20 = row
    v_bfe_u32 v25, v{vLANE}, 4, 1
    v_and_b32 v26, 3, v{vLANE}
    v_lshlrev_b32 v22, 4, v26
    v_lshl_add_u32 v21, v25, 6, v22          ; v21 = colbyte
    s_mul_i32 s{sT1}, s{sSTEP}, {8*XP}
    s_add_u32 s{sT1}, s{sT1}, {R2}
    v_mul_u32_u24 v{vT3}, {XP}, v{vT}
    v_lshl_add_u32 v{vT3}, v{vT1}, 4, v{vT3}
    v_add_u32 v{vT3}, s{sT1}, v{vT3}
    s_mul_i32 s{sHO}, s{sRB}, {HO_RB}
    s_add_u32 s{sHO}, s{sHO}, {WS_HO}
    s_lshl_b32 s{sFL}, s{sRB}, 16
    s_lshl_b32 s{sT2}, s{sCB}, 9
    s_add_u32 s{sFL}, s{sFL}, s{sT2}
    v_lshrrev_b32 v{vXO}, 3, v0
    v_lshlrev_b32 v{vXO}, 10, v{vXO}
    v_lshl_or_b32 v{vXO}, v{vT1}, 4, v{vXO}
    s_lshl_b32 s{sT1}, s{sRB}, 16
    s_lshl_b32 s{sT2}, s{sCB}, 7
    s_add_u32 s{sT1}, s{sT1}, s{sT2}
    v_add_u32 v{vXO}, s{sT1}, v{vXO}
    v_lshlrev_b32 v23, 6, v23
    v_lshl_add_u32 v23, v25, 5, v23
    v_lshl_add_u32 v23, v26, 3, v23
    v_mov_b32 v138, 0
    v_mov_b32 v139, 0
    s_cmp_ge_u32 s{sW}, 4
    s_cbranch_scc1 L_G_ADDR
    v_lshl_add_u32 v{vDA}, v20, 10, v21
    v_add_u32 v{vDB}, {8*1024-1024}, v{vDA}
    s_lshl_b32 s{sSO}, s{sW}, 16
    s_lshl_b32 s{sT0}, s{sCB}, 7
    s_add_u32 s{sSO}, s{sSO}, s{sT0}
    v_lshrrev_b32 v27, 4, v{vLANE}
    v_and_b32 v28, 15, v{vLANE}
    v_min_u32 v28, 13, v28
    v_lshlrev_b32 v28, 7, v28
    s_mov_b32 s{sT1}, 3584
    v_mad_u32_u24 v27, v27, s{sT1}, v28
    s_add_u32 s{sT0}, s{sIDX}, 24
    s_and_b32 s{sT0}, s{sT0}, 31
    s_lshl_b32 s{sT0}, s{sT0}, 2
    s_add_u32 s{sT0}, s{sT0}, s{sW}
    s_mul_i32 s{sT0}, s{sT0}, {4*3584}
    s_lshr_b32 s{sT1}, s{sCB}, 2
    s_mul_i32 s{sT1}, s{sT1}, 1792
    s_add_u32 s{sT0}, s{sT0}, s{sT1}
    v_add_u32 v27, s{sT0}, v27
    s_mov_b32 s60, s{S_W1}
    s_mov_b32 s61, s{S_W1+1}
    s_mov_b32 s62, 1835008
    s_branch L_LN
    L_G_ADDR:
    v_lshrrev_b32 v27, 2, v{vLANE}
    v_lshlrev_b32 v27, 10, v27
    v_lshl_add_u32 v27, v26, 7, v27
    s_sub_u32 s{sT0}, s{sIDX}, 8
    s_mul_i32 s{sT1}, s{sJ}, 24
    s_add_u32 s{sT0}, s{sT0}, s{sT1}
    s_lshl_b32 s{sT0}, s{sT0}, 14
    s_lshr_b32 s{sT1}, s{sCB}, 2
    s_lshl_b32 s{sT1}, s{sT1}, 9
    s_add_u32 s{sT0}, s{sT0}, s{sT1}
    v_add_u32 v27, s{sT0}, v27
    s_cmp_lt_u32 s{sJ}, 2
    s_cselect_b32 s62, {0 if O('wqearly', 0) else 524288}, 0
    s_mov_b32 s60, s{S_WQ}
    s_mov_b32 s61, s{S_WQ+1}
    v_and_b32 v142, 15, v{vLANE}
    v_lshrrev_b32 v143, 4, v{vLANE}
    s_mul_i32 s{sT0}, s{sJ}, {16*XP}
    s_add_u32 s{sT0}, s{sT0}, {R2}
    v_mul_u32_u24 v136, {XP}, v142
    v_lshl_add_u32 v136, v143, 8, v136
    v_add_u32 v136, s{sT0}, v136
    v_mul_u32_u24 v137, 4224, v143
    v_lshl_add_u32 v137, v142, 3, v137
    v_add_u32 v137, {R3}, v137
    ; K: ((g&1)*32 + 16*(j&1) + (l&15))*16 + (g>>1)*8 ; V: 1024 + (j&1)*544 + (g>>1)*256 + d*16 + (g&1)*8
    v_and_b32 v140, 1, v143
    v_lshrrev_b32 v141, 1, v143
    v_lshlrev_b32 v142, 4, v142
    v_lshl_add_u32 v138, v140, 9, v142
    v_lshl_add_u32 v138, v141, 3, v138
    v_lshl_add_u32 v139, v141, 8, v142
    v_lshl_add_u32 v139, v140, 3, v139
    s_lshl_b32 s{sT0}, s{sRB}, 1
    s_lshr_b32 s{sT1}, s{sJ}, 1
    s_add_u32 s{sT0}, s{sT0}, s{sT1}
    s_mul_i32 s{sKVO}, s{sT0}, {REC}
    s_and_b32 s{sT1}, s{sJ}, 1
    s_lshl_b32 s{sT0}, s{sT1}, 8
    s_mul_i32 s{sT1}, s{sT1}, 544
    s_add_u32 s{sT1}, s{sT1}, 1024
    s_cmp_eq_u32 s{sCB}, 0
    s_cselect_b32 s{sT0}, s{sT0}, s{sT1}
    s_cselect_b64 vcc, -1, 0
    s_add_u32 s{sKVO}, s{sKVO}, s{sT0}
    v_cndmask_b32 v138, v139, v138, vcc
    v_lshlrev_b32 v139, 3, v{vLANE}
    v_mov_b32 v140, 0x3f803f80
    v_cmp_gt_u32 vcc, 2, v{vLANE}
    s_lshr_b32 s{sT1}, s{sCB}, 2
    s_mul_i32 s{sMT}, s{sT1}, 28
    v_cndmask_b32 v140, 0, v140, vcc
    v_mov_b32 v141, v140
    s_lshl_b32 s{sT0}, s{sPR}, 2
    s_add_u32 s{sT0}, s{sT0}, s{sJ}
    s_lshl_b32 s{sT0}, s{sT0}, 1
    s_sub_u32 s{sT0}, s{sT0}, 4
    s_cmp_eq_u32 s{sPR}, 0
    s_cselect_b32 s{sT0}, s{sJ}, s{sT0}
    s_add_u32 s{sMT}, s{sMT}, s{sT0}
    s_lshl_b32 s{sSO}, s{sMT}, 6
    s_mov_b32 s{sT1}, 3584
    v_mad_u32_u24 v{vDA}, v20, s{sT1}, v21
    v_add_u32 v{vDB}, {8*3584-1024}, v{vDA}
    s_mov_b32 s{sSTEP}, {16*3584}
    s_mul_i32 s{sT3}, s{sJ}, {RING}
    s_add_u32 s{sT3}, s{sT3}, {R3}
    s_cmp_lg_u32 s{sPR}, 0
    s_cbranch_scc1 L_LN
    v_lshrrev_b32 v28, 2, v{vLANE}
    v_mad_u32_u24 v{vDA}, v28, s{sT1}, v22
    v_add_u32 v{vDB}, {16*3584-1024}, v{vDA}
    s_mov_b32 s{sSTEP}, {32*3584}
    L_LN:
    s_mov_b32 s63, 0x20000
    """)
    sRG = sT3
    def fill(slot, sb):
        g(f"""s_add_u32 m0, s{sRG}, {slot*2048}
        s_nop 0
        buffer_load_dwordx4 v{vDA}, {srd(sb)}, s{sSO} offen lds
        buffer_load_dwordx4 v{vDB}, {srd(sb)}, s{sSO} offen offset:1024 lds
        s_add_u32 s{sSO}, s{sSO}, s{sSTEP}""")
    def wq_dma():
        g(f"""s_lshl_b32 s{sT0}, s{sW}, 13
        s_add_u32 m0, s{sT0}, {R1}""")
        for i in range(8):
            g(f"""s_nop 0
            buffer_load_dwordx4 v{vDA}, {srd(S_WQ)}, s{sSO} offen lds
            buffer_load_dwordx4 v{vDB}, {srd(S_WQ)}, s{sSO} offen offset:1024 lds""")
            if i < 7:
                k = 13 if i == 3 else 1
                g(f"""s_add_u32 s{sSO}, s{sSO}, {16384*k}
                s_add_u32 m0, m0, {2048*k}""")
    F = 64
    PFP = O("pfpos", 7)
    for i in range(8):
        g(f"s_waitcnt vmcnt({7 - i})")
        if i == 7:
            g.stamp(2)
            g(f"""s_cmp_ge_u32 s{sW}, 4
            s_cbranch_scc1 L_NNL
            buffer_load_dword v{vN}, v{vZ}, {srd(S_DBG)}, 0 offen sc1
            L_NNL:""")
        for d in range(4):
            r = XR + 4 * i + d; f = F + 8 * i + 2 * d
            g(f"v_lshlrev_b32 v{f}, 16, v{r}")
            g(f"v_and_b32 v{f+1}, 0xffff0000, v{r}")
        for d in range(4):
            f = F + 8 * i + 2 * d
            a = 128 + 2 * (d % 2); q = 132 + 2 * (d % 2)
            if i == 0 and d < 2:
                g(f"v_pk_mul_f32 {vr(q,2)}, {vr(f,2)}, {vr(f,2)}")
                g(f"v_mov_b32 v{a}, v{f}")
                g(f"v_mov_b32 v{a+1}, v{f+1}")
            else:
                g(f"v_pk_add_f32 {vr(a,2)}, {vr(a,2)}, {vr(f,2)}")
                g(f"v_pk_fma_f32 {vr(q,2)}, {vr(f,2)}, {vr(f,2)}, {vr(q,2)}")
    g(f"""
    v_pk_add_f32 v[128:129], v[128:129], v[130:131]
    v_pk_add_f32 v[132:133], v[132:133], v[134:135]
    v_add_f32 v128, v128, v129
    v_add_f32 v132, v132, v133
    s_nop 1
    v_add_f32_dpp v128, v128, v128 quad_perm:[1,0,3,2] row_mask:0xf bank_mask:0xf
    v_add_f32_dpp v132, v132, v132 quad_perm:[1,0,3,2] row_mask:0xf bank_mask:0xf
    s_nop 1
    v_add_f32_dpp v128, v128, v128 quad_perm:[2,3,0,1] row_mask:0xf bank_mask:0xf
    v_add_f32_dpp v132, v132, v132 quad_perm:[2,3,0,1] row_mask:0xf bank_mask:0xf
    s_nop 1
    v_add_f32_dpp v128, v128, v128 row_half_mirror row_mask:0xf bank_mask:0xf
    v_add_f32_dpp v132, v132, v132 row_half_mirror row_mask:0xf bank_mask:0xf
    v_mul_f32 v128, {f2u(1.0/512):#x}, v128      ; mean
    v_mul_f32 v132, {f2u(1.0/512):#x}, v132      ; E[x^2]
    v_fma_f32 v132, -v128, v128, v132            ; var
    v_max_f32 v132, 0, v132
    v_add_f32 v132, {f2u(1e-5):#x}, v132
    v_rsq_f32 v132, v132
    s_nop 0
    v_mul_f32_e64 v128, -v128, v132              ; -mean*rstd
    """)
    for i in range(8):
        for d in range(4):
            f = F + 8 * i + 2 * d
            g(f"v_pk_fma_f32 {vr(f,2)}, {vr(f,2)}, v[132:133], v[128:129] op_sel_hi:[1,0,0]")
        for d in range(4):
            f = F + 8 * i + 2 * d
            g(f"v_cvt_pk_bf16_f32 v{XR+4*i+d}, v{f}, v{f+1}")
        g(f"ds_write_b128 v{vT3}, {vr(XR+4*i,4)} offset:{i*128}")
    g("s_waitcnt lgkmcnt(0)")
    g.arrive(C_XN, vC, vONE)
    g.stamp(3)
    def kv_dma(q, sidx, part=3):
        base = q * 16 * REC + (16384 if part == 2 else 0)
        g(f"""s_lshl_b32 s{sT0}, s{sidx}, 12
        s_add_u32 s{sSO}, s{sT0}, {WS_KV + base}
        s_add_u32 m0, s{sT0}, {base}""")
        for gi in range(2 if part == 3 else 1):
            g("s_nop 0")
            for i in range(4):
                g(f"buffer_load_dwordx4 v{vL16}, {srd(S_WS)}, s{sSO} offen offset:{i*1024} sc1 lds")
            g(f"""s_add_u32 s{sSO}, s{sSO}, 16384
            s_add_u32 m0, m0, 16384""")
        if part == 1: return
        l = g.lab("KD")
        g(f"""s_cmp_lg_u32 s{sidx}, 0
        s_cbranch_scc1 {l}
        buffer_load_dwordx4 v{vL16}, {srd(S_WS)}, s{sSO} offen sc1 lds
        {l}:""")
    g(f"""s_cmp_lt_u32 s{sW}, 4
    s_cbranch_scc1 L_A_PRE
    s_cmp_lg_u32 s{sPR}, 0
    s_cbranch_scc1 L_G_NP
    s_setprio 3""")
    g.wait_cnt(C_XN, 8, vC, vT)
    g.stamp(4)
    def kv_chain(isK):
        FB = 32; ACC = 128; NS = 5
        def rd(ks):
            b = FB + 8 * (ks % NS)
            g(f"ds_read_b128 {vr(b,4)}, v136 offset:{ks*16}")
            g(f"ds_read_b64_tr_b16 {vr(b+4,2)}, v137 offset:{ks*256}")
            g(f"ds_read_b64_tr_b16 {vr(b+6,2)}, v137 offset:{ks*256+128}")
        for ks in range(4): rd(ks)
        for ks in range(16):
            b = FB + 8 * (ks % NS)
            g(f"s_waitcnt lgkmcnt({min(9, 3*(15-ks))})")
            c = "0" if ks == 0 else vr(ACC, 4)
            if isK: g(f"v_mfma_f32_16x16x32_bf16 {vr(ACC,4)}, {vr(b+4,4)}, {vr(b,4)}, {c}")
            else:   g(f"v_mfma_f32_16x16x32_bf16 {vr(ACC,4)}, {vr(b,4)}, {vr(b+4,4)}, {c}")
            if ks + 4 < 16: rd(ks + 4)
    g(f"""s_cmp_lg_u32 s{sCB}, 0
    s_cbranch_scc1 L_V""")
    kv_chain(True)
    g("""s_nop 1
    s_branch L_KVS
    L_V:""")
    kv_chain(False)
    g(f"""s_mov_b64 exec, 0xf
    buffer_store_dwordx2 v[140:141], v139, {srd(S_WS)}, s{sKVO} offen offset:512 sc1
    s_mov_b64 exec, -1
    L_KVS:
    s_nop 5
    v_cvt_pk_bf16_f32 v132, v128, v129
    v_cvt_pk_bf16_f32 v133, v130, v131
    buffer_store_dwordx2 v[132:133], v138, {srd(S_WS)}, s{sKVO} offen sc1""")
    g(f"buffer_load_dword v{vN}, v{vZ}, {srd(S_DBG)}, 0 offen sc1")
    g.arrive(C_KVDONE, vC, vONE)
    g.stamp(11)
    g("s_waitcnt vmcnt(0)")
    g(f"""s_mov_b64 exec, 1
    ds_add_rtn_u32 v{vT}, v{vC}, v{vONE} offset:{C_KVST}
    s_mov_b64 exec, -1""")
    g.get_nonce(vN, vZ)
    if O("kvprobe", 0): g.stamp(1); g(f"s_mov_b32 s58, s{sSPIN}")
    g(f"""s_lshl_b32 s{sT1}, s{sRB}, 8
    s_lshl_b32 s{sT2}, s{sCB}, 5
    s_add_u32 s{sT1}, s{sT1}, s{sT2}
    s_add_u32 s{sT1}, s{sT1}, {WS_KVF}
    s_waitcnt lgkmcnt(0)
    v_readfirstlane_b32 s{sT0}, v{vT}
    s_nop 3""")
    if O("kvprobe", 0): g.stamp(2)
    g(f"""s_cmp_lg_u32 s{sT0}, 3
    s_cbranch_scc1 L_G_NF""")
    g.publish(sT1, 13, vN, vT, vLANE)
    if O("kvprobe", 0): g.stamp(3)
    g.arrive(C_PUB, vC, vONE)
    g("L_G_NF:")
    g.stamp(10)
    g.wait_cnt(C_PUB, 1, vC, vT)
    g(f"""L_G_NP:
    s_setprio {O('gprio', 2)}
    buffer_load_dword v{vN}, v{vZ}, {srd(S_DBG)}, 0 offen sc1""")
    if O("gwait", 0): g.wait_cnt(C_WQI, 4, vC, vT, sleep=1)
    D1 = O("d1", 0)
    ST = [64 + 8 * i for i in range(8)] + [192 + 8 * i for i in range(8)]
    vWA = 30
    def ld1(k):
        b = ST[k % D1]
        g(f"""buffer_load_dwordx4 {vr(b,4)}, v{vDA}, {srd(S_W1)}, s{sSO} offen
        buffer_load_dwordx4 {vr(b+4,4)}, v{vDB}, {srd(S_W1)}, s{sSO} offen offset:1024
        s_add_u32 s{sSO}, s{sSO}, s{sSTEP}""")
    def wr1(k):
        b = ST[k % D1]
        g(f"""ds_write_b128 v{vWA}, {vr(b,4)} offset:{(k%3)*2048}
        ds_write_b128 v{vWA}, {vr(b+4,4)} offset:{(k%3)*2048+1024}""")
    def gemm1(n, rd, mfs):
        if D1 == 0:
            g("s_waitcnt vmcnt(4)")
            rd(0)
            g("s_waitcnt lgkmcnt(0)")
            fill(0, S_W1)
            for k in range(n):
                if k + 1 < n:
                    g(f"s_waitcnt vmcnt({min(4, 2*(n-1-(k+1)))})")
                    rd(k + 1)
                mfs(k)
                if k + 1 < n:
                    g("s_waitcnt lgkmcnt(0)")
                    probe(k)
                    if k + 4 < n: fill((k + 1) % 3, S_W1)
                if k + 2 == n:
                    g.arrive(C_G1, vC, vONE)
                    g(f"""s_lshl_b32 s{sIT}, s{sJ}, 10
                    s_add_u32 s{sIT}, s{sIT}, {WS_KVF + 4096}""")
                    g.poll_issue(8, sIT, 8192)
            return
        left = lambda k, last: 2 * (min(last, n - 1) - k)
        for k in range(2):
            g(f"s_waitcnt vmcnt({left(k, D1 - 1)})")
            wr1(k)
        rd(0)
        g("s_waitcnt lgkmcnt(0)")
        for k in range(2):
            if k + D1 < n: ld1(k + D1)
        for k in range(n):
            if k + 2 < n:
                g(f"s_waitcnt vmcnt({left(k + 2, k + 1 + D1)})")
                wr1(k + 2)
            if k + 1 < n: rd(k + 1)
            mfs(k)
            if k + 1 < n:
                g("s_waitcnt lgkmcnt(0)")
                probe(k)
                if k + 2 + D1 < n: ld1(k + 2 + D1)
    def probe(k):
        if O("probe", 0):
            g(f"""s_memrealtime s[60:61]
            s_waitcnt lgkmcnt(0)
            v_writelane_b32 v31, s60, {k}""")
    if D1 == 0:
        for s_ in range(3): fill(s_, S_W1)
    else:
        g(f"v_add_u32 v{vWA}, s{sRG}, v{vL16}")
        for k in range(D1): ld1(k)
    g.wait_cnt(C_XN, 8, vC, vT)
    ACC = 128
    g(f"""
    v_and_b32 v25, 31, v{vLANE}
    v_mul_u32_u24 v{vXF}, {XP}, v25
    v_lshl_add_u32 v{vXF}, v24, 4, v{vXF}
    v_add_u32 v{vXF}, {R2}, v{vXF}
    s_cmp_eq_u32 s{sPR}, 0
    s_cbranch_scc1 L_G1_N
    v_lshl_add_u32 v{vWF}, v24, 10, v23
    v_add_u32 v{vWF}, s{sRG}, v{vWF}
    """)
    def mf(D, A, B, first): g(f"v_mfma_f32_32x32x16_bf16 {vr(D,16)}, {vr(A,4)}, {vr(B,4)}, {'0' if first else vr(D,16)}")
    FS = [32, 48]
    def rd_w(ks):
        b = FS[ks % 2]; sl = (ks % 3) * 2048
        g(f"ds_read_b128 {vr(b,4)}, v{vXF} offset:{ks*32}")
        g(f"ds_read_b128 {vr(b+4,4)}, v{vXF} offset:{32*XP+ks*32}")
        for mt in range(2):
            for i in range(2):
                g(f"ds_read_b64_tr_b16 {vr(b+8+4*mt+2*i,2)}, v{vWF} offset:{sl+mt*256+i*512}")
    def mf_w(ks):
        b = FS[ks % 2]
        for mt in range(2):
            for nt in range(2):
                mf(ACC + 32*mt + 16*nt, b + 8 + 4*mt, b + 4*nt, ks == 0)
                if ks >= O("k0", 16) and (mt, nt) != (1, 1): g.nop(O("gap1", 8))
    gemm1(32, rd_w, mf_w)
    if O("probe", 0):
        g(f"""s_lshl_b32 s{sT0}, s2, 2
        s_add_u32 s{sT0}, s{sT0}, s{sJ}
        s_lshl_b32 s{sT0}, s{sT0}, 8
        s_add_u32 s{sT0}, s{sT0}, {WS_DBG + 0x80000}
        v_lshlrev_b32 v30, 2, v{vLANE}
        buffer_store_dword v31, v30, {srd(S_WS)}, s{sT0} offen""")
    def h_cvt(mt):
        for nt in range(2):
            a = ACC + 32*mt + 16*nt; o = 64 + 8 * (2*mt + nt)
            for i in range(8):
                g(f"v_cvt_pk_bf16_f32 v{o+i}, v{a+2*i}, v{a+2*i+1}")
            for i in range(8):
                g(f"v_pk_max_i16 v{o+i}, v{o+i}, 0")
    def h_store(mt, sM_):
        for nt in range(2):
            o = 64 + 8 * (2*mt + nt)
            g(f"buffer_store_dwordx4 {vr(o,4)}, v{vL16}, {srd(S_WS)}, s{sM_} offen offset:{nt*1024} sc1")
            g(f"buffer_store_dwordx4 {vr(o+4,4)}, v{vL16}, {srd(S_WS)}, s{sM_} offen offset:{2048+nt*1024} sc1")
    g.nop(10)
    h_cvt(0); h_cvt(1)
    g("s_branch L_G1_DONE")
    g(f"""L_G1_N:
    v_lshl_add_u32 v{vWF}, v24, 9, v23
    v_add_u32 v{vWF}, s{sRG}, v{vWF}""")
    FN = [32, 160]
    def rd_n(sl_):
        b = FN[sl_ % 2]; so = (sl_ % 3) * 2048
        for sub in range(2):
            ks = 2 * sl_ + sub; bb = b + 12 * sub
            g(f"ds_read_b128 {vr(bb,4)}, v{vXF} offset:{ks*32}")
            g(f"ds_read_b128 {vr(bb+4,4)}, v{vXF} offset:{32*XP+ks*32}")
            for i in range(2):
                g(f"ds_read_b64_tr_b16 {vr(bb+8+2*i,2)}, v{vWF} offset:{so+sub*1024+i*256}")
    def mf_n(sl_):
        b = FN[sl_ % 2]
        for sub in range(2):
            for nt in range(2):
                mf(ACC + 16*nt, b + 12*sub + 8, b + 12*sub + 4*nt, sl_ == 0 and sub == 0)
                if sl_ >= O("k0n", 8) and (sub, nt) != (1, 1): g.nop(O("gap1", 8))
    gemm1(16, rd_n, mf_n)
    g.nop(12)
    h_cvt(0)
    g("L_G1_DONE:")
    g.stamp(6)
    NK2 = 28
    g(f"""v_lshl_add_u32 v{vDA}, v20, 10, v21
    v_add_u32 v{vDB}, {8*1024-1024}, v{vDA}
    s_mov_b32 s{sSTEP}, 16384
    v_lshl_add_u32 v{vWF}, v24, 9, v23
    v_add_u32 v{vWF}, s{sRG}, v{vWF}""")
    g.get_nonce(vN, vZ)
    g.poll_flags(8, sIT, 8192, vT, vT1, vLANE, sleep=4, issued=True)
    if O("hprobe", 0): g.stamp(1)
    g.arrive(C_G1, vC, vONE)
    g.wait_cnt(C_QD, 4, vC, vT, sleep=2)
    g.wait_cnt(C_G1, 8, vC, vT, sleep=1)
    if O("hprobe", 0): g.stamp(2)
    kv_dma(2, sJ); kv_dma(3, sJ)
    if O("hprobe", 0): g.stamp(3)
    if O("dmafirst", 1):
        g("s_waitcnt vmcnt(0)")
        g.arrive(C_H2, vC, vONE)
        g.stamp(5)
    g(f"""s_lshl_b32 s{sT0}, s{sMT}, 12
    s_add_u32 s{sT1}, s{sT0}, s{sHO}
    s_add_u32 s{sT2}, s{sT1}, 4096""")
    h_store(0, sT1)
    g(f"""s_cmp_eq_u32 s{sPR}, 0
    s_cbranch_scc1 L_HS1""")
    h_store(1, sT2)
    if O("dmafirst", 1):
        g("L_HS1:")
    else:
        g("""s_waitcnt vmcnt(8)
        s_branch L_HS2
        L_HS1:
        s_waitcnt vmcnt(4)
        L_HS2:""")
        g.arrive(C_H2, vC, vONE)
        g.stamp(5)
    g(f"""s_mul_i32 s{sSO}, s{sJ}, {NK2*16384}
    s_lshl_b32 s{sT0}, s{sCB}, 7
    s_add_u32 s{sSO}, s{sSO}, s{sT0}
    s_lshl_b32 s{sT1}, s{sJ}, 7
    s_add_u32 s{sT1}, s{sT1}, s{sFL}
    s_add_u32 s{sT1}, s{sT1}, {WS_HF}""")
    if O("hprobe", 0): g.stamp(4)
    g(f"""    ; w2 / wo warm-up offsets
    v_lshrrev_b32 v100, 2, v{vLANE}
    v_and_b32 v{vT}, 3, v{vLANE}
    v_lshlrev_b32 v{vT}, 7, v{vT}
    v_and_b32 v101, 3, v100
    v_lshl_add_u32 v100, v100, 10, v{vT}
    v_lshl_add_u32 v101, v101, 10, v{vT}
    s_lshr_b32 s60, s{sCB}, 2
    s_lshl_b32 s60, s60, 9
    s_mul_i32 s{sT0}, s{sIDX}, {56*1024}
    s_lshl_b32 s{sT2}, s{sJ}, 14
    s_add_u32 s{sT0}, s{sT0}, s{sT2}
    s_add_u32 s{sT0}, s{sT0}, s60
    v_add_u32 v100, s{sT0}, v100
    s_lshl_b32 s{sT0}, s{sIDX}, 14
    s_lshl_b32 s{sT2}, s{sJ}, 12
    s_add_u32 s{sT0}, s{sT0}, s{sT2}
    s_add_u32 s{sT0}, s{sT0}, s60
    v_add_u32 v101, s{sT0}, v101
""")
    def pf2():
        if O("pf2", 1):
            g(f"""buffer_load_dword v{vDUM}, v100, {srd(S_W2)}, 0 offen
            buffer_load_dword v{vDUM}, v101, {srd(S_WO)}, 0 offen""")
    g.wait_cnt(C_H1C, 4, vC, vT, sleep=2)
    g("s_waitcnt vmcnt(0)")
    g.publish(sT1, 12, vN, vT, vLANE)
    pf2()
    for s_ in range(3): fill(s_, S_W2)
    g.stamp(7)
    if O("gidle", 0): g("s_branch L_G_SKIP")
    g(f"""s_lshl_b32 s{sT1}, s{sRB}, 16
    s_and_b32 s{sT0}, s{sJ}, 2
    s_add_u32 s{sT0}, s{sT0}, s{sJ}
    s_lshl_b32 s{sT0}, s{sT0}, 9
    s_add_u32 s{sT1}, s{sT1}, s{sT0}
    s_add_u32 s{sT1}, s{sT1}, {WS_HF}""")
    g.poll_flags(12, sT1, 4096, vT, vT1, vLANE, sleep=8)
    g("s_waitcnt vmcnt(0)")
    g.stamp(8)
    g(f"s_setprio {O('gprio2', 0)}")
    NH = O("nh", 4)
    HB = [64 + 8*i for i in range(NH)]
    WB = [32, 40]
    WO = 192
    sHS = sIT
    g(f"""s_mul_i32 s{sHS}, s{sJ}, {NK2*2048}
    s_add_u32 s{sHS}, s{sHS}, s{sHO}""")
    if O("pfh", 0):
        g(f"""v_lshlrev_b32 v100, 7, v{vLANE}
        s_mul_i32 s{sT0}, s{sPR}, {7*2048}
        s_add_u32 s{sT0}, s{sT0}, s{sHS}
        s_add_u32 s{sT1}, s{sT0}, {7*2048 - 8192}
        buffer_load_dword v{vDUM}, v100, {srd(S_WS)}, s{sT0} offen sc1
        buffer_load_dword v{vDUM}, v100, {srd(S_WS)}, s{sT1} offen sc1""")
    def ldh(ks):
        b = HB[ks % NH]
        g(f"buffer_load_dwordx4 {vr(b,4)}, v{vL16}, {srd(S_WS)}, s{sHS} offen sc1")
        g(f"buffer_load_dwordx4 {vr(b+4,4)}, v{vL16}, {srd(S_WS)}, s{sHS} offen offset:1024 sc1")
        g(f"s_add_u32 s{sHS}, s{sHS}, 2048")
    def rd2(ks):
        b = WB[ks % 2] if ks < NK2 else WO + 8 * (ks - NK2); sl = (ks % 3) * 2048
        for mt in range(2):
            for i in range(2):
                g(f"ds_read_b64_tr_b16 {vr(b+4*mt+2*i,2)}, v{vWF} offset:{sl+mt*256+i*1024}")
    def fill2(ks):
        if ks == NK2:
            g(f"""s_lshl_b32 s{sSO}, s{sJ}, 17
            s_lshl_b32 s{sT0}, s{sCB}, 7
            s_add_u32 s{sSO}, s{sSO}, s{sT0}""")
        fill(ks % 3, S_W2 if ks < NK2 else S_WO)
    NT = NK2 + 8
    order = []
    def issued(tag, n): order.extend([tag] * n)
    def wait_for(tags):
        last = max(i for i, t in enumerate(order) if t in tags)
        g(f"s_waitcnt vmcnt({len(order) - 1 - last})")
    for ks in range(NH - 1):
        ldh(ks); issued(("h", ks), 2)
    rd2(0)
    g("s_waitcnt lgkmcnt(0)")
    fill2(3); issued(("w", 3), 2)
    for ks in range(NT):
        if ks + 1 < NT:
            if ks + 1 >= 3: wait_for([("w", ks + 1)])
            rd2(ks + 1)
        if ks < NK2:
            if ks + NH - 1 < NK2:
                ldh(ks + NH - 1); issued(("h", ks + NH - 1), 2)
            wait_for([("h", ks)])
            b = WB[ks % 2]; hb_ = HB[ks % NH]
            for mt in range(2):
                for nt in range(2):
                    mf(ACC + 32*mt + 16*nt, b + 4*mt, hb_ + 4*nt, ks == 0)
                    if (mt, nt) != (1, 1): g.nop(O("gap2", 0))
        if ks + 1 < NT:
            g("s_waitcnt lgkmcnt(0)")
            if ks + 4 < NT:
                fill2(ks + 4); issued(("w", ks + 4), 2)
    g(f"buffer_load_dwordx4 {vr(vXR,4)}, v{vXO}, {srd(S_X)}, 0 offen")
    g.stamp(9)
    g(f"""L_G_SKIP:
    s_lshl_b32 s{sT2}, s{sJ}, 14
    s_add_u32 s{sT2}, s{sT2}, s{sHO}
    s_add_u32 s{sT1}, s{sT2}, {112*2048}
    s_add_u32 s{sT2}, s{sT1}, 4096
    s_add_u32 s60, s{sT1}, 8192
    s_add_u32 s61, s{sT1}, 12288
    v_and_b32 v25, 31, v{vLANE}
    v_mul_u32_u24 v25, {PP}, v25
    v_lshl_add_u32 v25, v24, 4, v25
    s_mul_i32 s{sT0}, s{sJ}, {PIMG}
    v_add_u32 v25, s{sT0}, v25""")
    g.wait_cnt(C_ADONE, O("adone", 4), vC, vT, sleep=2)
    g("s_setprio 3")
    if O("odelay", 8): g(f"s_sleep {O('odelay', 8)}")
    g.stamp(12)
    OF = 32
    def o_issue(h):
        for i in range(4):
            so = [sT1, sT2, 60, 61][2*h + i // 2]
            for nt in range(2):
                g(f"buffer_load_dwordx4 {vr(OF+32*h+8*i+4*nt,4)}, v{vL16}, {srd(S_WS)}, s{so} offen offset:{(i%2)*2048+nt*1024} sc1")
    def o_check(h):
        b = OF + 32 * h
        g(f"v_max3_u32 v{vT}, v{b}, v{b+1}, v{b+2}")
        g(f"v_max3_u32 v{vT1}, v{b+3}, v{b+4}, v{b+5}")
        for k in range(6, 32, 4):
            if k + 1 < 32: g(f"v_max3_u32 v{vT}, v{vT}, v{b+k}, v{b+k+1}")
            if k + 3 < 32: g(f"v_max3_u32 v{vT1}, v{vT1}, v{b+k+2}, v{b+k+3}")
        g(f"""v_max_u32 v{vT}, v{vT}, v{vT1}
        v_cmp_eq_u32 vcc, -1, v{vT}
        s_sub_u32 s{sSPIN}, s{sSPIN}, 1
        s_cselect_b64 vcc, 0, vcc
        s_cselect_b32 s{sSPIN}, 0, s{sSPIN}
        s_cmp_lg_u64 vcc, 0""")
    def o_mfma(h):
        for i in range(4*h, 4*h + 4):
            for mt in range(2):
                for nt in range(2):
                    mf(ACC + 32*mt + 16*nt, WO + 8*i + 4*mt, OF + 8*i + 4*nt, False)
    g(f"""s_mov_b32 s{sSPIN}, {SPIN}
    L_OR:""")
    o_issue(0); o_issue(1)
    g("s_waitcnt vmcnt(8)")
    o_check(0)
    g("s_cbranch_scc1 L_OB0")
    o_mfma(0)
    g("""L_OW1:
    s_waitcnt vmcnt(0)""")
    o_check(1)
    g("s_cbranch_scc1 L_OR1")
    o_mfma(1)
    g("L_ODONE:")
    main = g.L; g.L = g.tail
    g("L_OR1:")
    o_issue(1)
    g("""s_branch L_OW1
    L_OB0:
    s_waitcnt vmcnt(0)""")
    o_check(1)
    g("s_cbranch_scc1 L_OR")
    o_issue(0)
    o_mfma(1)
    g("""L_OW0:
    s_waitcnt vmcnt(0)""")
    o_check(0)
    g("s_cbranch_scc0 L_OM0")
    o_issue(0)
    g("""s_branch L_OW0
    L_OM0:""")
    o_mfma(0)
    g("s_branch L_ODONE")
    g.L = main
    g.stamp(13)
    if O("adone", 4) < 4: g.wait_cnt(C_ADONE, 4, vC, vT)
    else: g.nop(8)
    for mt in range(2):
        for nt in range(2):
            for q in range(4):
                g(f"ds_write_b128 v25, {vr(ACC+32*mt+16*nt+4*q,4)} offset:{nt*32*PP + mt*128 + q*32}")
    g("s_waitcnt lgkmcnt(0)")
    g(f"""L_FINAL:
    v_lshrrev_b32 v{vT}, 3, v0
    v_and_b32 v{vT1}, 7, v0
    v_mul_u32_u24 v{vT}, {PP}, v{vT}
    v_lshl_add_u32 v{vT}, v{vT1}, 5, v{vT}
    s_barrier""")
    for j in range(4):
        g(f"ds_read_b128 {vr(32+8*j,4)}, v{vT} offset:{j*PIMG}")
        g(f"ds_read_b128 {vr(36+8*j,4)}, v{vT} offset:{j*PIMG+16}")
    g("s_waitcnt vmcnt(0)")
    for d in range(4):
        g(f"v_lshlrev_b32 v{64+2*d}, 16, v{vXR+d}")
        g(f"v_and_b32 v{65+2*d}, 0xffff0000, v{vXR+d}")
    for j in range(4):
        g(f"s_waitcnt lgkmcnt({6-2*j})")
        for d in range(4):
            g(f"v_pk_add_f32 {vr(64+2*d,2)}, {vr(64+2*d,2)}, {vr(32+8*j+2*d,2)}")
    for d in range(4):
        g(f"v_cvt_pk_bf16_f32 v{72+d}, v{64+2*d}, v{65+2*d}")
    g(f"buffer_store_dwordx4 v[72:75], v{vXO}, {srd(S_OUT)}, 0 offen")
    if debug:
        g.stamp(14)
        g(f"""s_waitcnt vmcnt(0)""")
        g.stamp(15)
        g(f"""s_waitcnt lgkmcnt(0)
        s_lshl_b32 s{sT0}, s2, 3
        s_add_u32 s{sT0}, s{sT0}, s{sW}
        s_lshl_b32 s{sT0}, s{sT0}, 7
        s_add_u32 s{sT0}, s{sT0}, {WS_DBG}
        v_mov_b32 v{vT}, 0""")
        for i in range(16):
            g(f"v_writelane_b32 v{vT}, s{sSTAMP+2*i}, {i}")
        g(f"v_writelane_b32 v{vT}, s{sRETRY}, 16")
        g(f"v_writelane_b32 v{vT}, s{sRB}, 17")
        g(f"v_writelane_b32 v{vT}, s{sCB}, 18")
        g(f"v_writelane_b32 v{vT}, s58, 19")
        g(f"""v_lshlrev_b32 v{vT1}, 2, v{vLANE}
        s_mov_b32 exec_hi, 0
        buffer_store_dword v{vT}, v{vT1}, {srd(S_WS)}, s{sT0} offen""")
        if O("dbgmax", 0):
            g(f"""s_load_dwordx2 s[{S_DBG}:{S_DBG+1}], s[0:1], 72
            s_mov_b32 s{S_DBG+2}, 256
            s_mov_b32 s{S_DBG+3}, 0x20000
            v_subrev_u32 v{vT}, s{sN}, v{vT}
            s_waitcnt lgkmcnt(0)
            s_cmp_lg_u32 s{sW}, {O("dbgmax", 0) - 1}
            s_cbranch_scc1 L_END
            s_mov_b64 exec, 0xfffe
            buffer_atomic_smax v{vT}, v{vT1}, {srd(S_DBG)}, 0 offen""")
    if O("padto", 0):
        g(f"""L_PAD:
        s_memrealtime s[60:61]
        s_waitcnt lgkmcnt(0)
        s_sub_u32 s60, s60, s{sN}
        s_cmp_lt_u32 s60, {O("padto", 0) * 100}
        s_cbranch_scc1 L_PAD""")
    g("L_END:")
    g("s_endpgm")
    g("L_A_PRE:")
    pm = O("pmode", 0)
    if pm != 2:
        g(f"""s_cmp_eq_u32 s{sPR}, 0
        s_cbranch_scc1 L_WQP""")
    if not O("wqall", 1): g.wait_cnt(C_XN, 8, vC, vT, sleep=1)
    if pm == 1:
        g("""s_branch L_WQ
        L_WQP:""")
        g.wait_cnt(C_KVDONE, 4, vC, vT, sleep=1)
        g("L_WQ:")
    g(f"s_setprio {O('dmaprio', 2)}")
    if pm == 0: g("L_WQP:")
    g.stamp(4)
    wq_dma()
    g.arrive(C_WQI, vC, vONE)
    LATEPF = O("pf1", 1)
    if LATEPF:
        g(f"""s_cmp_eq_u32 s{sPR}, 0
        s_cbranch_scc1 L_NPF4
        buffer_load_dword v{vDUM}, v27, s[60:63], 0 offen
        s_branch L_NPF5
        L_NPF4:
        buffer_load_dword v{vDUM}, v{vZ}, {srd(S_DBG)}, 0 offen
        L_NPF5:""")
    QACC = 144
    g(f"""
    v_and_b32 v25, 31, v{vLANE}
    s_and_b32 s{sT0}, s{sW}, 1
    s_mul_i32 s{sT0}, s{sT0}, {32*XP}
    s_add_u32 s{sT0}, s{sT0}, {R2}
    v_mul_u32_u24 v{vXF}, {XP}, v25
    v_lshl_add_u32 v{vXF}, v24, 4, v{vXF}
    v_add_u32 v{vXF}, s{sT0}, v{vXF}
    s_lshr_b32 s{sT0}, s{sW}, 1
    s_lshl_b32 s{sT0}, s{sT0}, 8
    v_lshl_add_u32 v{vWF}, v24, 10, v23
    v_add_u32 v{vWF}, s{sT0}, v{vWF}
    """)
    XQ = 32
    xq = lambda ks: (32 + 4 * ks) if ks < 28 else (160 + 4 * (ks - 28))
    g.wait_cnt(C_XN, 8, vC, vT, sleep=1)
    lq = g.lab("XQ")
    g(f"""s_cmp_lg_u32 s{sPR}, 0
    s_cbranch_scc1 {lq}""")
    g.wait_cnt(C_KVDONE, 4, vC, vT, sleep=1)
    g(f"{lq}:")
    for ks in range(32):
        g(f"ds_read_b128 {vr(xq(ks),4)}, v{vXF} offset:{ks*32}")
        if ks % 8 == 7 and ks < 31: g("s_waitcnt lgkmcnt(4)")
    g(f"s_waitcnt vmcnt({9 if LATEPF else 8})")
    g("s_setprio 2")
    g.arrive(C_WQ, vC, vONE)
    g.wait_cnt(C_WQ, 4, vC, vT)
    g.stamp(10)
    FB = 176; NS = 8
    def rdq(ks):
        b = FB + 4 * (ks % NS)
        g(f"ds_read_b64_tr_b16 {vr(b,2)}, v{vWF} offset:{R1+ks*2048}")
        g(f"ds_read_b64_tr_b16 {vr(b+2,2)}, v{vWF} offset:{R1+ks*2048+512}")
    for ks in range(7): rdq(ks)
    for ks in range(32):
        b = FB + 4 * (ks % NS)
        g(f"s_waitcnt lgkmcnt({min(12, 2*(31-ks))})")
        c = "0" if ks == 0 else vr(QACC, 16)
        g(f"v_mfma_f32_32x32x16_bf16 {vr(QACC,16)}, {vr(b,4)}, {vr(xq(ks),4)}, {c}")
        if ks + 7 == 16:
            g(f"s_waitcnt vmcnt({1 if LATEPF else 0})")
            g.arrive(C_WQ2, vC, vONE)
            g.wait_cnt(C_WQ2, 4, vC, vT)
        if ks + 7 < 32: rdq(ks + 7)
    g.arrive(C_QD, vC, vONE)
    if O("pf1", 1) and O("pfprod", 1):
        g(f"""s_cmp_lg_u32 s{sPR}, 0
        s_cbranch_scc1 L_NPF2
        buffer_load_dword v{vDUM}, v27, s[60:63], 0 offen
        L_NPF2:""")
    g.stamp(5)
    QA, QB = 24, 28
    g.get_nonce(vN, vZ)
    g(f"s_mov_b32 s{sIT}, {WS_KVF}")
    if O("pollearly", 1): g.poll_issue(16, sIT, 8192)
    else: g.nop(4)
    g(f"s_mov_b32 s{sT0}, {f2u(QSCALE):#x}")
    for i in range(16):
        g(f"v_mul_f32 v{QACC+i}, s{sT0}, v{QACC+i}")
    for i in range(8):
        g(f"v_cvt_pk_bf16_f32 v{QA+i}, v{QACC+2*i}, v{QACC+2*i+1}")
    SA = [32, 48]; SB = [64, 80]; CA, CB_ = 96, 112; OA, OB = 128, 144
    KF = [160, 164]; VF = [168, 176]; vIDX, vKA, vVA = 184, 185, 186
    vPF2, vPFO = 187, 188
    g(f"""
    v_mov_b32 v{vIDX}, 0xdddddddd
    v_mov_b32 v{vKA}, v{vL16}
    v_and_b32 v{vT}, 31, v{vLANE}
    v_lshrrev_b32 v{vT1}, 5, v{vLANE}
    v_lshlrev_b32 v{vT1}, 8, v{vT1}
    v_lshl_add_u32 v{vT1}, v{vT}, 4, v{vT1}
    v_mov_b32 v{vT2}, 528
    v_mov_b32 v{vT3}, 512
    v_and_b32 v{vVA}, 0x1b, v{vT}
    v_cmp_eq_u32 vcc, 16, v{vVA}
    s_nop 1
    v_cndmask_b32 v{vT2}, v{vT2}, v{vT3}, vcc
    v_cmp_gt_u32 vcc, 16, v{vT}
    s_nop 1
    v_cndmask_b32 v{vVA}, v{vT2}, v{vT1}, vcc
    v_add_u32 v{vVA}, 1024, v{vVA}
    s_mov_b32 s{sRETRY}, 0
    s_lshl_b32 s{sT0}, s{sCB}, 13
    s_lshr_b32 s{sT1}, s{sW}, 1
    s_lshl_b32 s{sT1}, s{sT1}, 12
    s_add_u32 s{sT0}, s{sT0}, s{sT1}
    s_and_b32 s{sT1}, s{sW}, 1
    s_lshl_b32 s{sT1}, s{sT1}, 10
    s_add_u32 s{sT0}, s{sT0}, s{sT1}
    s_add_u32 s{sT0}, s{sT0}, s{sHO}
    s_add_u32 s{sOO}, s{sT0}, {112*2048}
    v_mov_b64 v[188:189], -1
    v_mov_b64 v[190:191], -1
    """)
    for i in range(0, 16, 2):
        g(f"v_mov_b64 {vr(OA+i,2)}, 0"); g(f"v_mov_b64 {vr(OB+i,2)}, 0"); g(f"v_mov_b64 {vr(SB[1]+i,2)}, 0")
    for i in range(0, 8, 2):
        g(f"v_mov_b64 {vr(VF[1]+i,2)}, 0")
    g.wait_cnt(C_QD, 4, vC, vT)
    g(f"s_setprio {O('spinprio', 0)}")
    g.poll_flags(16, sIT, 8192, vT, vT1, vLANE, sleep=O("kvsleep", 1), issued=O("pollearly", 1))
    g("s_setprio 3")
    g.stamp(6)
    g(f"buffer_load_dwordx4 {vr(KF[0],4)}, v{vL16}, {srd(S_WS)}, 0 offen sc1")
    kv_dma(0, sW, 1)
    g(f"s_mov_b32 s{sT1}, {WS_KVF + 2048}")
    g.poll_issue(16, sT1, 8192)
    def qk(S, K, Q, C): g(f"v_mfma_f32_32x32x16_bf16 {vr(S,16)}, {vr(K,4)}, {vr(Q,4)}, {C}")
    def pv(O_, V, P): g(f"v_smfmac_f32_32x32x32_bf16 {vr(O_,16)}, {vr(V,4)}, {vr(P,8)}, v{vIDX}")
    def max16(S, d):
        g(f"v_max3_f32 v{d}, v{S}, v{S+1}, v{S+2}")
        for i in range(3, 15, 2):
            g(f"v_max3_f32 v{d}, v{d}, v{S+i}, v{S+i+1}")
        g(f"v_max_f32 v{d}, v{d}, v{S+15}")
    def xhalf_max(d, t):
        g(f"""v_mov_b32 v{t}, v{d}
        s_nop 1
        v_permlane32_swap_b32 v{d}, v{t}
        s_nop 1
        v_max_f32 v{d}, v{d}, v{t}""")
    g.stamp(1)
    g("s_waitcnt vmcnt(4)")
    g.stamp(2)
    qk(SA[0], KF[0], QA, "0"); qk(SB[0], KF[0], QB, "0")
    g.nop(11)
    max16(SA[0], vT); max16(SB[0], vT1)
    xhalf_max(vT, vT2); xhalf_max(vT1, vT2)
    g(f"""v_add_f32 v{vT}, {f2u(FOFF):#x}, v{vT}
    v_add_f32 v{vT1}, {f2u(FOFF):#x}, v{vT1}
    L_ATT_START:""")
    g(f"""v_sub_f32 v{CA}, 0, v{vT}
    v_sub_f32 v{CA+1}, 0, v{vT}
    v_sub_f32 v{CB_}, 0, v{vT1}
    v_sub_f32 v{CB_+1}, 0, v{vT1}""")
    for i in range(2, 16, 2):
        g(f"v_mov_b64 {vr(CA+i,2)}, {vr(CA,2)}")
    g(f"s_mov_b32 s{sIT}, s{sRETRY}")
    g(f"s_cmp_lg_u32 s{sRETRY}, 0")
    qk(SA[0], KF[0], QA, vr(CA, 16))
    for i in range(2, 16, 2):
        g(f"v_mov_b64 {vr(CB_+i,2)}, {vr(CB_,2)}")
    g.nop(4)
    g("s_cbranch_scc1 L_ATT_GO")
    g.stamp(3)
    g("s_waitcnt vmcnt(0)")
    g.stamp(11)
    g.arrive(C_H1, vC, vONE)
    kv_dma(0, sW, 2)
    g.wait_cnt(C_H1, 4, vC, vT)
    g("L_ATT_GO:")
    g(f"s_setprio {O('aprio', 1)}")
    g.stamp(7); g.stamp(12, True)
    g("s_nop 1")
    g(".p2align 6")
    g("L_ATT:")
    UN = 16
    def exps(S, lo, hi, first64=False):
        for i in range(lo, hi):
            g(f"v_exp_f32{'_e64' if (first64 and i == lo) else ''} v{S+i}, v{S+i}")
    def side(it, fn):
        l = g.lab("SB"); r = g.lab("SR")
        g(f"""s_cmp_eq_u32 s{sIT}, {it}
        s_cbranch_scc1 {l}
        {r}:""")
        main = g.L; g.L = g.tail
        g(f"{l}:"); fn(); g(f"s_branch {r}")
        g.L = main
    def blk_q1():
        g.poll_flags(16, sT1, 8192, vT, vT1, vLANE, sleep=1, issued=True)
        kv_dma(1, sW)
        g(f"""buffer_store_dwordx4 v[188:191], v{vL16}, {srd(S_WS)}, s{sOO} offen sc1
        buffer_store_dwordx4 v[188:191], v{vL16}, {srd(S_WS)}, s{sOO} offen offset:2048 sc1""")
    def blk_h1b():
        g("s_waitcnt vmcnt(10)")
        g.arrive(C_H1B, vC, vONE)
    def blk_h1c():
        g("s_waitcnt vmcnt(0)")
        g.arrive(C_H1C, vC, vONE)

    for t in range(UN):
        p = t % 2
        qk(SB[p], KF[p], QB, vr(CB_, 16))
        g(f"ds_read_b128 {vr(KF[1-p],4)}, v{vKA} offset:{(t+1)*REC}")
        g(f"ds_read_b128 {vr(VF[p],4)}, v{vVA} offset:{t*REC}")
        g(f"ds_read_b128 {vr(VF[p]+4,4)}, v{vVA} offset:{t*REC+544}")
        exps(SA[p], 0, 4)
        pv(OB, VF[1-p], SB[1-p])
        exps(SA[p], 4, 10)
        pv(OB, VF[1-p] + 4, SB[1-p] + 8)
        g("s_waitcnt lgkmcnt(0)")
        exps(SA[p], 10, 16, True)
        qk(SA[1-p], KF[1-p], QA, vr(CA, 16))
        exps(SB[p], 0, 4)
        pv(OA, VF[p], SA[p])
        if t == UN - 1:
            g(f"""v_add_u32 v{vKA}, {UN*REC}, v{vKA}
            v_add_u32 v{vVA}, {UN*REC}, v{vVA}""")
        exps(SB[p], 4, 10)
        pv(OA, VF[p] + 4, SA[p] + 8)
        if debug and O("itstamp", 0):
            if t == 4: side(0, lambda: g.stamp(3, True))
            if t == 8: side(0, lambda: g.stamp(4, True))
            if t == 0: side(1, lambda: g.stamp(1, True)); side(2, lambda: g.stamp(2, True)); side(3, lambda: g.stamp(11, True))
        if t == 2: side(0, blk_q1)
        if t == 3: side(0, blk_h1b)
        if t == 6: side(0, lambda: g.wait_cnt(C_H1B, 4, vC, vT))
        if t == 9: side(0, blk_h1c)
        if t == UN - 3: side(0, lambda: g.wait_cnt(C_H1C, 4, vC, vT))
        if t == UN - 2: side(1, lambda: g.wait_cnt(C_H2, 4, vC, vT))
        if t == UN - 1:
            g(f"""s_add_u32 s{sIT}, s{sIT}, 1
            s_bitcmp0_b32 s{sIT}, 2""")
        exps(SB[p], 10, 16)
    g("s_cbranch_scc1 L_ATT")
    pv(OB, VF[1], SB[1]); pv(OB, VF[1] + 4, SB[1] + 8)
    g.stamp(8); g.stamp(13, True)
    g(f"""s_setprio 2
    v_mov_b32 v{vT2}, {f2u(2.0**110):#x}
    v_fma_f32 v{vT}, v{OA}, 0, v{OA+8}""")
    for i in range(1, 8):
        g(f"v_fma_f32 v{vT}, v{OA+i}, 0, v{vT}")
    g(f"""v_rcp_f32 v{vT3}, v{OA+8}
    s_nop 7
    v_fma_f32 v{vT1}, v{OB}, 0, v{OB+8}""")
    for i in range(1, 8):
        g(f"v_fma_f32 v{vT1}, v{OB+i}, 0, v{vT1}")
    g(f"""v_cmp_nlt_f32 vcc, v{vT}, v{vT2}
    v_cmp_nlt_f32 s[{sM}:{sM+1}], v{vT1}, v{vT2}
    v_rcp_f32 v{vT1}, v{OB+8}
    s_nop 0
    s_or_b64 vcc, vcc, s[{sM}:{sM+1}]
    s_cmp_lg_u64 vcc, 0
    s_cbranch_scc1 L_FALLBACK
    L_ATT_OK:""")
    main = g.L; g.L = g.tail
    g(f"""L_FALLBACK:
    s_cmp_lg_u32 s{sRETRY}, 0
    s_cbranch_scc1 L_ATT_OK
    s_mov_b32 s{sRETRY}, 16
    v_subrev_u32 v{vKA}, {64*REC}, v{vKA}
    v_subrev_u32 v{vVA}, {64*REC}, v{vVA}
    v_mov_b32 v{vT3}, v{vKA}
    v_mov_b32 v{vT}, 0xff800000
    v_mov_b32 v{vT1}, 0xff800000
    s_mov_b32 s{sIT}, 0
    L_MAXP:
    ds_read_b128 {vr(KF[0],4)}, v{vT3}
    v_add_u32 v{vT3}, {REC}, v{vT3}
    s_waitcnt lgkmcnt(0)""")
    qk(SA[0], KF[0], QA, "0"); qk(SB[0], KF[0], QB, "0")
    g.nop(12)
    for i in range(0, 16, 2):
        g(f"v_max3_f32 v{vT}, v{vT}, v{SA[0]+i}, v{SA[0]+i+1}")
    for i in range(0, 16, 2):
        g(f"v_max3_f32 v{vT1}, v{vT1}, v{SB[0]+i}, v{SB[0]+i+1}")
    g(f"""s_add_u32 s{sIT}, s{sIT}, 1
    s_cmp_lt_u32 s{sIT}, 64
    s_cbranch_scc1 L_MAXP
    ds_read_b128 {vr(KF[0],4)}, v{vKA}""")
    xhalf_max(vT, vT2); xhalf_max(vT1, vT2)
    for i in range(0, 16, 2):
        g(f"v_mov_b64 {vr(OA+i,2)}, 0"); g(f"v_mov_b64 {vr(OB+i,2)}, 0"); g(f"v_mov_b64 {vr(SB[1]+i,2)}, 0")
    for i in range(0, 8, 2):
        g(f"v_mov_b64 {vr(VF[1]+i,2)}, 0")
    g(f"""s_waitcnt lgkmcnt(0)
    s_branch L_ATT_START""")
    g.L = main
    for i in range(8):
        g(f"v_mul_f32 v{OA+i}, v{OA+i}, v{vT3}")
    for i in range(4):
        g(f"v_cvt_pk_bf16_f32 v{32+i}, v{OA+2*i}, v{OA+2*i+1}")
    for i in range(4):
        g(f"v_min_u32 v{32+i}, -2, v{32+i}")
    g(f"buffer_store_dwordx4 v[32:35], v{vL16}, {srd(S_WS)}, s{sOO} offen sc1")
    for i in range(8):
        g(f"v_mul_f32 v{OB+i}, v{OB+i}, v{vT1}")
    for i in range(4):
        g(f"v_cvt_pk_bf16_f32 v{36+i}, v{OB+2*i}, v{OB+2*i+1}")
    for i in range(4):
        g(f"v_min_u32 v{36+i}, -2, v{36+i}")
    g(f"buffer_store_dwordx4 v[36:39], v{vL16}, {srd(S_WS)}, s{sOO} offen offset:2048 sc1")
    g.arrive(C_ADONE, vC, vONE)
    g(f"buffer_load_dwordx4 {vr(vXR,4)}, v{vXO}, {srd(S_X)}, 0 offen")
    g.stamp(9)
    g("s_branch L_FINAL")

    g.L += g.tail
    g("L_CODE_END:")

    ref = open(f"cdna_kernels/{NAME}.s.ref").read().split("\n")
    hdr = [l for l in ref if l.startswith(";") and "@launch" not in l]
    out = hdr + [f"; @launch grid=(256,1,1) block=(512,1,1) lds={LDS_BYTES}",
                 '.amdgcn_target "amdgcn-amd-amdhsa--gfx950"', ".text", f".globl {NAME}_kernel", ".p2align 8",
                 f".type {NAME}_kernel,@function", f"{NAME}_kernel:"] + g.L + [
        '.section .rodata,"a"', ".p2align 6", f".amdhsa_kernel {NAME}_kernel",
        "  .amdhsa_next_free_vgpr 256", "  .amdhsa_next_free_sgpr 102", "  .amdhsa_accum_offset 256",
        "  .amdhsa_group_segment_fixed_size 0", "  .amdhsa_kernarg_size 88", "  .amdhsa_user_sgpr_count 2",
        "  .amdhsa_user_sgpr_kernarg_segment_ptr 1", "  .amdhsa_system_sgpr_workgroup_id_x 1", ".end_amdhsa_kernel", ""]
    return "\n".join(out)


if __name__ == "__main__":
    ap = argparse.ArgumentParser()
    ap.add_argument("-o", default=f"cdna_kernels/{NAME}.s")
    ap.add_argument("--debug", action="store_true")
    ap.add_argument("opts", nargs="*")
    a = ap.parse_args()
    opt = {k: int(v) for k, v in (o.split("=") for o in a.opts)}
    open(a.o, "w").write(gen(a.debug, opt))
```

```python
import sys, argparse, struct

NAME = "parallel_sum__grouped_kv_mqa__dense_activation_relu__prompt"

REC = 2112
HALF = 32 * REC
R1, R2, R3 = 0, HALF, 2 * HALF
RING = 6144
CNT = R3 + 4 * RING
(C_KVDONE, C_KVST, C_QD, C_H1, C_G1, C_H2, C_WQ, C_H1B, C_ADONE, C_H1C, C_PUB, C_XN, C_WQ2,
 C_AD0) = range(0, 56, 4)
LDS_BYTES = 163840
XP = 1040
PP = 272
PIMG = 64 * PP
WS_KV = 0
WS_KVF = 0x40000
WS_HO = 0x80000
HO_RB = 144 * 2048
WS_DBG = 0xA00000
WS_HF = 0xC00000
WS_BYTES = 0x1000000
QSCALE = 0.25 * 1.4426950408889634
SPIN = 1 << 15
NREP = 16

def f2u(x): return struct.unpack("<I", struct.pack("<f", x))[0]

S_X, S_OUT, S_WS, S_WO, S_W2, S_WQ, S_WKV, S_W1, S_DBG = 4, 8, 12, 16, 20, 24, 28, 32, 36
POLL = 24
sKVO = 3
sW, sRB, sCB = 40, 41, 42
sT0, sT1, sT2, sRG = 43, 44, 45, 46
sSPIN, sSO, sSTEP, sIT, sHO, sFL, sRETRY = 47, 48, 49, 50, 51, 52, 53
sM = 54
sJ, sMT = 56, 57
sPC = 58
sOO = 59
sSTAMP = 64
sIDX, sPR = 96, 97
sTM = 98
sN = 100

vLANE, vC, vONE, vT, vT1, vT2, vT3 = 1, 2, 3, 4, 5, 6, 7
vL16 = 8
vDA, vDB = 9, 10
vXF, vWF = 11, 12
vXO = 13
vN, vZ = 14, 15
vXR = 16
vROW, vCOL, vC16, vTR, vHB = 20, 21, 22, 23, 24
vDUM = 210

def srd(b): return f"s[{b}:{b+3}]"
def vr(b, n=1): return f"v{b}" if n == 1 else f"v[{b}:{b+n-1}]"


class G:
    def __init__(self, debug):
        self.L = []
        self.tail = []
        self.debug = debug
        self.nlab = 0

    def __call__(self, s):
        for line in s.split("\n"):
            line = line.strip()
            if line:
                self.L.append(line if line.endswith(":") else "    " + line)

    def lab(self, p="L"):
        self.nlab += 1
        return f"{p}_{self.nlab}"

    def stamp(self, i, cyc=False):
        if self.debug:
            self(f"{'s_memtime' if cyc else 's_memrealtime'} s[{sSTAMP+2*i}:{sSTAMP+2*i+1}]")

    def nop(self, n):
        while n > 0:
            k = min(n, 16)
            self(f"s_nop {k-1}")
            n -= k

    def out_of_line(self, fn):
        main = self.L; self.L = self.tail
        fn()
        self.L = main

    def arrive(self, c, v=vC):
        self(f"""s_mov_b64 exec, 1
        ds_add_u32 v{v}, v{vONE} offset:{c}
        s_mov_b64 exec, -1""")

    def wait_cnt(self, c, target, sleep=0, v=vC):
        l = self.lab("WC"); d = self.lab("WD")
        self(f"""s_mov_b32 s{sSPIN}, {SPIN}
        {l}:
        ds_read_b32 v{vT}, v{v} offset:{c}
        s_waitcnt lgkmcnt(0)
        v_readfirstlane_b32 s{sT0}, v{vT}
        s_sub_u32 s{sSPIN}, s{sSPIN}, 1
        s_cbranch_scc1 {d}
        s_cmp_ge_u32 s{sT0}, {target}
        s_cbranch_scc1 {d}""")
        if sleep: self(f"s_sleep {sleep}")
        self(f"""s_branch {l}
        {d}:""")

    def poll_issue(self, n, soff, stride):
        for i in range(n):
            self(f"s_buffer_load_dword s{POLL+i}, {srd(S_WS)}, s{soff} offset:{128*i}")
        self(f"s_add_u32 s{soff}, s{soff}, {stride}")

    def poll_flags(self, n, soff, stride, sleep=1, issued=False):
        l = self.lab("PF"); d = self.lab("PD"); v = self.lab("PV"); c = self.lab("PC")
        self(f"s_mov_b32 s{sSPIN}, {NREP-2}")
        if issued: self(f"s_branch {c}")
        self(f"{l}:")
        self.poll_issue(n, soff, stride)
        self(f"""{c}:
        s_waitcnt lgkmcnt(0)
        s_xor_b64 s[{sM}:{sM+1}], s[{POLL}:{POLL+1}], s[{sN}:{sN+1}]""")
        for p in range(POLL + 2, POLL + n, 2):
            self(f"""s_xor_b64 s[{p}:{p+1}], s[{p}:{p+1}], s[{sN}:{sN+1}]
            s_or_b64 s[{sM}:{sM+1}], s[{sM}:{sM+1}], s[{p}:{p+1}]""")
        self(f"s_cbranch_scc0 {d}")
        if sleep: self(f"s_sleep {sleep}")
        self(f"""s_sub_u32 s{sSPIN}, s{sSPIN}, 1
        s_cbranch_scc0 {l}
        v_min_u32 v{vT1}, {n-1}, v{vLANE}
        v_lshlrev_b32 v{vT1}, 7, v{vT1}
        s_mov_b32 s{sSPIN}, {SPIN}
        {v}:
        buffer_load_dword v{vT}, v{vT1}, {srd(S_WS)}, s{soff} offen sc1
        s_waitcnt vmcnt(0)
        v_cmp_eq_u32 vcc, s{sN}, v{vT}
        s_sub_u32 s{sSPIN}, s{sSPIN}, 1
        s_cbranch_scc1 {d}
        s_cmp_eq_u64 vcc, -1
        s_cbranch_scc1 {d}
        s_sleep 4
        s_branch {v}
        {d}:""")

    def publish(self, soff, shift):
        self(f"""v_lshlrev_b32 v{vT}, {shift}, v{vLANE}
        s_mov_b64 exec, {(1 << NREP) - 1}
        buffer_store_dword v{vN}, v{vT}, {srd(S_WS)}, s{soff} offen sc1
        s_mov_b64 exec, -1""")

    def load_nonce(self):
        self(f"buffer_load_dword v{vN}, v{vZ}, {srd(S_DBG)}, 0 offen sc1")

    def get_nonce(self):
        l = self.lab("GN"); d = self.lab("GD")
        self(f"""s_mov_b32 s{sSPIN}, {SPIN}
        {l}:
        v_readfirstlane_b32 s{sN}, v{vN}
        s_sub_u32 s{sSPIN}, s{sSPIN}, 1
        s_cbranch_scc1 {d}
        s_cmp_lg_u32 s{sN}, 0
        s_cbranch_scc1 {d}""")
        self.load_nonce()
        self(f"""s_waitcnt vmcnt(0)
        s_branch {l}
        {d}:
        s_mov_b32 s{sN+1}, s{sN}""")

    def fill(self, slot, sb):
        self(f"""s_add_u32 m0, s{sRG}, {slot*2048}
        s_nop 0
        buffer_load_dwordx4 v{vDA}, {srd(sb)}, s{sSO} offen {self.ff} lds
        buffer_load_dwordx4 v{vDB}, {srd(sb)}, s{sSO} offen offset:1024 {self.ff} lds
        s_add_u32 s{sSO}, s{sSO}, s{sSTEP}""")

    def kv_dma(self, q, sidx, part=3):
        base = q * 16 * REC + (16384 if part == 2 else 0)
        self(f"""s_lshl_b32 s{sT0}, s{sidx}, 12
        s_add_u32 s{sSO}, s{sT0}, {WS_KV + base}
        s_add_u32 m0, s{sT0}, {base}""")
        for gi in range(2 if part == 3 else 1):
            self("s_nop 0")
            for i in range(4):
                self(f"buffer_load_dwordx4 v{vL16}, {srd(S_WS)}, s{sSO} offen offset:{i*1024} sc1 lds")
            if part == 1: return
            self(f"""s_add_u32 s{sSO}, s{sSO}, 16384
            s_add_u32 m0, m0, 16384""")
        l = self.lab("KD")
        self(f"""s_cmp_lg_u32 s{sidx}, 0
        s_cbranch_scc1 {l}
        buffer_load_dwordx4 v{vL16}, {srd(S_WS)}, s{sSO} offen sc1 lds
        {l}:""")

    def mf(self, D, A, B, first=False):
        self(f"v_mfma_f32_32x32x16_bf16 {vr(D,16)}, {vr(A,4)}, {vr(B,4)}, {'0' if first else vr(D,16)}")


XR = 32
def prologue(g, O):
    g(f"""
    s_cmp_ge_u32 s2, 256
    s_cbranch_scc1 L_END
    s_load_dwordx2 s[{S_X}:{S_X+1}], s[0:1], 0
    s_load_dwordx2 s[{S_WQ}:{S_WQ+1}], s[0:1], 8
    s_load_dwordx4 s[60:63], s[0:1], 16
    s_load_dwordx2 s[{S_WO}:{S_WO+1}], s[0:1], 32
    s_load_dwordx2 s[{S_W1}:{S_W1+1}], s[0:1], 48
    s_load_dwordx2 s[{S_W2}:{S_W2+1}], s[0:1], 56
    s_load_dwordx2 s[{S_OUT}:{S_OUT+1}], s[0:1], 64
    s_load_dwordx2 s[{S_DBG}:{S_DBG+1}], s[0:1], 72
    s_load_dwordx2 s[{S_WS}:{S_WS+1}], s[0:1], 80
    s_memrealtime s[{sTM}:{sTM+1}]
    """)
    g.stamp(0)
    g(f"""
    s_getpc_b64 s[{sPC}:{sPC+1}]
    L_PC:
    v_lshrrev_b32 v{vT}, 6, v0
    v_and_b32 v{vLANE}, 63, v0
    s_lshr_b32 s{sIDX}, s2, 3
    v_readfirstlane_b32 s{sW}, v{vT}
    """)
    if O("pfc", 1):
        g(f"""
        v_lshlrev_b32 v27, 7, v0
        v_min_u32 v27, L_CODE_END-L_PC-4, v27
        v_and_b32 v27, -4, v27
        v_mov_b32 v29, s{sPC+1}
        v_add_co_u32 v28, vcc, s{sPC}, v27
        s_cmp_ge_u32 s{sW}, 4
        s_cbranch_scc1 L_NPC
        v_addc_co_u32 v29, vcc, 0, v29, vcc
        global_load_dword v{vDUM}, v[28:29], off
        L_NPC:
        """)
    if O("rbmap", 0):
        rbcode = f"""s_lshr_b32 s{sT0}, s{sT0}, 1
        s_and_b32 s{sRB}, s{sIDX}, 7
        s_lshl_b32 s{sRB}, s{sRB}, 2"""
    else:
        rbcode = f"""s_lshl_b32 s{sT0}, s{sT0}, 2
        s_and_b32 s{sRB}, s{sIDX}, 7"""
    g(f"""
    s_lshr_b32 s{sPR}, s{sIDX}, 3
    s_and_b32 s{sT0}, s2, 1
    s_lshl_b32 s{sT0}, s{sT0}, 2
    s_add_u32 s{sCB}, s{sT0}, s{sPR}
    s_and_b32 s{sT0}, s2, 6
    {rbcode}
    s_add_u32 s{sRB}, s{sRB}, s{sT0}
    s_mov_b32 s{S_X+2}, 2097152
    s_mov_b32 s{S_X+3}, 0x20000
    v_lshrrev_b32 v{vT}, 3, v{vLANE}
    v_and_b32 v{vT1}, 7, v{vLANE}
    v_lshlrev_b32 v{vT2}, 10, v{vT}
    v_lshl_or_b32 v{vT2}, v{vT1}, 4, v{vT2}
    s_and_b32 s{sT2}, s{sPR}, 1
    s_lshl_b32 s{sT2}, s{sT2}, 2
    s_xor_b32 s{sSTEP}, s{sW}, s{sT2}
    s_lshl_b32 s{sT0}, s{sRB}, 16
    s_lshl_b32 s{sT1}, s{sSTEP}, 13
    s_add_u32 s{sT1}, s{sT0}, s{sT1}
    s_mov_b32 s{S_DBG+2}, 256
    s_mov_b32 s{S_DBG+3}, 0x20000
    v_mov_b32 v{vZ}, 0
    v_lshlrev_b32 v{vL16}, 4, v{vLANE}
    s_sub_u32 s{sJ}, s{sW}, 4
    s_mov_b32 s{S_WKV+2}, 16384
    s_mov_b32 s{S_WKV+3}, 0x20000
    v_lshlrev_b32 v28, 7, v{vLANE}
    v_mov_b32 v{vC}, {CNT}
    v_mov_b32 v{vONE}, 1
    v_lshl_add_u32 v29, v{vLANE}, 2, v{vC}
    ds_write_b32 v29, v{vZ}
    s_cmp_lt_u32 s{sCB}, 4
    s_waitcnt lgkmcnt(0)
    s_barrier
    s_cselect_b32 s{S_WKV}, s60, s62
    s_cselect_b32 s{S_WKV+1}, s61, s63
    s_cmp_lg_u32 s{sPR}, 1
    s_cbranch_scc1 L_PFE
    s_cmp_lg_u32 s{sW}, 0
    s_cbranch_scc1 L_PFE
    s_and_b32 s{sT2}, s{sIDX}, 7
    s_lshl_b32 s{sT2}, s{sT2}, 11
    s_mov_b64 exec, 0xffff
    buffer_load_dword v{vDUM}, v28, {srd(S_WKV)}, s{sT2} offen
    s_mov_b64 exec, -1
    L_PFE:
    s_or_b32 s{sT0}, s2, s{sW}
    s_cmp_lg_u32 s{sT0}, 0
    s_cbranch_scc1 L_NN
    s_or_b32 s{sT0}, s{sTM}, 1
    v_mov_b32 v{vN}, s{sT0}
    s_mov_b64 exec, 1
    buffer_store_dword v{vN}, v{vZ}, {srd(S_DBG)}, 0 offen sc1
    s_mov_b64 exec, -1
    L_NN:""")
    for i in range(8):
        g(f"buffer_load_dwordx4 {vr(XR+4*i,4)}, v{vT2}, {srd(S_X)}, s{sT1} offen offset:{i*128}")
    g.stamp(1)
    g(f"""
    s_cmp_lt_u32 s{sW}, 4
    s_cbranch_scc1 L_NKV
    s_cmp_lg_u32 s{sPR}, 0
    s_cbranch_scc1 L_NKV
    s_mul_i32 s{sT1}, s{sJ}, 4224
    s_add_u32 m0, s{sT1}, {R3}
    s_lshl_b32 s{sT0}, s{sJ}, 12""")
    for i in range(4):
        g(f"buffer_load_dwordx4 v{vL16}, {srd(S_WKV)}, s{sT0} offen offset:{i*1024} lds")
    g(f"""
    L_NKV:
    s_mov_b32 s{S_WQ+2}, 524288
    s_mov_b32 s{S_WQ+3}, 0x20000
    s_mov_b32 s{S_WO+2}, 524288
    s_mov_b32 s{S_WO+3}, 0x20000
    s_mov_b32 s{S_W1+2}, 1835008
    s_mov_b32 s{S_W1+3}, 0x20000
    s_mov_b32 s{S_W2+2}, 1835008
    s_mov_b32 s{S_W2+3}, 0x20000
    s_mov_b32 s{S_OUT+2}, 2097152
    s_mov_b32 s{S_OUT+3}, 0x20000
    s_mov_b32 s{S_WS+2}, {WS_BYTES}
    s_mov_b32 s{S_WS+3}, 0x20000
    v_lshrrev_b32 v{vHB}, 5, v{vLANE}
    v_bfe_u32 v{vTR}, v{vLANE}, 2, 2
    v_lshl_add_u32 v{vROW}, v{vHB}, 2, v{vTR}
    v_bfe_u32 v25, v{vLANE}, 4, 1
    v_and_b32 v26, 3, v{vLANE}
    v_lshlrev_b32 v{vC16}, 4, v26
    v_lshl_add_u32 v{vCOL}, v25, 6, v{vC16}
    s_mul_i32 s{sT1}, s{sSTEP}, {8*XP}
    s_add_u32 s{sT1}, s{sT1}, {R2}
    v_mul_u32_u24 v{vT3}, {XP}, v{vT}
    v_lshl_add_u32 v{vT3}, v{vT1}, 4, v{vT3}
    v_add_u32 v{vT3}, s{sT1}, v{vT3}
    s_mul_i32 s{sHO}, s{sRB}, {HO_RB}
    s_add_u32 s{sHO}, s{sHO}, {WS_HO}
    s_lshl_b32 s{sFL}, s{sRB}, 16
    s_add_u32 s{sFL}, s{sFL}, {WS_HF}
    v_lshrrev_b32 v{vXO}, 3, v0
    v_lshlrev_b32 v{vXO}, 10, v{vXO}
    v_lshl_or_b32 v{vXO}, v{vT1}, 4, v{vXO}
    s_lshl_b32 s{sT1}, s{sRB}, 16
    s_lshl_b32 s{sT2}, s{sCB}, 7
    s_add_u32 s{sT1}, s{sT1}, s{sT2}
    v_add_u32 v{vXO}, s{sT1}, v{vXO}
    v_lshlrev_b32 v{vTR}, 6, v{vTR}
    v_lshl_add_u32 v{vTR}, v25, 5, v{vTR}
    v_lshl_add_u32 v{vTR}, v26, 3, v{vTR}
    v_mov_b32 v138, 0
    v_mov_b32 v139, 0
    v_lshrrev_b32 v27, 4, v{vLANE}
    v_and_b32 v28, 15, v{vLANE}
    v_min_u32 v28, 13, v28
    v_lshlrev_b32 v28, 7, v28
    s_mov_b32 s{sT1}, 3584
    v_mad_u32_u24 v27, v27, s{sT1}, v28
    s_sub_u32 s{sT0}, s{sIDX}, 8
    s_lshl_b32 s{sT0}, s{sT0}, 2
    s_and_b32 s{sT2}, s{sW}, 3
    s_add_u32 s{sT0}, s{sT0}, s{sT2}
    s_mul_i32 s{sT0}, s{sT0}, {4*3584}
    s_lshr_b32 s{sT1}, s{sCB}, 2
    s_mul_i32 s{sT1}, s{sT1}, 1792
    s_add_u32 s{sT0}, s{sT0}, s{sT1}
    v_add_u32 v27, s{sT0}, v27
    s_cmp_ge_u32 s{sW}, 4
    s_cbranch_scc1 L_G_ADDR
    v_lshl_add_u32 v{vDA}, v{vROW}, 10, v{vCOL}
    v_add_u32 v{vDB}, {8*1024-1024}, v{vDA}
    s_lshl_b32 s{sSO}, s{sW}, 16
    s_lshl_b32 s{sT0}, s{sCB}, 7
    s_add_u32 s{sSO}, s{sSO}, s{sT0}
    s_branch L_LN
    L_G_ADDR:
    s_lshr_b32 s{sT1}, s{sCB}, 2
    s_mul_i32 s{sMT}, s{sT1}, 28
    s_lshl_b32 s{sT0}, s{sPR}, 2
    s_add_u32 s{sT0}, s{sT0}, s{sJ}
    s_lshl_b32 s{sT0}, s{sT0}, 1
    s_sub_u32 s{sT0}, s{sT0}, 4
    s_cmp_eq_u32 s{sPR}, 0
    s_cselect_b32 s{sT0}, s{sJ}, s{sT0}
    s_add_u32 s{sMT}, s{sMT}, s{sT0}
    s_lshl_b32 s{sSO}, s{sMT}, 6
    s_mov_b32 s{sT1}, 3584
    v_mad_u32_u24 v{vDA}, v{vROW}, s{sT1}, v{vCOL}
    v_add_u32 v{vDB}, {8*3584-1024}, v{vDA}
    s_mov_b32 s{sSTEP}, {16*3584}
    s_mul_i32 s{sRG}, s{sJ}, {RING}
    s_add_u32 s{sRG}, s{sRG}, {R3}
    s_cmp_lg_u32 s{sPR}, 0
    s_cbranch_scc1 {'L_G_EARLY' if O('efill', 1) else 'L_LN'}
    v_lshrrev_b32 v28, 2, v{vLANE}
    v_mad_u32_u24 v{vDA}, v28, s{sT1}, v{vC16}
    v_add_u32 v{vDB}, {16*3584-1024}, v{vDA}
    s_mov_b32 s{sSTEP}, {32*3584}
    v_and_b32 v142, 15, v{vLANE}
    v_lshrrev_b32 v143, 4, v{vLANE}
    s_mul_i32 s{sT0}, s{sJ}, {16*XP}
    s_add_u32 s{sT0}, s{sT0}, {R2}
    v_mul_u32_u24 v136, {XP}, v142
    v_lshl_add_u32 v136, v143, 8, v136
    v_add_u32 v136, s{sT0}, v136
    v_mul_u32_u24 v137, 4224, v143
    v_lshl_add_u32 v137, v142, 3, v137
    v_add_u32 v137, {R3}, v137
    ; K: ((g&1)*32 + 16*(j&1) + (l&15))*16 + (g>>1)*8 ; V: 1024 + (j&1)*544 + (g>>1)*256 + d*16 + (g&1)*8
    v_and_b32 v140, 1, v143
    v_lshrrev_b32 v141, 1, v143
    v_lshlrev_b32 v142, 4, v142
    v_lshl_add_u32 v138, v140, 9, v142
    v_lshl_add_u32 v138, v141, 3, v138
    v_lshl_add_u32 v139, v141, 8, v142
    v_lshl_add_u32 v139, v140, 3, v139
    s_lshl_b32 s{sT0}, s{sRB}, 1
    s_lshr_b32 s{sT1}, s{sJ}, 1
    s_add_u32 s{sT0}, s{sT0}, s{sT1}
    s_mul_i32 s{sKVO}, s{sT0}, {REC}
    s_and_b32 s{sT1}, s{sJ}, 1
    s_lshl_b32 s{sT0}, s{sT1}, 8
    s_mul_i32 s{sT1}, s{sT1}, 544
    s_add_u32 s{sT1}, s{sT1}, 1024
    s_cmp_eq_u32 s{sCB}, 0
    s_cselect_b32 s{sT0}, s{sT0}, s{sT1}
    s_cselect_b64 vcc, -1, 0
    s_add_u32 s{sKVO}, s{sKVO}, s{sT0}
    v_cndmask_b32 v138, v139, v138, vcc
    v_lshlrev_b32 v139, 3, v{vLANE}
    v_mov_b32 v140, 0x3f803f80
    v_cmp_gt_u32 vcc, 2, v{vLANE}
    s_nop 1
    v_cndmask_b32 v140, 0, v140, vcc
    v_mov_b32 v141, v140
    """)


def pf_w1(g):
    g(f"""s_mov_b32 s{sT0}, {384*3584}
    buffer_load_dword v{vDUM}, v27, {srd(S_W1)}, 0 offen
    buffer_load_dword v{vDUM}, v27, {srd(S_W1)}, s{sT0} offen""")


def layernorm(g, O):
    F = 64
    def stats(after, nonce):
        for i in range(8):
            g(f"s_waitcnt vmcnt({after + 7 - i})")
            if i == 7:
                g.stamp(2)
                if nonce:
                    g(f"""s_cmp_ge_u32 s{sW}, 4
                    s_cbranch_scc1 L_NNL""")
                    g.load_nonce()
                    g("L_NNL:")
            for d in range(4):
                r = XR + 4 * i + d; f = F + 8 * i + 2 * d
                g(f"v_lshlrev_b32 v{f}, 16, v{r}")
                g(f"v_and_b32 v{f+1}, 0xffff0000, v{r}")
            for d in range(4):
                f = F + 8 * i + 2 * d
                a = 128 + 2 * (d % 2); q = 132 + 2 * (d % 2)
                if i == 0 and d < 2:
                    g(f"v_pk_mul_f32 {vr(q,2)}, {vr(f,2)}, {vr(f,2)}")
                    g(f"v_mov_b64 {vr(a,2)}, {vr(f,2)}")
                else:
                    g(f"v_pk_add_f32 {vr(a,2)}, {vr(a,2)}, {vr(f,2)}")
                    g(f"v_pk_fma_f32 {vr(q,2)}, {vr(f,2)}, {vr(f,2)}, {vr(q,2)}")
    if O("efill", 1):
        def early():
            g("L_G_EARLY:")
            for s_ in range(3): g.fill(s_, S_W1)
            n = 6
            if O("efill", 1) == 2:
                pf_w1(g); n += 2
            stats(n, False)
            g("s_branch L_LN2")
        g.out_of_line(early)
    g("L_LN:")
    stats(0, True)
    g(f"""L_LN2:
    v_pk_add_f32 v[128:129], v[128:129], v[130:131]
    v_pk_add_f32 v[132:133], v[132:133], v[134:135]
    v_add_f32 v128, v128, v129
    v_add_f32 v132, v132, v133
    s_nop 1
    v_add_f32_dpp v128, v128, v128 quad_perm:[1,0,3,2] row_mask:0xf bank_mask:0xf
    v_add_f32_dpp v132, v132, v132 quad_perm:[1,0,3,2] row_mask:0xf bank_mask:0xf
    s_nop 1
    v_add_f32_dpp v128, v128, v128 quad_perm:[2,3,0,1] row_mask:0xf bank_mask:0xf
    v_add_f32_dpp v132, v132, v132 quad_perm:[2,3,0,1] row_mask:0xf bank_mask:0xf
    s_nop 1
    v_add_f32_dpp v128, v128, v128 row_half_mirror row_mask:0xf bank_mask:0xf
    v_add_f32_dpp v132, v132, v132 row_half_mirror row_mask:0xf bank_mask:0xf
    v_mul_f32 v128, {f2u(1.0/512):#x}, v128      ; mean
    v_mul_f32 v132, {f2u(1.0/512):#x}, v132      ; E[x^2]
    v_fma_f32 v132, -v128, v128, v132            ; var
    v_max_f32 v132, 0, v132
    v_add_f32 v132, {f2u(1e-5):#x}, v132
    v_rsq_f32 v132, v132
    s_nop 0
    v_mul_f32_e64 v128, -v128, v132              ; -mean*rstd
    """)
    for i in range(8):
        for d in range(4):
            f = F + 8 * i + 2 * d
            g(f"v_pk_fma_f32 {vr(f,2)}, {vr(f,2)}, v[132:133], v[128:129] op_sel_hi:[1,0,0]")
        for d in range(4):
            f = F + 8 * i + 2 * d
            g(f"v_cvt_pk_bf16_f32 v{XR+4*i+d}, v{f}, v{f+1}")
        g(f"ds_write_b128 v{vT3}, {vr(XR+4*i,4)} offset:{i*128}")
    g("s_waitcnt lgkmcnt(0)")
    g.arrive(C_XN)
    g.stamp(3)


ACC = 128
def g_role(g, O):
    g(f"""s_cmp_lt_u32 s{sW}, 4
    s_cbranch_scc1 L_A_PRE
    s_cmp_lg_u32 s{sPR}, 0
    s_cbranch_scc1 L_G_NP
    s_setprio 3""")
    g.wait_cnt(C_XN, 8)
    g.stamp(4)
    def kv_chain(isK):
        FB = 32; NS = 5
        def rd(ks):
            b = FB + 8 * (ks % NS)
            g(f"ds_read_b128 {vr(b,4)}, v136 offset:{ks*16}")
            g(f"ds_read_b64_tr_b16 {vr(b+4,2)}, v137 offset:{ks*256}")
            g(f"ds_read_b64_tr_b16 {vr(b+6,2)}, v137 offset:{ks*256+128}")
        for ks in range(4): rd(ks)
        for ks in range(16):
            b = FB + 8 * (ks % NS)
            g(f"s_waitcnt lgkmcnt({min(9, 3*(15-ks))})")
            c = "0" if ks == 0 else vr(ACC, 4)
            if isK: g(f"v_mfma_f32_16x16x32_bf16 {vr(ACC,4)}, {vr(b+4,4)}, {vr(b,4)}, {c}")
            else:   g(f"v_mfma_f32_16x16x32_bf16 {vr(ACC,4)}, {vr(b,4)}, {vr(b+4,4)}, {c}")
            if ks + 4 < 16: rd(ks + 4)
    g(f"""s_cmp_lg_u32 s{sCB}, 0
    s_cbranch_scc1 L_V""")
    kv_chain(True)
    g("""s_nop 1
    s_branch L_KVS
    L_V:""")
    kv_chain(False)
    g(f"""s_mov_b64 exec, 0xf
    buffer_store_dwordx2 v[140:141], v139, {srd(S_WS)}, s{sKVO} offen offset:512 sc1
    s_mov_b64 exec, -1
    L_KVS:
    s_nop 5
    v_cvt_pk_bf16_f32 v132, v128, v129
    v_cvt_pk_bf16_f32 v133, v130, v131
    buffer_store_dwordx2 v[132:133], v138, {srd(S_WS)}, s{sKVO} offen sc1""")
    g.load_nonce()
    g.arrive(C_KVDONE)
    g.stamp(11)
    g(f"""s_lshl_b32 s{sT1}, s{sRB}, 8
    s_lshl_b32 s{sT2}, s{sCB}, 5
    s_add_u32 s{sT1}, s{sT1}, s{sT2}
    s_add_u32 s{sT1}, s{sT1}, {WS_KVF}
    s_waitcnt vmcnt(0)
    s_mov_b64 exec, 1
    ds_add_rtn_u32 v{vT}, v{vC}, v{vONE} offset:{C_KVST}
    s_mov_b64 exec, -1""")
    g.get_nonce()
    g(f"""s_waitcnt lgkmcnt(0)
    v_readfirstlane_b32 s{sT0}, v{vT}
    s_nop 3
    s_cmp_lg_u32 s{sT0}, 3
    s_cbranch_scc1 L_G_NF""")
    g.publish(sT1, 13)
    g.arrive(C_PUB)
    g("L_G_NF:")
    g.stamp(10)
    g.wait_cnt(C_PUB, 1)
    if O("efill", 1):
        for s_ in range(3): g.fill(s_, S_W1)
    g(f"""L_G_NP:
    s_setprio {O('gprio', 2)}""")
    g.load_nonce()
    if not O("efill", 1):
        for s_ in range(3): g.fill(s_, S_W1)
    g.wait_cnt(C_XN, 8)
    def probe(k):
        if O("probe", 0):
            g(f"""s_memrealtime s[60:61]
            s_waitcnt lgkmcnt(0)
            v_writelane_b32 v31, s60, {k}""")
    def gemm1(n, rd, mfs):
        g(f"s_waitcnt vmcnt({5 if O('efill', 1) else 4})")
        rd(0)
        g("s_waitcnt lgkmcnt(0)")
        g.fill(0, S_W1)
        for k in range(n):
            if k + 1 < n:
                extra = 1 if (O("efill", 1) and k < 2) else 0
                g(f"s_waitcnt vmcnt({min(4, 2*(n-1-(k+1))) + extra})")
                rd(k + 1)
            mfs(k)
            if k + 1 < n:
                g("s_waitcnt lgkmcnt(0)")
                probe(k)
                if k + 4 < n: g.fill((k + 1) % 3, S_W1)
            if k + 2 == n:
                g.arrive(C_G1)
                g(f"""s_lshl_b32 s{sIT}, s{sJ}, 10
                s_add_u32 s{sIT}, s{sIT}, {WS_KVF + 4096}""")
                g.poll_issue(8, sIT, 8192)
    def h_cvt(mt):
        for nt in range(2):
            a = ACC + 32*mt + 16*nt; o = 64 + 8 * (2*mt + nt)
            for i in range(8):
                g(f"v_cvt_pk_bf16_f32 v{o+i}, v{a+2*i}, v{a+2*i+1}")
            for i in range(8):
                g(f"v_pk_max_i16 v{o+i}, v{o+i}, 0")
    def h_store(mt, sM_):
        for nt in range(2):
            o = 64 + 8 * (2*mt + nt)
            g(f"buffer_store_dwordx4 {vr(o,4)}, v{vL16}, {srd(S_WS)}, s{sM_} offen offset:{nt*1024} sc1")
            g(f"buffer_store_dwordx4 {vr(o+4,4)}, v{vL16}, {srd(S_WS)}, s{sM_} offen offset:{2048+nt*1024} sc1")
    g(f"""
    v_and_b32 v25, 31, v{vLANE}
    v_mul_u32_u24 v{vXF}, {XP}, v25
    v_lshl_add_u32 v{vXF}, v{vHB}, 4, v{vXF}
    v_add_u32 v{vXF}, {R2}, v{vXF}
    s_cmp_eq_u32 s{sPR}, 0
    s_cbranch_scc1 L_G1_N
    v_lshl_add_u32 v{vWF}, v{vHB}, 10, v{vTR}
    v_add_u32 v{vWF}, s{sRG}, v{vWF}
    """)
    FS = [32, 48]
    def rd_w(ks):
        b = FS[ks % 2]; sl = (ks % 3) * 2048
        g(f"ds_read_b128 {vr(b,4)}, v{vXF} offset:{ks*32}")
        g(f"ds_read_b128 {vr(b+4,4)}, v{vXF} offset:{32*XP+ks*32}")
        for mt in range(2):
            for i in range(2):
                g(f"ds_read_b64_tr_b16 {vr(b+8+4*mt+2*i,2)}, v{vWF} offset:{sl+mt*256+i*512}")
    def mf_w(ks):
        b = FS[ks % 2]
        for mt in range(2):
            for nt in range(2):
                g.mf(ACC + 32*mt + 16*nt, b + 8 + 4*mt, b + 4*nt, ks == 0)
                if ks >= O("k0", 16) and (mt, nt) != (1, 1): g.nop(O("gap1", 8))
    gemm1(32, rd_w, mf_w)
    if O("probe", 0):
        g(f"""s_lshl_b32 s{sT0}, s2, 2
        s_add_u32 s{sT0}, s{sT0}, s{sJ}
        s_lshl_b32 s{sT0}, s{sT0}, 8
        s_add_u32 s{sT0}, s{sT0}, {WS_DBG + 0x80000}
        v_lshlrev_b32 v30, 2, v{vLANE}
        buffer_store_dword v31, v30, {srd(S_WS)}, s{sT0} offen""")
    g.nop(10)
    h_cvt(0); h_cvt(1)
    g(f"""s_branch L_G1_DONE
    L_G1_N:
    v_lshl_add_u32 v{vWF}, v{vHB}, 9, v{vTR}
    v_add_u32 v{vWF}, s{sRG}, v{vWF}""")
    FN = [32, 56]
    def rd_n(sl_):
        b = FN[sl_ % 2]; so = (sl_ % 3) * 2048
        for sub in range(2):
            ks = 2 * sl_ + sub; bb = b + 12 * sub
            g(f"ds_read_b128 {vr(bb,4)}, v{vXF} offset:{ks*32}")
            g(f"ds_read_b128 {vr(bb+4,4)}, v{vXF} offset:{32*XP+ks*32}")
            for i in range(2):
                g(f"ds_read_b64_tr_b16 {vr(bb+8+2*i,2)}, v{vWF} offset:{so+sub*1024+i*256}")
    def mf_n(sl_):
        b = FN[sl_ % 2]
        for sub in range(2):
            for nt in range(2):
                g.mf(ACC + 16*nt, b + 12*sub + 8, b + 12*sub + 4*nt, sl_ == 0 and sub == 0)
                if sl_ >= O("k0n", 8) and (sub, nt) != (1, 1): g.nop(O("gap1", 8))
    gemm1(16, rd_n, mf_n)
    g.nop(12)
    h_cvt(0)
    g("L_G1_DONE:")
    g.stamp(6)
    NK2 = 28
    g(f"""v_lshl_add_u32 v{vDA}, v{vROW}, 10, v{vCOL}
    v_add_u32 v{vDB}, {8*1024-1024}, v{vDA}
    s_mov_b32 s{sSTEP}, 16384
    v_lshl_add_u32 v{vWF}, v{vHB}, 9, v{vTR}
    v_add_u32 v{vWF}, s{sRG}, v{vWF}""")
    g.get_nonce()
    g.poll_flags(8, sIT, 8192, sleep=4, issued=True)
    g.arrive(C_G1)
    g.wait_cnt(C_QD, 4, sleep=2)
    g.wait_cnt(C_G1, 8, sleep=1)
    g.kv_dma(2, sJ); g.kv_dma(3, sJ)
    g(f"""s_lshl_b32 s{sT0}, s{sMT}, 12
    s_add_u32 s{sT1}, s{sT0}, s{sHO}
    s_add_u32 s{sT2}, s{sT1}, 4096
    s_waitcnt vmcnt(0)""")
    g.arrive(C_H2)
    g.stamp(5)
    h_store(0, sT1)
    g(f"""s_cmp_eq_u32 s{sPR}, 0
    s_cbranch_scc1 L_HS1""")
    h_store(1, sT2)
    g(f"""L_HS1:
    v_lshrrev_b32 v100, 2, v{vLANE}
    v_and_b32 v{vT}, 3, v{vLANE}
    v_lshlrev_b32 v{vT}, 7, v{vT}
    v_and_b32 v101, 3, v100
    v_lshl_add_u32 v100, v100, 10, v{vT}
    v_lshl_add_u32 v101, v101, 10, v{vT}
    s_lshr_b32 s60, s{sCB}, 2
    s_lshl_b32 s60, s60, 9
    s_mul_i32 s{sT0}, s{sIDX}, {56*1024}
    s_lshl_b32 s{sT2}, s{sJ}, 14
    s_add_u32 s{sT0}, s{sT0}, s{sT2}
    s_add_u32 s{sT0}, s{sT0}, s60
    v_add_u32 v100, s{sT0}, v100
    s_lshl_b32 s{sT0}, s{sIDX}, 14
    s_lshl_b32 s{sT2}, s{sJ}, 12
    s_add_u32 s{sT0}, s{sT0}, s{sT2}
    s_add_u32 s{sT0}, s{sT0}, s60
    v_add_u32 v101, s{sT0}, v101
    s_lshl_b32 s{sT1}, s{sCB}, 9
    s_lshl_b32 s{sT2}, s{sJ}, 7
    s_add_u32 s{sT1}, s{sT1}, s{sT2}
    s_add_u32 s{sT1}, s{sT1}, s{sFL}""")
    g.wait_cnt(C_H1C, 4, sleep=2)
    g("s_waitcnt vmcnt(0)")
    g.publish(sT1, 12)
    if O("pf2", 1):
        g(f"""buffer_load_dword v{vDUM}, v100, {srd(S_W2)}, 0 offen
        buffer_load_dword v{vDUM}, v101, {srd(S_WO)}, 0 offen""")
    ND = O("nd", 10)
    NT = NK2 + 8
    def fill2(t):
        if t == 0:
            g(f"""s_lshl_b32 s{sSO}, s{sJ}, 17
            s_lshl_b32 s{sT0}, s{sCB}, 7
            s_add_u32 s{sSO}, s{sSO}, s{sT0}""")
        if t == 8:
            g(f"""s_mul_i32 s{sSO}, s{sJ}, {NK2*16384}
            s_lshl_b32 s{sT0}, s{sCB}, 7
            s_add_u32 s{sSO}, s{sSO}, s{sT0}""")
        g.fill(t % 3, S_WO if t < 8 else S_W2)
    NH = O("nh", 4)
    HB = [96 + 8*i for i in range(NH)]
    WB = [32, 40]
    WO = 192
    sHS = sIT
    def ldh(ks):
        b = HB[ks % NH]
        g(f"buffer_load_dwordx4 {vr(b,4)}, v{vL16}, {srd(S_WS)}, s{sHS} offen sc1")
        g(f"buffer_load_dwordx4 {vr(b+4,4)}, v{vL16}, {srd(S_WS)}, s{sHS} offen offset:1024 sc1")
        g(f"s_add_u32 s{sHS}, s{sHS}, 2048")
    def rd2(t):
        b = WO + 8 * t if t < 8 else WB[t % 2]; sl = (t % 3) * 2048
        for mt in range(2):
            for i in range(2):
                g(f"ds_read_b64_tr_b16 {vr(b+4*mt+2*i,2)}, v{vWF} offset:{sl+mt*256+i*1024}")
    order = []
    def issued(tag, n): order.extend([tag] * n)
    def wait_for(tag):
        last = max(i for i, t in enumerate(order) if t == tag)
        g(f"s_waitcnt vmcnt({len(order) - 1 - last})")
    for t in range(3):
        fill2(t); issued(("w", t), 2)
    g.stamp(7)
    if O("gidle", 0): g("s_branch L_G_SKIP")
    wait_for(("w", 0))
    rd2(0)
    g("s_waitcnt lgkmcnt(0)")
    fill2(3); issued(("w", 3), 2)
    for t in range(NT):
        ks = t - 8
        if t == 7:
            g(f"""s_and_b32 s{sT0}, s{sJ}, 2
            s_add_u32 s{sT0}, s{sT0}, s{sJ}
            s_lshl_b32 s{sT0}, s{sT0}, 9
            s_add_u32 s{sT1}, s{sFL}, s{sT0}""")
            g.poll_flags(12, sT1, 4096, sleep=8)
            g.stamp(8)
            g(f"""s_setprio {O('gprio2', 0)}
            s_mul_i32 s{sHS}, s{sJ}, {NK2*2048}
            s_add_u32 s{sHS}, s{sHS}, s{sHO}""")
            for k in range(NH - 1):
                ldh(k); issued(("h", k), 2)
        if ND and ks == NK2 - ND:
            g(f"buffer_load_dwordx4 {vr(vXR,4)}, v{vXO}, {srd(S_X)}, 0 offen"); issued(("x", 0), 1)
            g.stamp(9)
            g(f"""s_lshl_b32 s{sT1}, s{sJ}, 2
            v_add_u32 v25, s{sT1}, v{vC}""")
            g.wait_cnt(C_AD0, 1, sleep=2, v=25)
            g("s_setprio 3")
        if t + 1 < NT:
            wait_for(("w", t + 1))
            rd2(t + 1)
        if ks >= 0:
            if ks + NH - 1 < NK2:
                ldh(ks + NH - 1); issued(("h", ks + NH - 1), 2)
            wait_for(("h", ks))
            b = WB[t % 2]; hb_ = HB[ks % NH]
            for mt in range(2):
                for nt in range(2):
                    g.mf(ACC + 32*mt + 16*nt, b + 4*mt, hb_ + 4*nt, ks == 0)
                    if (mt, nt) != (1, 1) and ks < NK2 - ND: g.nop(O("gap2", 0))
        if t + 1 < NT:
            g("s_waitcnt lgkmcnt(0)")
            if t + 4 < NT:
                fill2(t + 4); issued(("w", t + 4), 2)
    if not ND:
        g(f"buffer_load_dwordx4 {vr(vXR,4)}, v{vXO}, {srd(S_X)}, 0 offen")
        g.stamp(9)
    g(f"""L_G_SKIP:
    s_lshl_b32 s{sT2}, s{sJ}, 14
    s_add_u32 s{sT2}, s{sT2}, s{sHO}
    s_add_u32 s{sT1}, s{sT2}, {112*2048}
    s_add_u32 s{sT2}, s{sT1}, 4096
    s_add_u32 s60, s{sT1}, 8192
    s_add_u32 s61, s{sT1}, 12288
    v_and_b32 v25, 31, v{vLANE}
    v_mul_u32_u24 v25, {PP}, v25
    v_lshl_add_u32 v25, v{vHB}, 4, v25
    s_mul_i32 s{sT0}, s{sJ}, {PIMG}
    v_add_u32 v25, s{sT0}, v25""")
    g.wait_cnt(C_ADONE, 4, sleep=2)
    g("s_setprio 3")
    if O("odelay", 0): g(f"s_sleep {O('odelay', 0)}")
    g.stamp(12)
    OF = 32
    def o_issue(h):
        for i in range(4):
            so = [sT1, sT2, 60, 61][2*h + i // 2]
            for nt in range(2):
                g(f"buffer_load_dwordx4 {vr(OF+32*h+8*i+4*nt,4)}, v{vL16}, {srd(S_WS)}, s{so} offen offset:{(i%2)*2048+nt*1024} sc1")
    def o_check(h):
        b = OF + 32 * h
        g(f"v_max3_u32 v{vT}, v{b}, v{b+1}, v{b+2}")
        g(f"v_max3_u32 v{vT1}, v{b+3}, v{b+4}, v{b+5}")
        for k in range(6, 32, 4):
            if k + 1 < 32: g(f"v_max3_u32 v{vT}, v{vT}, v{b+k}, v{b+k+1}")
            if k + 3 < 32: g(f"v_max3_u32 v{vT1}, v{vT1}, v{b+k+2}, v{b+k+3}")
        g(f"""v_max_u32 v{vT}, v{vT}, v{vT1}
        v_cmp_eq_u32 vcc, -1, v{vT}
        s_sub_u32 s{sSPIN}, s{sSPIN}, 1
        s_cselect_b64 vcc, 0, vcc
        s_cselect_b32 s{sSPIN}, 0, s{sSPIN}
        s_cmp_lg_u64 vcc, 0""")
    def o_mfma(h):
        for i in range(4*h, 4*h + 4):
            for mt in range(2):
                for nt in range(2):
                    g.mf(ACC + 32*mt + 16*nt, WO + 8*i + 4*mt, OF + 8*i + 4*nt)
    g(f"""s_mov_b32 s{sSPIN}, {SPIN}
    L_OR:""")
    o_issue(0); o_issue(1)
    g("s_waitcnt vmcnt(8)")
    o_check(0)
    g("s_cbranch_scc1 L_OB0")
    o_mfma(0)
    g("""L_OW1:
    s_waitcnt vmcnt(0)""")
    o_check(1)
    g("s_cbranch_scc1 L_OR1")
    o_mfma(1)
    g("L_ODONE:")
    def retry():
        g("L_OR1:")
        o_issue(1)
        g("""s_branch L_OW1
        L_OB0:
        s_waitcnt vmcnt(0)""")
        o_check(1)
        g("s_cbranch_scc1 L_OR")
        o_issue(0)
        o_mfma(1)
        g("""L_OW0:
        s_waitcnt vmcnt(0)""")
        o_check(0)
        g("s_cbranch_scc0 L_OM0")
        o_issue(0)
        g("""s_branch L_OW0
        L_OM0:""")
        o_mfma(0)
        g("s_branch L_ODONE")
    g.out_of_line(retry)
    g.stamp(13)
    g.nop(9)
    for mt in range(2):
        for nt in range(2):
            for q in range(4):
                g(f"ds_write_b128 v25, {vr(ACC+32*mt+16*nt+4*q,4)} offset:{nt*32*PP + mt*128 + q*32}")
    g("s_waitcnt lgkmcnt(0)")


def final(g, O, debug):
    g(f"""L_FINAL:
    v_lshrrev_b32 v{vT}, 3, v0
    v_and_b32 v{vT1}, 7, v0
    v_mul_u32_u24 v{vT}, {PP}, v{vT}
    v_lshl_add_u32 v{vT}, v{vT1}, 5, v{vT}
    s_waitcnt vmcnt(0)""")
    for d in range(4):
        g(f"v_lshlrev_b32 v{64+2*d}, 16, v{vXR+d}")
        g(f"v_and_b32 v{65+2*d}, 0xffff0000, v{vXR+d}")
    g("s_barrier")
    for j in range(4):
        g(f"ds_read_b128 {vr(32+8*j,4)}, v{vT} offset:{j*PIMG}")
        g(f"ds_read_b128 {vr(36+8*j,4)}, v{vT} offset:{j*PIMG+16}")
    for j in range(4):
        g(f"s_waitcnt lgkmcnt({6-2*j})")
        for d in range(4):
            g(f"v_pk_add_f32 {vr(64+2*d,2)}, {vr(64+2*d,2)}, {vr(32+8*j+2*d,2)}")
    for d in range(4):
        g(f"v_cvt_pk_bf16_f32 v{72+d}, v{64+2*d}, v{65+2*d}")
    g(f"buffer_store_dwordx4 v[72:75], v{vXO}, {srd(S_OUT)}, 0 offen{['', ' sc1', ' nt', ' sc0 sc1'][O('outsc', 1)]}")
    if debug:
        g.stamp(14)
        g("s_waitcnt vmcnt(0)")
        g.stamp(15)
        g(f"""s_waitcnt lgkmcnt(0)
        s_lshl_b32 s{sT0}, s2, 3
        s_add_u32 s{sT0}, s{sT0}, s{sW}
        s_lshl_b32 s{sT0}, s{sT0}, 7
        s_add_u32 s{sT0}, s{sT0}, {WS_DBG}
        v_mov_b32 v{vT}, 0""")
        for i in range(16):
            g(f"v_writelane_b32 v{vT}, s{sSTAMP+2*i}, {i}")
        g(f"v_writelane_b32 v{vT}, s{sRETRY}, 16")
        g(f"v_writelane_b32 v{vT}, s{sRB}, 17")
        g(f"v_writelane_b32 v{vT}, s{sCB}, 18")
        g(f"""v_lshlrev_b32 v{vT1}, 2, v{vLANE}
        s_mov_b32 exec_hi, 0
        buffer_store_dword v{vT}, v{vT1}, {srd(S_WS)}, s{sT0} offen""")
        if O("dbgmax", 0):
            g(f"""s_load_dwordx2 s[{S_DBG}:{S_DBG+1}], s[0:1], 72
            s_mov_b32 s{S_DBG+2}, 256
            s_mov_b32 s{S_DBG+3}, 0x20000
            v_subrev_u32 v{vT}, s{sN}, v{vT}
            s_waitcnt lgkmcnt(0)
            s_cmp_lg_u32 s{sW}, {O("dbgmax", 0) - 1}
            s_cbranch_scc1 L_END
            s_mov_b64 exec, 0xfffe
            buffer_atomic_smax v{vT}, v{vT1}, {srd(S_DBG)}, 0 offen""")
    g("""L_END:
    s_endpgm""")


def a_role(g, O, debug):
    FOFF = float(O('foff', 80))
    g(f"""L_A_PRE:
    s_cmp_eq_u32 s{sPR}, 0
    s_cbranch_scc1 L_WQP
    s_setprio 2
    L_WQP:""")
    g.stamp(4)
    g(f"""s_lshl_b32 s{sT0}, s{sW}, 13
    s_add_u32 m0, s{sT0}, {R1}""")
    for i in range(8):
        g(f"""s_nop 0
        buffer_load_dwordx4 v{vDA}, {srd(S_WQ)}, s{sSO} offen lds
        buffer_load_dwordx4 v{vDB}, {srd(S_WQ)}, s{sSO} offen offset:1024 lds""")
        if i < 7:
            k = 13 if i == 3 else 1
            g(f"""s_add_u32 s{sSO}, s{sSO}, {16384*k}
            s_add_u32 m0, m0, {2048*k}""")
    NPF = 0
    if O("efill", 1) != 2:
        pf_w1(g); NPF = 2
    QACC = 144
    g(f"""
    v_and_b32 v25, 31, v{vLANE}
    s_and_b32 s{sT0}, s{sW}, 1
    s_mul_i32 s{sT0}, s{sT0}, {32*XP}
    s_add_u32 s{sT0}, s{sT0}, {R2}
    v_mul_u32_u24 v{vXF}, {XP}, v25
    v_lshl_add_u32 v{vXF}, v{vHB}, 4, v{vXF}
    v_add_u32 v{vXF}, s{sT0}, v{vXF}
    s_lshr_b32 s{sT0}, s{sW}, 1
    s_lshl_b32 s{sT0}, s{sT0}, 8
    v_lshl_add_u32 v{vWF}, v{vHB}, 10, v{vTR}
    v_add_u32 v{vWF}, s{sT0}, v{vWF}
    """)
    xq = lambda ks: (32 + 4 * ks) if ks < 28 else (160 + 4 * (ks - 28))
    g.wait_cnt(C_XN, 8, sleep=1)
    g(f"""s_cmp_lg_u32 s{sPR}, 0
    s_cbranch_scc1 L_XQ""")
    g.wait_cnt(C_KVDONE, 4, sleep=1)
    g("L_XQ:")
    for ks in range(32):
        g(f"ds_read_b128 {vr(xq(ks),4)}, v{vXF} offset:{ks*32}")
        if ks % 8 == 7 and ks < 31: g("s_waitcnt lgkmcnt(4)")
    g(f"""s_waitcnt vmcnt({8 + NPF})
    s_setprio 2""")
    g.arrive(C_WQ)
    g.wait_cnt(C_WQ, 4)
    g.stamp(10)
    FB = 176; NS = 8
    def rdq(ks):
        b = FB + 4 * (ks % NS)
        g(f"ds_read_b64_tr_b16 {vr(b,2)}, v{vWF} offset:{R1+ks*2048}")
        g(f"ds_read_b64_tr_b16 {vr(b+2,2)}, v{vWF} offset:{R1+ks*2048+512}")
    for ks in range(7): rdq(ks)
    for ks in range(32):
        b = FB + 4 * (ks % NS)
        g(f"s_waitcnt lgkmcnt({min(12, 2*(31-ks))})")
        g.mf(QACC, b, xq(ks), ks == 0)
        if ks + 7 == 16:
            g(f"s_waitcnt vmcnt({NPF})")
            g.arrive(C_WQ2)
            g.wait_cnt(C_WQ2, 4)
        if ks + 7 < 32: rdq(ks + 7)
    g.arrive(C_QD)
    g.stamp(5)
    QA, QB = 24, 28
    g.get_nonce()
    g(f"s_mov_b32 s{sIT}, {WS_KVF}")
    g.poll_issue(16, sIT, 8192)
    g(f"s_mov_b32 s{sT0}, {f2u(QSCALE):#x}")
    for i in range(16):
        g(f"v_mul_f32 v{QACC+i}, s{sT0}, v{QACC+i}")
    for i in range(8):
        g(f"v_cvt_pk_bf16_f32 v{QA+i}, v{QACC+2*i}, v{QACC+2*i+1}")
    SA = [32, 48]; SB = [64, 80]; CA, CB_ = 96, 112; OA, OB = 128, 144
    KF = [160, 164]; VF = [168, 176]; vIDX, vKA, vVA = 184, 185, 186
    vAD = 187
    def zero_state():
        for i in range(0, 16, 2):
            g(f"v_mov_b64 {vr(OA+i,2)}, 0"); g(f"v_mov_b64 {vr(OB+i,2)}, 0"); g(f"v_mov_b64 {vr(SB[1]+i,2)}, 0")
        for i in range(0, 8, 2):
            g(f"v_mov_b64 {vr(VF[1]+i,2)}, 0")
    g(f"""
    v_mov_b32 v{vIDX}, 0xdddddddd
    v_mov_b32 v{vKA}, v{vL16}
    v_and_b32 v{vT}, 31, v{vLANE}
    v_lshrrev_b32 v{vT1}, 5, v{vLANE}
    v_lshlrev_b32 v{vT1}, 8, v{vT1}
    v_lshl_add_u32 v{vT1}, v{vT}, 4, v{vT1}
    v_mov_b32 v{vT2}, 528
    v_mov_b32 v{vT3}, 512
    v_and_b32 v{vVA}, 0x1b, v{vT}
    v_cmp_eq_u32 vcc, 16, v{vVA}
    s_nop 1
    v_cndmask_b32 v{vT2}, v{vT2}, v{vT3}, vcc
    v_cmp_gt_u32 vcc, 16, v{vT}
    s_nop 1
    v_cndmask_b32 v{vVA}, v{vT2}, v{vT1}, vcc
    v_add_u32 v{vVA}, 1024, v{vVA}
    s_mov_b32 s{sRETRY}, 0
    s_lshl_b32 s{sT0}, s{sCB}, 13
    s_lshr_b32 s{sT1}, s{sW}, 1
    s_lshl_b32 s{sT1}, s{sT1}, 12
    s_add_u32 s{sT0}, s{sT0}, s{sT1}
    s_and_b32 s{sT1}, s{sW}, 1
    s_lshl_b32 s{sT1}, s{sT1}, 10
    s_add_u32 s{sT0}, s{sT0}, s{sT1}
    s_add_u32 s{sT0}, s{sT0}, s{sHO}
    s_add_u32 s{sOO}, s{sT0}, {112*2048}
    s_lshl_b32 s{sT0}, s{sW}, 2
    v_add_u32 v{vAD}, s{sT0}, v{vC}
    v_mov_b64 v[188:189], -1
    v_mov_b64 v[190:191], -1
    """)
    zero_state()
    g.wait_cnt(C_QD, 4)
    g("s_setprio 0")
    g.poll_flags(16, sIT, 8192, sleep=O("kvsleep", 1), issued=True)
    g("s_setprio 3")
    g.stamp(6)
    g(f"buffer_load_dwordx4 {vr(KF[0],4)}, v{vL16}, {srd(S_WS)}, 0 offen sc1")
    g.kv_dma(0, sW, 1)
    g(f"s_mov_b32 s{sT1}, {WS_KVF + 2048}")
    g.poll_issue(16, sT1, 8192)
    AB = O("abl", 0)
    def qk(S, K, Q, C): g(f"v_mfma_f32_32x32x16_bf16 {vr(S,16)}, {vr(K,4)}, {vr(Q,4)}, {C}")
    def pv(O_, V, P):
        if AB == 1: return
        if AB == 5: g(f"v_mfma_f32_32x32x16_bf16 {vr(O_,16)}, {vr(V,4)}, {vr(P,4)}, {vr(O_,16)}"); return
        g(f"v_smfmac_f32_32x32x32_bf16 {vr(O_,16)}, {vr(V,4)}, {vr(P,8)}, v{vIDX}")
    def max16(S, d):
        g(f"v_max3_f32 v{d}, v{S}, v{S+1}, v{S+2}")
        for i in range(3, 15, 2):
            g(f"v_max3_f32 v{d}, v{d}, v{S+i}, v{S+i+1}")
        g(f"v_max_f32 v{d}, v{d}, v{S+15}")
    def xhalf_max(d, t):
        g(f"""v_mov_b32 v{t}, v{d}
        s_nop 1
        v_permlane32_swap_b32 v{d}, v{t}
        s_nop 1
        v_max_f32 v{d}, v{d}, v{t}""")
    g.stamp(1)
    g("s_waitcnt vmcnt(4)")
    g.stamp(2)
    qk(SA[0], KF[0], QA, "0"); qk(SB[0], KF[0], QB, "0")
    g.nop(11)
    max16(SA[0], vT); max16(SB[0], vT1)
    xhalf_max(vT, vT2); xhalf_max(vT1, vT2)
    g(f"""v_add_f32 v{vT}, {f2u(FOFF):#x}, v{vT}
    v_add_f32 v{vT1}, {f2u(FOFF):#x}, v{vT1}
    L_ATT_START:
    v_sub_f32 v{CA}, 0, v{vT}
    v_sub_f32 v{CA+1}, 0, v{vT}
    v_sub_f32 v{CB_}, 0, v{vT1}
    v_sub_f32 v{CB_+1}, 0, v{vT1}""")
    for i in range(2, 16, 2):
        g(f"v_mov_b64 {vr(CA+i,2)}, {vr(CA,2)}")
    g(f"""s_mov_b32 s{sIT}, s{sRETRY}
    s_cmp_lg_u32 s{sRETRY}, 0""")
    qk(SA[0], KF[0], QA, vr(CA, 16))
    for i in range(2, 16, 2):
        g(f"v_mov_b64 {vr(CB_+i,2)}, {vr(CB_,2)}")
    g.nop(4)
    g("s_cbranch_scc1 L_ATT_GO")
    g.stamp(3)
    g("s_waitcnt vmcnt(0)")
    g.stamp(11)
    g.arrive(C_H1)
    g.kv_dma(0, sW, 2)
    g.wait_cnt(C_H1, 4)
    g(f"""L_ATT_GO:
    s_setprio {O('aprio', 1)}""")
    g.stamp(7); g.stamp(12, True)
    g("""s_nop 1
    .p2align 6
    L_ATT:""")
    UN = 16
    def exps(S, lo, hi, first64=False):
        for i in range(lo, hi):
            if AB == 2: g(f"v_mul_f32{'_e64' if (first64 and i == lo) else ''} v{S+i}, 0, v{S+i}"); g(f"v_mul_f32 v{vT}, 0, v{vT}"); g("s_nop 0") if False else None; continue
            if AB == 3: g(f"v_exp_f32{'_e64' if (first64 and i == lo) else ''} v{192+i}, v{S+i}"); continue
            g(f"v_exp_f32{'_e64' if (first64 and i == lo) else ''} v{S+i}, v{S+i}")
    def side(it, fn):
        l = g.lab("SB"); r = g.lab("SR")
        g(f"""s_cmp_eq_u32 s{sIT}, {it}
        s_cbranch_scc1 {l}
        {r}:""")
        def blk():
            g(f"{l}:"); fn(); g(f"s_branch {r}")
        g.out_of_line(blk)
    def blk_q1():
        g.poll_flags(16, sT1, 8192, sleep=1, issued=True)
        g.kv_dma(1, sW)
        g(f"""buffer_store_dwordx4 v[188:191], v{vL16}, {srd(S_WS)}, s{sOO} offen sc1
        buffer_store_dwordx4 v[188:191], v{vL16}, {srd(S_WS)}, s{sOO} offen offset:2048 sc1""")
    def blk_h1b():
        g("s_waitcnt vmcnt(10)")
        g.arrive(C_H1B)
    def blk_h1c():
        g("s_waitcnt vmcnt(0)")
        g.arrive(C_H1C)
    for t in range(UN):
        p = t % 2
        qk(SB[p], KF[p], QB, vr(CB_, 16))
        if AB != 4:
            g(f"ds_read_b128 {vr(KF[1-p],4)}, v{vKA} offset:{(t+1)*REC}")
            g(f"ds_read_b128 {vr(VF[p],4)}, v{vVA} offset:{t*REC}")
            g(f"ds_read_b128 {vr(VF[p]+4,4)}, v{vVA} offset:{t*REC+544}")
        exps(SA[p], 0, 4)
        pv(OB, VF[1-p], SB[1-p])
        exps(SA[p], 4, 10)
        pv(OB, VF[1-p] + 4, SB[1-p] + 8)
        g("s_waitcnt lgkmcnt(0)")
        exps(SA[p], 10, 16, True)
        qk(SA[1-p], KF[1-p], QA, vr(CA, 16))
        exps(SB[p], 0, 4)
        pv(OA, VF[p], SA[p])
        if t == UN - 1:
            g(f"""v_add_u32 v{vKA}, {UN*REC}, v{vKA}
            v_add_u32 v{vVA}, {UN*REC}, v{vVA}""")
        exps(SB[p], 4, 10)
        pv(OA, VF[p] + 4, SA[p] + 8)
        if debug and O("itstamp", 0):
            if t == 4: side(0, lambda: g.stamp(3, True))
            if t == 8: side(0, lambda: g.stamp(4, True))
            if t == 0: side(1, lambda: g.stamp(1, True)); side(2, lambda: g.stamp(2, True)); side(3, lambda: g.stamp(11, True))
        if t == 2: side(0, blk_q1)
        if t == 3: side(0, blk_h1b)
        if t == 6: side(0, lambda: g.wait_cnt(C_H1B, 4))
        if t == 9: side(0, blk_h1c)
        if t == UN - 3: side(0, lambda: g.wait_cnt(C_H1C, 4))
        if t == UN - 2: side(1, lambda: g.wait_cnt(C_H2, 4))
        if t == UN - 1:
            g(f"""s_add_u32 s{sIT}, s{sIT}, 1
            s_bitcmp0_b32 s{sIT}, 2""")
        exps(SB[p], 10, 16)
    g("s_cbranch_scc1 L_ATT")
    pv(OB, VF[1], SB[1]); pv(OB, VF[1] + 4, SB[1] + 8)
    g.stamp(8); g.stamp(13, True)
    g("s_setprio 3")
    g.arrive(C_AD0, v=vAD)
    g(f"""v_mov_b32 v{vT2}, {f2u(2.0**110):#x}
    v_fma_f32 v{vT}, v{OA}, 0, v{OA+8}""")
    for i in range(1, 8):
        g(f"v_fma_f32 v{vT}, v{OA+i}, 0, v{vT}")
    g(f"""v_rcp_f32 v{vT3}, v{OA+8}
    v_cmp_nlt_f32 s[{sM}:{sM+1}], v{vT}, v{vT2}
    v_fma_f32 v{vT1}, v{OB}, 0, v{OB+8}""")
    for i in range(1, 8):
        g(f"v_fma_f32 v{vT1}, v{OB+i}, 0, v{vT1}")
    g(f"""v_cmp_nlt_f32 vcc, v{vT1}, v{vT2}
    v_rcp_f32 v{vT1}, v{OB+8}
    s_nop 0
    s_or_b64 vcc, vcc, s[{sM}:{sM+1}]
    s_cmp_lg_u64 vcc, 0
    {'s_nop 0' if AB else 's_cbranch_scc1 L_FALLBACK'}
    L_ATT_OK:""")
    def fallback():
        g(f"""L_FALLBACK:
        s_cmp_lg_u32 s{sRETRY}, 0
        s_cbranch_scc1 L_ATT_OK
        s_mov_b32 s{sRETRY}, 16
        v_subrev_u32 v{vKA}, {64*REC}, v{vKA}
        v_subrev_u32 v{vVA}, {64*REC}, v{vVA}
        v_mov_b32 v{vT3}, v{vKA}
        v_mov_b32 v{vT}, 0xff800000
        v_mov_b32 v{vT1}, 0xff800000
        s_mov_b32 s{sIT}, 0
        L_MAXP:
        ds_read_b128 {vr(KF[0],4)}, v{vT3}
        v_add_u32 v{vT3}, {REC}, v{vT3}
        s_waitcnt lgkmcnt(0)""")
        qk(SA[0], KF[0], QA, "0"); qk(SB[0], KF[0], QB, "0")
        g.nop(12)
        for i in range(0, 16, 2):
            g(f"v_max3_f32 v{vT}, v{vT}, v{SA[0]+i}, v{SA[0]+i+1}")
        for i in range(0, 16, 2):
            g(f"v_max3_f32 v{vT1}, v{vT1}, v{SB[0]+i}, v{SB[0]+i+1}")
        g(f"""s_add_u32 s{sIT}, s{sIT}, 1
        s_cmp_lt_u32 s{sIT}, 64
        s_cbranch_scc1 L_MAXP
        ds_read_b128 {vr(KF[0],4)}, v{vKA}""")
        xhalf_max(vT, vT2); xhalf_max(vT1, vT2)
        zero_state()
        g(f"""s_waitcnt lgkmcnt(0)
        s_branch L_ATT_START""")
    g.out_of_line(fallback)
    for (O_, r, d, off) in ((OA, vT3, 32, 0), (OB, vT1, 36, 2048)):
        for i in range(8):
            g(f"v_mul_f32 v{O_+i}, v{O_+i}, v{r}")
        for i in range(4):
            g(f"v_cvt_pk_bf16_f32 v{d+i}, v{O_+2*i}, v{O_+2*i+1}")
        for i in range(4):
            g(f"v_min_u32 v{d+i}, -2, v{d+i}")
        g(f"buffer_store_dwordx4 {vr(d,4)}, v{vL16}, {srd(S_WS)}, s{sOO} offen offset:{off} sc1")
    g.arrive(C_ADONE)
    g(f"buffer_load_dwordx4 {vr(vXR,4)}, v{vXO}, {srd(S_X)}, 0 offen")
    g.stamp(9)
    g("s_branch L_FINAL")


def gen(debug=False, opt=None):
    opt = opt or {}
    O = lambda k, d: opt.get(k, d)
    g = G(debug)
    g.ff = ['', 'sc1', 'nt', 'sc0 sc1'][O('ff', 0)]
    prologue(g, O)
    layernorm(g, O)
    g_role(g, O)
    final(g, O, debug)
    a_role(g, O, debug)
    g.L += g.tail
    g("L_CODE_END:")
    ref = open(f"cdna_kernels/{NAME}.s.ref").read().split("\n")
    hdr = [l for l in ref if l.startswith(";") and "@launch" not in l]
    out = hdr + [f"; @launch grid=(256,1,1) block=(512,1,1) lds={LDS_BYTES}",
                 '.amdgcn_target "amdgcn-amd-amdhsa--gfx950"', ".text", f".globl {NAME}_kernel", ".p2align 8",
                 f".type {NAME}_kernel,@function", f"{NAME}_kernel:"] + g.L + [
        '.section .rodata,"a"', ".p2align 6", f".amdhsa_kernel {NAME}_kernel",
        "  .amdhsa_next_free_vgpr 256", "  .amdhsa_next_free_sgpr 102", "  .amdhsa_accum_offset 256",
        "  .amdhsa_group_segment_fixed_size 0", "  .amdhsa_kernarg_size 88", "  .amdhsa_user_sgpr_count 2",
        "  .amdhsa_user_sgpr_kernarg_segment_ptr 1", "  .amdhsa_system_sgpr_workgroup_id_x 1", ".end_amdhsa_kernel", ""]
    return "\n".join(out)


if __name__ == "__main__":
    ap = argparse.ArgumentParser()
    ap.add_argument("-o", default=f"cdna_kernels/{NAME}.s")
    ap.add_argument("--debug", action="store_true")
    ap.add_argument("opts", nargs="*")
    a = ap.parse_args()
    opt = {k: int(v) for k, v in (o.split("=") for o in a.opts)}
    open(a.o, "w").write(gen(a.debug, opt))
```

```python
import sys, argparse, struct

NAME = "parallel_sum__grouped_kv_mqa__dense_activation_relu__prompt"

REC = 2112
HALF = 32 * REC
R1, R2, R3 = 0, HALF, 2 * HALF
RING = 6144
CNT = R3 + 4 * RING
(C_KVDONE, C_KVST, C_QD, C_H1, C_G1, C_H2, C_WQ, C_H1B, C_ADONE, C_H1C, C_PUB, C_XN, C_WQ2,
 C_AD0) = range(0, 56, 4)
LDS_BYTES = 163840
XP = 1040
PP = 272
PIMG = 64 * PP
WS_KV = 0
WS_KVF = 0x40000
WS_HO = 0x80000
HO_RB = 144 * 2048
WS_DBG = 0xA00000
WS_HF = 0xC00000
WS_BYTES = 0x1000000
QSCALE = 0.25 * 1.4426950408889634
SPIN = 1 << 15
NREP = 16

def f2u(x): return struct.unpack("<I", struct.pack("<f", x))[0]

S_X, S_OUT, S_WS, S_WO, S_W2, S_WQ, S_WKV, S_W1, S_DBG = 4, 8, 12, 16, 20, 24, 28, 32, 36
POLL = 24
sKVO = 3
sW, sRB, sCB = 40, 41, 42
sT0, sT1, sT2, sRG = 43, 44, 45, 46
sSPIN, sSO, sSTEP, sIT, sHO, sFL, sRETRY = 47, 48, 49, 50, 51, 52, 53
sM = 54
sJ, sMT = 56, 57
sPC = 58
sOO = 59
sSTAMP = 64
sIDX, sPR = 96, 97
sTM = 98
sN = 100

vLANE, vC, vONE, vT, vT1, vT2, vT3 = 1, 2, 3, 4, 5, 6, 7
vL16 = 8
vDA, vDB = 9, 10
vXF, vWF = 11, 12
vXO = 13
vN, vZ = 14, 15
vXR = 16
vROW, vCOL, vC16, vTR, vHB = 20, 21, 22, 23, 24
vDUM = 210

def srd(b): return f"s[{b}:{b+3}]"
def vr(b, n=1): return f"v{b}" if n == 1 else f"v[{b}:{b+n-1}]"


class G:
    def __init__(self, debug):
        self.L = []
        self.tail = []
        self.debug = debug
        self.nlab = 0

    def __call__(self, s):
        for line in s.split("\n"):
            line = line.strip()
            if line:
                self.L.append(line if line.endswith(":") else "    " + line)

    def lab(self, p="L"):
        self.nlab += 1
        return f"{p}_{self.nlab}"

    def stamp(self, i, cyc=False):
        if self.debug:
            self(f"{'s_memtime' if cyc else 's_memrealtime'} s[{sSTAMP+2*i}:{sSTAMP+2*i+1}]")

    def nop(self, n):
        while n > 0:
            k = min(n, 16)
            self(f"s_nop {k-1}")
            n -= k

    def out_of_line(self, fn):
        main = self.L; self.L = self.tail
        fn()
        self.L = main

    def arrive(self, c, v=vC):
        self(f"""s_mov_b64 exec, 1
        ds_add_u32 v{v}, v{vONE} offset:{c}
        s_mov_b64 exec, -1""")

    def wait_cnt(self, c, target, sleep=0, v=vC):
        l = self.lab("WC"); d = self.lab("WD")
        self(f"""s_mov_b32 s{sSPIN}, {SPIN}
        {l}:
        ds_read_b32 v{vT}, v{v} offset:{c}
        s_waitcnt lgkmcnt(0)
        v_readfirstlane_b32 s{sT0}, v{vT}
        s_sub_u32 s{sSPIN}, s{sSPIN}, 1
        s_cbranch_scc1 {d}
        s_cmp_ge_u32 s{sT0}, {target}
        s_cbranch_scc1 {d}""")
        if sleep: self(f"s_sleep {sleep}")
        self(f"""s_branch {l}
        {d}:""")

    def poll_issue(self, n, soff, stride):
        for i in range(n):
            self(f"s_buffer_load_dword s{POLL+i}, {srd(S_WS)}, s{soff} offset:{128*i}")
        self(f"s_add_u32 s{soff}, s{soff}, {stride}")

    def poll_flags(self, n, soff, stride, sleep=1, issued=False):
        l = self.lab("PF"); d = self.lab("PD"); v = self.lab("PV"); c = self.lab("PC")
        self(f"s_mov_b32 s{sSPIN}, {NREP-2}")
        if issued: self(f"s_branch {c}")
        self(f"{l}:")
        self.poll_issue(n, soff, stride)
        self(f"""{c}:
        s_waitcnt lgkmcnt(0)
        s_xor_b64 s[{sM}:{sM+1}], s[{POLL}:{POLL+1}], s[{sN}:{sN+1}]""")
        for p in range(POLL + 2, POLL + n, 2):
            self(f"""s_xor_b64 s[{p}:{p+1}], s[{p}:{p+1}], s[{sN}:{sN+1}]
            s_or_b64 s[{sM}:{sM+1}], s[{sM}:{sM+1}], s[{p}:{p+1}]""")
        self(f"s_cbranch_scc0 {d}")
        if sleep: self(f"s_sleep {sleep}")
        self(f"""s_sub_u32 s{sSPIN}, s{sSPIN}, 1
        s_cbranch_scc0 {l}
        v_min_u32 v{vT1}, {n-1}, v{vLANE}
        v_lshlrev_b32 v{vT1}, 7, v{vT1}
        s_mov_b32 s{sSPIN}, {SPIN}
        {v}:
        buffer_load_dword v{vT}, v{vT1}, {srd(S_WS)}, s{soff} offen sc1
        s_waitcnt vmcnt(0)
        v_cmp_eq_u32 vcc, s{sN}, v{vT}
        s_sub_u32 s{sSPIN}, s{sSPIN}, 1
        s_cbranch_scc1 {d}
        s_cmp_eq_u64 vcc, -1
        s_cbranch_scc1 {d}
        s_sleep 4
        s_branch {v}
        {d}:""")

    def publish(self, soff, shift):
        self(f"""v_lshlrev_b32 v{vT}, {shift}, v{vLANE}
        s_mov_b64 exec, {(1 << NREP) - 1}
        buffer_store_dword v{vN}, v{vT}, {srd(S_WS)}, s{soff} offen sc1
        s_mov_b64 exec, -1""")

    def load_nonce(self):
        self(f"buffer_load_dword v{vN}, v{vZ}, {srd(S_DBG)}, 0 offen sc1")

    def get_nonce(self):
        l = self.lab("GN"); d = self.lab("GD")
        self(f"""s_mov_b32 s{sSPIN}, {SPIN}
        {l}:
        v_readfirstlane_b32 s{sN}, v{vN}
        s_sub_u32 s{sSPIN}, s{sSPIN}, 1
        s_cbranch_scc1 {d}
        s_cmp_lg_u32 s{sN}, 0
        s_cbranch_scc1 {d}""")
        self.load_nonce()
        self(f"""s_waitcnt vmcnt(0)
        s_branch {l}
        {d}:
        s_mov_b32 s{sN+1}, s{sN}""")

    def fill(self, slot, sb):
        self(f"""s_add_u32 m0, s{sRG}, {slot*2048}
        s_nop 0
        buffer_load_dwordx4 v{vDA}, {srd(sb)}, s{sSO} offen {self.ff} lds
        buffer_load_dwordx4 v{vDB}, {srd(sb)}, s{sSO} offen offset:1024 {self.ff} lds
        s_add_u32 s{sSO}, s{sSO}, s{sSTEP}""")

    def kv_dma(self, q, sidx, part=3):
        base = q * 16 * REC + (16384 if part == 2 else 0)
        self(f"""s_lshl_b32 s{sT0}, s{sidx}, 12
        s_add_u32 s{sSO}, s{sT0}, {WS_KV + base}
        s_add_u32 m0, s{sT0}, {base}""")
        for gi in range(2 if part == 3 else 1):
            self("s_nop 0")
            for i in range(4):
                self(f"buffer_load_dwordx4 v{vL16}, {srd(S_WS)}, s{sSO} offen offset:{i*1024} sc1 lds")
            if part == 1: return
            self(f"""s_add_u32 s{sSO}, s{sSO}, 16384
            s_add_u32 m0, m0, 16384""")
        l = self.lab("KD")
        self(f"""s_cmp_lg_u32 s{sidx}, 0
        s_cbranch_scc1 {l}
        buffer_load_dwordx4 v{vL16}, {srd(S_WS)}, s{sSO} offen sc1 lds
        {l}:""")

    def mf(self, D, A, B, first=False):
        self(f"v_mfma_f32_32x32x16_bf16 {vr(D,16)}, {vr(A,4)}, {vr(B,4)}, {'0' if first else vr(D,16)}")


XR = 32
def prologue(g, O):
    g(f"""
    s_cmp_ge_u32 s2, 256
    s_cbranch_scc1 L_END
    s_load_dwordx2 s[{S_X}:{S_X+1}], s[0:1], 0
    s_load_dwordx2 s[{S_WQ}:{S_WQ+1}], s[0:1], 8
    s_load_dwordx4 s[60:63], s[0:1], 16
    s_load_dwordx2 s[{S_WO}:{S_WO+1}], s[0:1], 32
    s_load_dwordx2 s[{S_W1}:{S_W1+1}], s[0:1], 48
    s_load_dwordx2 s[{S_W2}:{S_W2+1}], s[0:1], 56
    s_load_dwordx2 s[{S_OUT}:{S_OUT+1}], s[0:1], 64
    s_load_dwordx2 s[{S_DBG}:{S_DBG+1}], s[0:1], 72
    s_load_dwordx2 s[{S_WS}:{S_WS+1}], s[0:1], 80
    s_memrealtime s[{sTM}:{sTM+1}]
    """)
    g.stamp(0)
    g(f"""
    s_getpc_b64 s[{sPC}:{sPC+1}]
    L_PC:
    v_lshrrev_b32 v{vT}, 6, v0
    v_and_b32 v{vLANE}, 63, v0
    s_lshr_b32 s{sIDX}, s2, 3
    v_readfirstlane_b32 s{sW}, v{vT}
    """)
    if O("pfc", 1):
        g(f"""
        v_lshlrev_b32 v27, 7, v0
        v_min_u32 v27, L_CODE_END-L_PC-4, v27
        v_and_b32 v27, -4, v27
        v_mov_b32 v29, s{sPC+1}
        v_add_co_u32 v28, vcc, s{sPC}, v27
        s_cmp_ge_u32 s{sW}, 4
        s_cbranch_scc1 L_NPC
        v_addc_co_u32 v29, vcc, 0, v29, vcc
        global_load_dword v{vDUM}, v[28:29], off
        L_NPC:
        """)
    if O("rbmap", 0):
        rbcode = f"""s_lshr_b32 s{sT0}, s{sT0}, 1
        s_and_b32 s{sRB}, s{sIDX}, 7
        s_lshl_b32 s{sRB}, s{sRB}, 2"""
    else:
        rbcode = f"""s_lshl_b32 s{sT0}, s{sT0}, 2
        s_and_b32 s{sRB}, s{sIDX}, 7"""
    g(f"""
    s_lshr_b32 s{sPR}, s{sIDX}, 3
    s_and_b32 s{sT0}, s2, 1
    s_lshl_b32 s{sT0}, s{sT0}, 2
    s_add_u32 s{sCB}, s{sT0}, s{sPR}
    s_and_b32 s{sT0}, s2, 6
    {rbcode}
    s_add_u32 s{sRB}, s{sRB}, s{sT0}
    s_mov_b32 s{S_X+2}, 2097152
    s_mov_b32 s{S_X+3}, 0x20000
    v_lshrrev_b32 v{vT}, 3, v{vLANE}
    v_and_b32 v{vT1}, 7, v{vLANE}
    v_lshlrev_b32 v{vT2}, 10, v{vT}
    v_lshl_or_b32 v{vT2}, v{vT1}, 4, v{vT2}
    s_and_b32 s{sT2}, s{sPR}, 1
    s_lshl_b32 s{sT2}, s{sT2}, 2
    s_xor_b32 s{sSTEP}, s{sW}, s{sT2}
    s_lshl_b32 s{sT0}, s{sRB}, 16
    s_lshl_b32 s{sT1}, s{sSTEP}, 13
    s_add_u32 s{sT1}, s{sT0}, s{sT1}
    s_mov_b32 s{S_DBG+2}, 256
    s_mov_b32 s{S_DBG+3}, 0x20000
    v_mov_b32 v{vZ}, 0
    v_lshlrev_b32 v{vL16}, 4, v{vLANE}
    s_sub_u32 s{sJ}, s{sW}, 4
    s_mov_b32 s{S_WKV+2}, 16384
    s_mov_b32 s{S_WKV+3}, 0x20000
    v_lshlrev_b32 v28, 7, v{vLANE}
    v_mov_b32 v{vC}, {CNT}
    v_mov_b32 v{vONE}, 1
    v_lshl_add_u32 v29, v{vLANE}, 2, v{vC}
    ds_write_b32 v29, v{vZ}
    s_cmp_lt_u32 s{sCB}, 4
    s_waitcnt lgkmcnt(0)
    s_barrier
    s_cselect_b32 s{S_WKV}, s60, s62
    s_cselect_b32 s{S_WKV+1}, s61, s63
    s_cmp_lg_u32 s{sPR}, 1
    s_cbranch_scc1 L_PFE
    s_cmp_lg_u32 s{sW}, 0
    s_cbranch_scc1 L_PFE
    s_and_b32 s{sT2}, s{sIDX}, 7
    s_lshl_b32 s{sT2}, s{sT2}, 11
    s_mov_b64 exec, 0xffff
    buffer_load_dword v{vDUM}, v28, {srd(S_WKV)}, s{sT2} offen
    s_mov_b64 exec, -1
    L_PFE:
    s_or_b32 s{sT0}, s2, s{sW}
    s_cmp_lg_u32 s{sT0}, 0
    s_cbranch_scc1 L_NN
    s_or_b32 s{sT0}, s{sTM}, 1
    v_mov_b32 v{vN}, s{sT0}
    s_mov_b64 exec, 1
    buffer_store_dword v{vN}, v{vZ}, {srd(S_DBG)}, 0 offen sc1
    s_mov_b64 exec, -1
    L_NN:""")
    for i in range(8):
        g(f"buffer_load_dwordx4 {vr(XR+4*i,4)}, v{vT2}, {srd(S_X)}, s{sT1} offen offset:{i*128}")
    g.stamp(1)
    g(f"""
    s_cmp_lt_u32 s{sW}, 4
    s_cbranch_scc1 L_NKV
    s_cmp_lg_u32 s{sPR}, 0
    s_cbranch_scc1 L_NKV
    s_mul_i32 s{sT1}, s{sJ}, 4224
    s_add_u32 m0, s{sT1}, {R3}
    s_lshl_b32 s{sT0}, s{sJ}, 12""")
    for i in range(4):
        g(f"buffer_load_dwordx4 v{vL16}, {srd(S_WKV)}, s{sT0} offen offset:{i*1024} lds")
    g(f"""
    L_NKV:
    s_mov_b32 s{S_WQ+2}, 524288
    s_mov_b32 s{S_WQ+3}, 0x20000
    s_mov_b32 s{S_WO+2}, 524288
    s_mov_b32 s{S_WO+3}, 0x20000
    s_mov_b32 s{S_W1+2}, 1835008
    s_mov_b32 s{S_W1+3}, 0x20000
    s_mov_b32 s{S_W2+2}, 1835008
    s_mov_b32 s{S_W2+3}, 0x20000
    s_mov_b32 s{S_OUT+2}, 2097152
    s_mov_b32 s{S_OUT+3}, 0x20000
    s_mov_b32 s{S_WS+2}, {WS_BYTES}
    s_mov_b32 s{S_WS+3}, 0x20000
    v_lshrrev_b32 v{vHB}, 5, v{vLANE}
    v_bfe_u32 v{vTR}, v{vLANE}, 2, 2
    v_lshl_add_u32 v{vROW}, v{vHB}, 2, v{vTR}
    v_bfe_u32 v25, v{vLANE}, 4, 1
    v_and_b32 v26, 3, v{vLANE}
    v_lshlrev_b32 v{vC16}, 4, v26
    v_lshl_add_u32 v{vCOL}, v25, 6, v{vC16}
    s_mul_i32 s{sT1}, s{sSTEP}, {8*XP}
    s_add_u32 s{sT1}, s{sT1}, {R2}
    v_mul_u32_u24 v{vT3}, {XP}, v{vT}
    v_lshl_add_u32 v{vT3}, v{vT1}, 4, v{vT3}
    v_add_u32 v{vT3}, s{sT1}, v{vT3}
    s_mul_i32 s{sHO}, s{sRB}, {HO_RB}
    s_add_u32 s{sHO}, s{sHO}, {WS_HO}
    s_lshl_b32 s{sFL}, s{sRB}, 16
    s_add_u32 s{sFL}, s{sFL}, {WS_HF}
    v_lshrrev_b32 v{vXO}, 3, v0
    v_lshlrev_b32 v{vXO}, 10, v{vXO}
    v_lshl_or_b32 v{vXO}, v{vT1}, 4, v{vXO}
    s_lshl_b32 s{sT1}, s{sRB}, 16
    s_lshl_b32 s{sT2}, s{sCB}, 7
    s_add_u32 s{sT1}, s{sT1}, s{sT2}
    v_add_u32 v{vXO}, s{sT1}, v{vXO}
    v_lshlrev_b32 v{vTR}, 6, v{vTR}
    v_lshl_add_u32 v{vTR}, v25, 5, v{vTR}
    v_lshl_add_u32 v{vTR}, v26, 3, v{vTR}
    v_mov_b32 v138, 0
    v_mov_b32 v139, 0
    v_lshrrev_b32 v27, 4, v{vLANE}
    v_and_b32 v28, 15, v{vLANE}
    v_min_u32 v28, 13, v28
    v_lshlrev_b32 v28, 7, v28
    s_mov_b32 s{sT1}, 3584
    v_mad_u32_u24 v27, v27, s{sT1}, v28
    s_sub_u32 s{sT0}, s{sIDX}, 8
    s_lshl_b32 s{sT0}, s{sT0}, 2
    s_and_b32 s{sT2}, s{sW}, 3
    s_add_u32 s{sT0}, s{sT0}, s{sT2}
    s_mul_i32 s{sT0}, s{sT0}, {4*3584}
    s_lshr_b32 s{sT1}, s{sCB}, 2
    s_mul_i32 s{sT1}, s{sT1}, 1792
    s_add_u32 s{sT0}, s{sT0}, s{sT1}
    v_add_u32 v27, s{sT0}, v27
    s_cmp_ge_u32 s{sW}, 4
    s_cbranch_scc1 L_G_ADDR
    v_lshl_add_u32 v{vDA}, v{vROW}, 10, v{vCOL}
    v_add_u32 v{vDB}, {8*1024-1024}, v{vDA}
    s_lshl_b32 s{sSO}, s{sW}, 16
    s_lshl_b32 s{sT0}, s{sCB}, 7
    s_add_u32 s{sSO}, s{sSO}, s{sT0}
    s_branch L_LN
    L_G_ADDR:
    s_lshr_b32 s{sT1}, s{sCB}, 2
    s_mul_i32 s{sMT}, s{sT1}, 28
    s_lshl_b32 s{sT0}, s{sPR}, 2
    s_add_u32 s{sT0}, s{sT0}, s{sJ}
    s_lshl_b32 s{sT0}, s{sT0}, 1
    s_sub_u32 s{sT0}, s{sT0}, 4
    s_cmp_eq_u32 s{sPR}, 0
    s_cselect_b32 s{sT0}, s{sJ}, s{sT0}
    s_add_u32 s{sMT}, s{sMT}, s{sT0}
    s_lshl_b32 s{sSO}, s{sMT}, 6
    s_mov_b32 s{sT1}, 3584
    v_mad_u32_u24 v{vDA}, v{vROW}, s{sT1}, v{vCOL}
    v_add_u32 v{vDB}, {8*3584-1024}, v{vDA}
    s_mov_b32 s{sSTEP}, {16*3584}
    s_mul_i32 s{sRG}, s{sJ}, {RING}
    s_add_u32 s{sRG}, s{sRG}, {R3}
    s_cmp_lg_u32 s{sPR}, 0
    s_cbranch_scc1 {'L_G_EARLY' if O('efill', 1) else 'L_LN'}
    v_lshrrev_b32 v28, 2, v{vLANE}
    v_mad_u32_u24 v{vDA}, v28, s{sT1}, v{vC16}
    v_add_u32 v{vDB}, {16*3584-1024}, v{vDA}
    s_mov_b32 s{sSTEP}, {32*3584}
    v_and_b32 v142, 15, v{vLANE}
    v_lshrrev_b32 v143, 4, v{vLANE}
    s_mul_i32 s{sT0}, s{sJ}, {16*XP}
    s_add_u32 s{sT0}, s{sT0}, {R2}
    v_mul_u32_u24 v136, {XP}, v142
    v_lshl_add_u32 v136, v143, 8, v136
    v_add_u32 v136, s{sT0}, v136
    v_mul_u32_u24 v137, 4224, v143
    v_lshl_add_u32 v137, v142, 3, v137
    v_add_u32 v137, {R3}, v137
    ; K: ((g&1)*32 + 16*(j&1) + (l&15))*16 + (g>>1)*8 ; V: 1024 + (j&1)*544 + (g>>1)*256 + d*16 + (g&1)*8
    v_and_b32 v140, 1, v143
    v_lshrrev_b32 v141, 1, v143
    v_lshlrev_b32 v142, 4, v142
    v_lshl_add_u32 v138, v140, 9, v142
    v_lshl_add_u32 v138, v141, 3, v138
    v_lshl_add_u32 v139, v141, 8, v142
    v_lshl_add_u32 v139, v140, 3, v139
    s_lshl_b32 s{sT0}, s{sRB}, 1
    s_lshr_b32 s{sT1}, s{sJ}, 1
    s_add_u32 s{sT0}, s{sT0}, s{sT1}
    s_mul_i32 s{sKVO}, s{sT0}, {REC}
    s_and_b32 s{sT1}, s{sJ}, 1
    s_lshl_b32 s{sT0}, s{sT1}, 8
    s_mul_i32 s{sT1}, s{sT1}, 544
    s_add_u32 s{sT1}, s{sT1}, 1024
    s_cmp_eq_u32 s{sCB}, 0
    s_cselect_b32 s{sT0}, s{sT0}, s{sT1}
    s_cselect_b64 vcc, -1, 0
    s_add_u32 s{sKVO}, s{sKVO}, s{sT0}
    v_cndmask_b32 v138, v139, v138, vcc
    v_lshlrev_b32 v139, 3, v{vLANE}
    v_mov_b32 v140, 0x3f803f80
    v_cmp_gt_u32 vcc, 2, v{vLANE}
    s_nop 1
    v_cndmask_b32 v140, 0, v140, vcc
    v_mov_b32 v141, v140
    """)


def pf_w1(g):
    g(f"""s_mov_b32 s{sT0}, {384*3584}
    buffer_load_dword v{vDUM}, v27, {srd(S_W1)}, 0 offen
    buffer_load_dword v{vDUM}, v27, {srd(S_W1)}, s{sT0} offen""")


def layernorm(g, O):
    F = 64
    def stats(after, nonce):
        for i in range(8):
            g(f"s_waitcnt vmcnt({after + 7 - i})")
            if i == 7:
                g.stamp(2)
                if nonce:
                    g(f"""s_cmp_ge_u32 s{sW}, 4
                    s_cbranch_scc1 L_NNL""")
                    g.load_nonce()
                    g("L_NNL:")
            for d in range(4):
                r = XR + 4 * i + d; f = F + 8 * i + 2 * d
                g(f"v_lshlrev_b32 v{f}, 16, v{r}")
                g(f"v_and_b32 v{f+1}, 0xffff0000, v{r}")
            for d in range(4):
                f = F + 8 * i + 2 * d
                a = 128 + 2 * (d % 2); q = 132 + 2 * (d % 2)
                if i == 0 and d < 2:
                    g(f"v_pk_mul_f32 {vr(q,2)}, {vr(f,2)}, {vr(f,2)}")
                    g(f"v_mov_b64 {vr(a,2)}, {vr(f,2)}")
                else:
                    g(f"v_pk_add_f32 {vr(a,2)}, {vr(a,2)}, {vr(f,2)}")
                    g(f"v_pk_fma_f32 {vr(q,2)}, {vr(f,2)}, {vr(f,2)}, {vr(q,2)}")
    if O("efill", 1):
        def early():
            g("L_G_EARLY:")
            for s_ in range(3): g.fill(s_, S_W1)
            n = 6
            if O("efill", 1) == 2:
                pf_w1(g); n += 2
            stats(n, False)
            g("s_branch L_LN2")
        g.out_of_line(early)
    g("L_LN:")
    stats(0, True)
    g(f"""L_LN2:
    v_pk_add_f32 v[128:129], v[128:129], v[130:131]
    v_pk_add_f32 v[132:133], v[132:133], v[134:135]
    v_add_f32 v128, v128, v129
    v_add_f32 v132, v132, v133
    s_nop 1
    v_add_f32_dpp v128, v128, v128 quad_perm:[1,0,3,2] row_mask:0xf bank_mask:0xf
    v_add_f32_dpp v132, v132, v132 quad_perm:[1,0,3,2] row_mask:0xf bank_mask:0xf
    s_nop 1
    v_add_f32_dpp v128, v128, v128 quad_perm:[2,3,0,1] row_mask:0xf bank_mask:0xf
    v_add_f32_dpp v132, v132, v132 quad_perm:[2,3,0,1] row_mask:0xf bank_mask:0xf
    s_nop 1
    v_add_f32_dpp v128, v128, v128 row_half_mirror row_mask:0xf bank_mask:0xf
    v_add_f32_dpp v132, v132, v132 row_half_mirror row_mask:0xf bank_mask:0xf
    v_mul_f32 v128, {f2u(1.0/512):#x}, v128      ; mean
    v_mul_f32 v132, {f2u(1.0/512):#x}, v132      ; E[x^2]
    v_fma_f32 v132, -v128, v128, v132            ; var
    v_max_f32 v132, 0, v132
    v_add_f32 v132, {f2u(1e-5):#x}, v132
    v_rsq_f32 v132, v132
    s_nop 0
    v_mul_f32_e64 v128, -v128, v132              ; -mean*rstd
    """)
    for i in range(8):
        for d in range(4):
            f = F + 8 * i + 2 * d
            g(f"v_pk_fma_f32 {vr(f,2)}, {vr(f,2)}, v[132:133], v[128:129] op_sel_hi:[1,0,0]")
        for d in range(4):
            f = F + 8 * i + 2 * d
            g(f"v_cvt_pk_bf16_f32 v{XR+4*i+d}, v{f}, v{f+1}")
        g(f"ds_write_b128 v{vT3}, {vr(XR+4*i,4)} offset:{i*128}")
    g("s_waitcnt lgkmcnt(0)")
    g.arrive(C_XN)
    g.stamp(3)


ACC = 128
def g_role(g, O):
    g(f"""s_cmp_lt_u32 s{sW}, 4
    s_cbranch_scc1 L_A_PRE
    s_cmp_lg_u32 s{sPR}, 0
    s_cbranch_scc1 L_G_NP
    s_setprio 3""")
    g.wait_cnt(C_XN, 8)
    g.stamp(4)
    def kv_chain(isK):
        FB = 32; NS = 5
        def rd(ks):
            b = FB + 8 * (ks % NS)
            g(f"ds_read_b128 {vr(b,4)}, v136 offset:{ks*16}")
            g(f"ds_read_b64_tr_b16 {vr(b+4,2)}, v137 offset:{ks*256}")
            g(f"ds_read_b64_tr_b16 {vr(b+6,2)}, v137 offset:{ks*256+128}")
        for ks in range(4): rd(ks)
        for ks in range(16):
            b = FB + 8 * (ks % NS)
            g(f"s_waitcnt lgkmcnt({min(9, 3*(15-ks))})")
            c = "0" if ks == 0 else vr(ACC, 4)
            if isK: g(f"v_mfma_f32_16x16x32_bf16 {vr(ACC,4)}, {vr(b+4,4)}, {vr(b,4)}, {c}")
            else:   g(f"v_mfma_f32_16x16x32_bf16 {vr(ACC,4)}, {vr(b,4)}, {vr(b+4,4)}, {c}")
            if ks + 4 < 16: rd(ks + 4)
    g(f"""s_cmp_lg_u32 s{sCB}, 0
    s_cbranch_scc1 L_V""")
    kv_chain(True)
    g("""s_nop 1
    s_branch L_KVS
    L_V:""")
    kv_chain(False)
    g(f"""s_mov_b64 exec, 0xf
    buffer_store_dwordx2 v[140:141], v139, {srd(S_WS)}, s{sKVO} offen offset:512 sc1
    s_mov_b64 exec, -1
    L_KVS:
    s_nop 5
    v_cvt_pk_bf16_f32 v132, v128, v129
    v_cvt_pk_bf16_f32 v133, v130, v131
    buffer_store_dwordx2 v[132:133], v138, {srd(S_WS)}, s{sKVO} offen sc1""")
    g.load_nonce()
    g.arrive(C_KVDONE)
    g.stamp(11)
    g(f"""s_lshl_b32 s{sT1}, s{sRB}, 8
    s_lshl_b32 s{sT2}, s{sCB}, 5
    s_add_u32 s{sT1}, s{sT1}, s{sT2}
    s_add_u32 s{sT1}, s{sT1}, {WS_KVF}
    s_waitcnt vmcnt(0)
    s_mov_b64 exec, 1
    ds_add_rtn_u32 v{vT}, v{vC}, v{vONE} offset:{C_KVST}
    s_mov_b64 exec, -1""")
    g.get_nonce()
    g(f"""s_waitcnt lgkmcnt(0)
    v_readfirstlane_b32 s{sT0}, v{vT}
    s_nop 3
    s_cmp_lg_u32 s{sT0}, 3
    s_cbranch_scc1 L_G_NF""")
    g.publish(sT1, 13)
    g.arrive(C_PUB)
    g("L_G_NF:")
    g.stamp(10)
    g.wait_cnt(C_PUB, 1)
    if O("efill", 1):
        for s_ in range(3): g.fill(s_, S_W1)
    g(f"""L_G_NP:
    s_setprio {O('gprio', 2)}""")
    g.load_nonce()
    if not O("efill", 1):
        for s_ in range(3): g.fill(s_, S_W1)
    g.wait_cnt(C_XN, 8)
    def probe(k):
        if O("probe", 0):
            g(f"""s_memrealtime s[60:61]
            s_waitcnt lgkmcnt(0)
            v_writelane_b32 v31, s60, {k}""")
    def gemm1(n, rd, mfs):
        g(f"s_waitcnt vmcnt({5 if O('efill', 1) else 4})")
        rd(0)
        g("s_waitcnt lgkmcnt(0)")
        g.fill(0, S_W1)
        for k in range(n):
            if k + 1 < n:
                extra = 1 if (O("efill", 1) and k < 2) else 0
                g(f"s_waitcnt vmcnt({min(4, 2*(n-1-(k+1))) + extra})")
                rd(k + 1)
            mfs(k)
            if k + 1 < n:
                g("s_waitcnt lgkmcnt(0)")
                probe(k)
                if k + 4 < n: g.fill((k + 1) % 3, S_W1)
            if k + 2 == n:
                g.arrive(C_G1)
                g(f"""s_lshl_b32 s{sIT}, s{sJ}, 10
                s_add_u32 s{sIT}, s{sIT}, {WS_KVF + 4096}""")
                g.poll_issue(8, sIT, 8192)
    def h_cvt(mt):
        for nt in range(2):
            a = ACC + 32*mt + 16*nt; o = 64 + 8 * (2*mt + nt)
            for i in range(8):
                g(f"v_cvt_pk_bf16_f32 v{o+i}, v{a+2*i}, v{a+2*i+1}")
            for i in range(8):
                g(f"v_pk_max_i16 v{o+i}, v{o+i}, 0")
    def h_store(mt, sM_):
        for nt in range(2):
            o = 64 + 8 * (2*mt + nt)
            g(f"buffer_store_dwordx4 {vr(o,4)}, v{vL16}, {srd(S_WS)}, s{sM_} offen offset:{nt*1024} sc1")
            g(f"buffer_store_dwordx4 {vr(o+4,4)}, v{vL16}, {srd(S_WS)}, s{sM_} offen offset:{2048+nt*1024} sc1")
    g(f"""
    v_and_b32 v25, 31, v{vLANE}
    v_mul_u32_u24 v{vXF}, {XP}, v25
    v_lshl_add_u32 v{vXF}, v{vHB}, 4, v{vXF}
    v_add_u32 v{vXF}, {R2}, v{vXF}
    s_cmp_eq_u32 s{sPR}, 0
    s_cbranch_scc1 L_G1_N
    v_lshl_add_u32 v{vWF}, v{vHB}, 10, v{vTR}
    v_add_u32 v{vWF}, s{sRG}, v{vWF}
    """)
    FS = [32, 48]
    def rd_w(ks):
        b = FS[ks % 2]; sl = (ks % 3) * 2048
        g(f"ds_read_b128 {vr(b,4)}, v{vXF} offset:{ks*32}")
        g(f"ds_read_b128 {vr(b+4,4)}, v{vXF} offset:{32*XP+ks*32}")
        for mt in range(2):
            for i in range(2):
                g(f"ds_read_b64_tr_b16 {vr(b+8+4*mt+2*i,2)}, v{vWF} offset:{sl+mt*256+i*512}")
    def mf_w(ks):
        b = FS[ks % 2]
        for mt in range(2):
            for nt in range(2):
                g.mf(ACC + 32*mt + 16*nt, b + 8 + 4*mt, b + 4*nt, ks == 0)
                if ks >= O("k0", 16) and (mt, nt) != (1, 1): g.nop(O("gap1", 8))
    gemm1(32, rd_w, mf_w)
    if O("probe", 0):
        g(f"""s_lshl_b32 s{sT0}, s2, 2
        s_add_u32 s{sT0}, s{sT0}, s{sJ}
        s_lshl_b32 s{sT0}, s{sT0}, 8
        s_add_u32 s{sT0}, s{sT0}, {WS_DBG + 0x80000}
        v_lshlrev_b32 v30, 2, v{vLANE}
        buffer_store_dword v31, v30, {srd(S_WS)}, s{sT0} offen""")
    g.nop(10)
    h_cvt(0); h_cvt(1)
    g(f"""s_branch L_G1_DONE
    L_G1_N:
    v_lshl_add_u32 v{vWF}, v{vHB}, 9, v{vTR}
    v_add_u32 v{vWF}, s{sRG}, v{vWF}""")
    FN = [32, 56]
    def rd_n(sl_):
        b = FN[sl_ % 2]; so = (sl_ % 3) * 2048
        for sub in range(2):
            ks = 2 * sl_ + sub; bb = b + 12 * sub
            g(f"ds_read_b128 {vr(bb,4)}, v{vXF} offset:{ks*32}")
            g(f"ds_read_b128 {vr(bb+4,4)}, v{vXF} offset:{32*XP+ks*32}")
            for i in range(2):
                g(f"ds_read_b64_tr_b16 {vr(bb+8+2*i,2)}, v{vWF} offset:{so+sub*1024+i*256}")
    def mf_n(sl_):
        b = FN[sl_ % 2]
        for sub in range(2):
            for nt in range(2):
                g.mf(ACC + 16*nt, b + 12*sub + 8, b + 12*sub + 4*nt, sl_ == 0 and sub == 0)
                if sl_ >= O("k0n", 8) and (sub, nt) != (1, 1): g.nop(O("gap1", 8))
    gemm1(16, rd_n, mf_n)
    g.nop(12)
    h_cvt(0)
    g("L_G1_DONE:")
    g.stamp(6)
    NK2 = 28
    g(f"""v_lshl_add_u32 v{vDA}, v{vROW}, 10, v{vCOL}
    v_add_u32 v{vDB}, {8*1024-1024}, v{vDA}
    s_mov_b32 s{sSTEP}, 16384
    v_lshl_add_u32 v{vWF}, v{vHB}, 9, v{vTR}
    v_add_u32 v{vWF}, s{sRG}, v{vWF}""")
    g.get_nonce()
    g.poll_flags(8, sIT, 8192, sleep=4, issued=True)
    g.arrive(C_G1)
    g.wait_cnt(C_QD, 4, sleep=2)
    g.wait_cnt(C_G1, 8, sleep=1)
    g.kv_dma(2, sJ); g.kv_dma(3, sJ)
    g(f"""s_lshl_b32 s{sT0}, s{sMT}, 12
    s_add_u32 s{sT1}, s{sT0}, s{sHO}
    s_add_u32 s{sT2}, s{sT1}, 4096
    s_waitcnt vmcnt(0)""")
    g.arrive(C_H2)
    g.stamp(5)
    h_store(0, sT1)
    g(f"""s_cmp_eq_u32 s{sPR}, 0
    s_cbranch_scc1 L_HS1""")
    h_store(1, sT2)
    g(f"""L_HS1:
    v_lshrrev_b32 v100, 2, v{vLANE}
    v_and_b32 v{vT}, 3, v{vLANE}
    v_lshlrev_b32 v{vT}, 7, v{vT}
    v_and_b32 v101, 3, v100
    v_lshl_add_u32 v100, v100, 10, v{vT}
    v_lshl_add_u32 v101, v101, 10, v{vT}
    s_lshr_b32 s60, s{sCB}, 2
    s_lshl_b32 s60, s60, 9
    s_mul_i32 s{sT0}, s{sIDX}, {56*1024}
    s_lshl_b32 s{sT2}, s{sJ}, 14
    s_add_u32 s{sT0}, s{sT0}, s{sT2}
    s_add_u32 s{sT0}, s{sT0}, s60
    v_add_u32 v100, s{sT0}, v100
    s_lshl_b32 s{sT0}, s{sIDX}, 14
    s_lshl_b32 s{sT2}, s{sJ}, 12
    s_add_u32 s{sT0}, s{sT0}, s{sT2}
    s_add_u32 s{sT0}, s{sT0}, s60
    v_add_u32 v101, s{sT0}, v101
    s_lshl_b32 s{sT1}, s{sCB}, 9
    s_lshl_b32 s{sT2}, s{sJ}, 7
    s_add_u32 s{sT1}, s{sT1}, s{sT2}
    s_add_u32 s{sT1}, s{sT1}, s{sFL}""")
    g.wait_cnt(C_H1C, 4, sleep=2)
    g("s_waitcnt vmcnt(0)")
    g.publish(sT1, 12)
    if O("pf2", 1):
        g(f"""buffer_load_dword v{vDUM}, v100, {srd(S_W2)}, 0 offen
        buffer_load_dword v{vDUM}, v101, {srd(S_WO)}, 0 offen""")
    ND = O("nd", 10)
    NT = NK2 + 8
    def fill2(t):
        if t == 0:
            g(f"""s_lshl_b32 s{sSO}, s{sJ}, 17
            s_lshl_b32 s{sT0}, s{sCB}, 7
            s_add_u32 s{sSO}, s{sSO}, s{sT0}""")
        if t == 8:
            g(f"""s_mul_i32 s{sSO}, s{sJ}, {NK2*16384}
            s_lshl_b32 s{sT0}, s{sCB}, 7
            s_add_u32 s{sSO}, s{sSO}, s{sT0}""")
        g.fill(t % 3, S_WO if t < 8 else S_W2)
    NH = O("nh", 4)
    HB = [96 + 8*i for i in range(NH)]
    WB = [32, 40]
    WO = 192
    sHS = sIT
    def ldh(ks):
        b = HB[ks % NH]
        g(f"buffer_load_dwordx4 {vr(b,4)}, v{vL16}, {srd(S_WS)}, s{sHS} offen sc1")
        g(f"buffer_load_dwordx4 {vr(b+4,4)}, v{vL16}, {srd(S_WS)}, s{sHS} offen offset:1024 sc1")
        g(f"s_add_u32 s{sHS}, s{sHS}, 2048")
    def rd2(t):
        b = WO + 8 * t if t < 8 else WB[t % 2]; sl = (t % 3) * 2048
        for mt in range(2):
            for i in range(2):
                g(f"ds_read_b64_tr_b16 {vr(b+4*mt+2*i,2)}, v{vWF} offset:{sl+mt*256+i*1024}")
    order = []
    def issued(tag, n): order.extend([tag] * n)
    def wait_for(tag):
        last = max(i for i, t in enumerate(order) if t == tag)
        g(f"s_waitcnt vmcnt({len(order) - 1 - last})")
    for t in range(3):
        fill2(t); issued(("w", t), 2)
    g.stamp(7)
    if O("gidle", 0): g("s_branch L_G_SKIP")
    wait_for(("w", 0))
    rd2(0)
    g("s_waitcnt lgkmcnt(0)")
    fill2(3); issued(("w", 3), 2)
    for t in range(NT):
        ks = t - 8
        if t == 7:
            g(f"""s_and_b32 s{sT0}, s{sJ}, 2
            s_add_u32 s{sT0}, s{sT0}, s{sJ}
            s_lshl_b32 s{sT0}, s{sT0}, 9
            s_add_u32 s{sT1}, s{sFL}, s{sT0}""")
            g.poll_flags(12, sT1, 4096, sleep=8)
            g.stamp(8)
            g(f"""s_setprio {O('gprio2', 0)}
            s_mul_i32 s{sHS}, s{sJ}, {NK2*2048}
            s_add_u32 s{sHS}, s{sHS}, s{sHO}""")
            for k in range(NH - 1):
                ldh(k); issued(("h", k), 2)
        if ND and ks == NK2 - ND:
            g(f"buffer_load_dwordx4 {vr(vXR,4)}, v{vXO}, {srd(S_X)}, 0 offen"); issued(("x", 0), 1)
            g.stamp(9)
            g(f"""s_lshl_b32 s{sT1}, s{sJ}, 2
            v_add_u32 v25, s{sT1}, v{vC}""")
            g.wait_cnt(C_AD0, 1, sleep=2, v=25)
            g("s_setprio 3")
        if t + 1 < NT:
            wait_for(("w", t + 1))
            rd2(t + 1)
        if ks >= 0:
            if ks + NH - 1 < NK2:
                ldh(ks + NH - 1); issued(("h", ks + NH - 1), 2)
            wait_for(("h", ks))
            b = WB[t % 2]; hb_ = HB[ks % NH]
            for mt in range(2):
                for nt in range(2):
                    g.mf(ACC + 32*mt + 16*nt, b + 4*mt, hb_ + 4*nt, ks == 0)
                    if (mt, nt) != (1, 1) and ks < NK2 - ND: g.nop(O("gap2", 0))
        if t + 1 < NT:
            g("s_waitcnt lgkmcnt(0)")
            if t + 4 < NT:
                fill2(t + 4); issued(("w", t + 4), 2)
    if not ND:
        g(f"buffer_load_dwordx4 {vr(vXR,4)}, v{vXO}, {srd(S_X)}, 0 offen")
        g.stamp(9)
    g(f"""L_G_SKIP:
    s_lshl_b32 s{sT2}, s{sJ}, 14
    s_add_u32 s{sT2}, s{sT2}, s{sHO}
    s_add_u32 s{sT1}, s{sT2}, {112*2048}
    s_add_u32 s{sT2}, s{sT1}, 4096
    s_add_u32 s60, s{sT1}, 8192
    s_add_u32 s61, s{sT1}, 12288
    v_and_b32 v25, 31, v{vLANE}
    v_mul_u32_u24 v25, {PP}, v25
    v_lshl_add_u32 v25, v{vHB}, 4, v25
    s_mul_i32 s{sT0}, s{sJ}, {PIMG}
    v_add_u32 v25, s{sT0}, v25""")
    g.wait_cnt(C_ADONE, 4, sleep=2)
    g("s_setprio 3")
    if O("odelay", 0): g(f"s_sleep {O('odelay', 0)}")
    g.stamp(12)
    OF = 32
    def o_issue(h):
        for i in range(4):
            so = [sT1, sT2, 60, 61][2*h + i // 2]
            for nt in range(2):
                g(f"buffer_load_dwordx4 {vr(OF+32*h+8*i+4*nt,4)}, v{vL16}, {srd(S_WS)}, s{so} offen offset:{(i%2)*2048+nt*1024} sc1")
    def o_check(h):
        b = OF + 32 * h
        g(f"v_max3_u32 v{vT}, v{b}, v{b+1}, v{b+2}")
        g(f"v_max3_u32 v{vT1}, v{b+3}, v{b+4}, v{b+5}")
        for k in range(6, 32, 4):
            if k + 1 < 32: g(f"v_max3_u32 v{vT}, v{vT}, v{b+k}, v{b+k+1}")
            if k + 3 < 32: g(f"v_max3_u32 v{vT1}, v{vT1}, v{b+k+2}, v{b+k+3}")
        g(f"""v_max_u32 v{vT}, v{vT}, v{vT1}
        v_cmp_eq_u32 vcc, -1, v{vT}
        s_sub_u32 s{sSPIN}, s{sSPIN}, 1
        s_cselect_b64 vcc, 0, vcc
        s_cselect_b32 s{sSPIN}, 0, s{sSPIN}
        s_cmp_lg_u64 vcc, 0""")
    def o_mfma(h):
        for i in range(4*h, 4*h + 4):
            for mt in range(2):
                for nt in range(2):
                    g.mf(ACC + 32*mt + 16*nt, WO + 8*i + 4*mt, OF + 8*i + 4*nt)
    g(f"""s_mov_b32 s{sSPIN}, {SPIN}
    L_OR:""")
    o_issue(0); o_issue(1)
    g("s_waitcnt vmcnt(8)")
    o_check(0)
    g("s_cbranch_scc1 L_OB0")
    o_mfma(0)
    g("""L_OW1:
    s_waitcnt vmcnt(0)""")
    o_check(1)
    g("s_cbranch_scc1 L_OR1")
    o_mfma(1)
    g("L_ODONE:")
    def retry():
        g("L_OR1:")
        o_issue(1)
        g("""s_branch L_OW1
        L_OB0:
        s_waitcnt vmcnt(0)""")
        o_check(1)
        g("s_cbranch_scc1 L_OR")
        o_issue(0)
        o_mfma(1)
        g("""L_OW0:
        s_waitcnt vmcnt(0)""")
        o_check(0)
        g("s_cbranch_scc0 L_OM0")
        o_issue(0)
        g("""s_branch L_OW0
        L_OM0:""")
        o_mfma(0)
        g("s_branch L_ODONE")
    g.out_of_line(retry)
    g.stamp(13)
    g.nop(9)
    for mt in range(2):
        for nt in range(2):
            for q in range(4):
                g(f"ds_write_b128 v25, {vr(ACC+32*mt+16*nt+4*q,4)} offset:{nt*32*PP + mt*128 + q*32}")
    g("s_waitcnt lgkmcnt(0)")


def final(g, O, debug):
    g(f"""L_FINAL:
    v_lshrrev_b32 v{vT}, 3, v0
    v_and_b32 v{vT1}, 7, v0
    v_mul_u32_u24 v{vT}, {PP}, v{vT}
    v_lshl_add_u32 v{vT}, v{vT1}, 5, v{vT}
    s_waitcnt vmcnt(0)""")
    for d in range(4):
        g(f"v_lshlrev_b32 v{64+2*d}, 16, v{vXR+d}")
        g(f"v_and_b32 v{65+2*d}, 0xffff0000, v{vXR+d}")
    g("s_barrier")
    for j in range(4):
        g(f"ds_read_b128 {vr(32+8*j,4)}, v{vT} offset:{j*PIMG}")
        g(f"ds_read_b128 {vr(36+8*j,4)}, v{vT} offset:{j*PIMG+16}")
    for j in range(4):
        g(f"s_waitcnt lgkmcnt({6-2*j})")
        for d in range(4):
            g(f"v_pk_add_f32 {vr(64+2*d,2)}, {vr(64+2*d,2)}, {vr(32+8*j+2*d,2)}")
    for d in range(4):
        g(f"v_cvt_pk_bf16_f32 v{72+d}, v{64+2*d}, v{65+2*d}")
    g(f"buffer_store_dwordx4 v[72:75], v{vXO}, {srd(S_OUT)}, 0 offen{['', ' sc1', ' nt', ' sc0 sc1'][O('outsc', 1)]}")
    if debug:
        g.stamp(14)
        g("s_waitcnt vmcnt(0)")
        g.stamp(15)
        g(f"""s_waitcnt lgkmcnt(0)
        s_lshl_b32 s{sT0}, s2, 3
        s_add_u32 s{sT0}, s{sT0}, s{sW}
        s_lshl_b32 s{sT0}, s{sT0}, 7
        s_add_u32 s{sT0}, s{sT0}, {WS_DBG}
        v_mov_b32 v{vT}, 0""")
        for i in range(16):
            g(f"v_writelane_b32 v{vT}, s{sSTAMP+2*i}, {i}")
        g(f"v_writelane_b32 v{vT}, s{sRETRY}, 16")
        g(f"v_writelane_b32 v{vT}, s{sRB}, 17")
        g(f"v_writelane_b32 v{vT}, s{sCB}, 18")
        g(f"""v_lshlrev_b32 v{vT1}, 2, v{vLANE}
        s_mov_b32 exec_hi, 0
        buffer_store_dword v{vT}, v{vT1}, {srd(S_WS)}, s{sT0} offen""")
        if O("dbgmax", 0):
            g(f"""s_load_dwordx2 s[{S_DBG}:{S_DBG+1}], s[0:1], 72
            s_mov_b32 s{S_DBG+2}, 256
            s_mov_b32 s{S_DBG+3}, 0x20000
            v_subrev_u32 v{vT}, s{sN}, v{vT}
            s_waitcnt lgkmcnt(0)
            s_cmp_lg_u32 s{sW}, {O("dbgmax", 0) - 1}
            s_cbranch_scc1 L_END
            s_mov_b64 exec, 0xfffe
            buffer_atomic_smax v{vT}, v{vT1}, {srd(S_DBG)}, 0 offen""")
    if O("amp", 0):
        st = O("amp", 0) % 100; role = O("amp", 0) // 100
        g(f"""s_sub_u32 s62, s{sSTAMP+2*st}, s{sN}
        s_lshl_b32 s62, s62, 2
        s_cmp_{'lt' if role == 1 else 'ge'}_u32 s{sW}, 4
        s_cselect_b32 s62, s62, 0
        s_max_i32 s62, s62, 0
        s_add_u32 s62, s62, 4000
        L_PAD:
        s_memrealtime s[60:61]
        s_waitcnt lgkmcnt(0)
        s_sub_u32 s60, s60, s{sN}
        s_cmp_lt_u32 s60, s62
        s_cbranch_scc1 L_PAD""")
    g("""L_END:
    s_endpgm""")


def a_role(g, O, debug):
    FOFF = float(O('foff', 80))
    g(f"""L_A_PRE:
    s_cmp_eq_u32 s{sPR}, 0
    s_cbranch_scc1 L_WQP
    s_setprio 2
    L_WQP:""")
    g.stamp(4)
    g(f"""s_lshl_b32 s{sT0}, s{sW}, 13
    s_add_u32 m0, s{sT0}, {R1}""")
    for i in range(8):
        g(f"""s_nop 0
        buffer_load_dwordx4 v{vDA}, {srd(S_WQ)}, s{sSO} offen lds
        buffer_load_dwordx4 v{vDB}, {srd(S_WQ)}, s{sSO} offen offset:1024 lds""")
        if i < 7:
            k = 13 if i == 3 else 1
            g(f"""s_add_u32 s{sSO}, s{sSO}, {16384*k}
            s_add_u32 m0, m0, {2048*k}""")
    NPF = 0
    if O("efill", 1) != 2:
        pf_w1(g); NPF = 2
    QACC = 144
    g(f"""
    v_and_b32 v25, 31, v{vLANE}
    s_and_b32 s{sT0}, s{sW}, 1
    s_mul_i32 s{sT0}, s{sT0}, {32*XP}
    s_add_u32 s{sT0}, s{sT0}, {R2}
    v_mul_u32_u24 v{vXF}, {XP}, v25
    v_lshl_add_u32 v{vXF}, v{vHB}, 4, v{vXF}
    v_add_u32 v{vXF}, s{sT0}, v{vXF}
    s_lshr_b32 s{sT0}, s{sW}, 1
    s_lshl_b32 s{sT0}, s{sT0}, 8
    v_lshl_add_u32 v{vWF}, v{vHB}, 10, v{vTR}
    v_add_u32 v{vWF}, s{sT0}, v{vWF}
    """)
    xq = lambda ks: (32 + 4 * ks) if ks < 28 else (160 + 4 * (ks - 28))
    g.wait_cnt(C_XN, 8, sleep=1)
    g(f"""s_cmp_lg_u32 s{sPR}, 0
    s_cbranch_scc1 L_XQ""")
    g.wait_cnt(C_KVDONE, 4, sleep=1)
    g("L_XQ:")
    for ks in range(32):
        g(f"ds_read_b128 {vr(xq(ks),4)}, v{vXF} offset:{ks*32}")
        if ks % 8 == 7 and ks < 31: g("s_waitcnt lgkmcnt(4)")
    g(f"""s_waitcnt vmcnt({8 + NPF})
    s_setprio 2""")
    g.arrive(C_WQ)
    g.wait_cnt(C_WQ, 4)
    g.stamp(10)
    FB = 176; NS = 8
    def rdq(ks):
        b = FB + 4 * (ks % NS)
        g(f"ds_read_b64_tr_b16 {vr(b,2)}, v{vWF} offset:{R1+ks*2048}")
        g(f"ds_read_b64_tr_b16 {vr(b+2,2)}, v{vWF} offset:{R1+ks*2048+512}")
    for ks in range(7): rdq(ks)
    for ks in range(32):
        b = FB + 4 * (ks % NS)
        g(f"s_waitcnt lgkmcnt({min(12, 2*(31-ks))})")
        g.mf(QACC, b, xq(ks), ks == 0)
        if ks + 7 == 16:
            g(f"s_waitcnt vmcnt({NPF})")
            g.arrive(C_WQ2)
            g.wait_cnt(C_WQ2, 4)
        if ks + 7 < 32: rdq(ks + 7)
    g.arrive(C_QD)
    g.stamp(5)
    QA, QB = 24, 28
    g.get_nonce()
    g(f"s_mov_b32 s{sIT}, {WS_KVF}")
    g.poll_issue(16, sIT, 8192)
    g(f"s_mov_b32 s{sT0}, {f2u(QSCALE):#x}")
    for i in range(16):
        g(f"v_mul_f32 v{QACC+i}, s{sT0}, v{QACC+i}")
    for i in range(8):
        g(f"v_cvt_pk_bf16_f32 v{QA+i}, v{QACC+2*i}, v{QACC+2*i+1}")
    SA = [32, 48]; SB = [64, 80]; CA, CB_ = 96, 112; OA, OB = 128, 144
    KF = [160, 164]; VF = [168, 176]; vIDX, vKA, vVA = 184, 185, 186
    vAD = 187
    def zero_state():
        for i in range(0, 16, 2):
            g(f"v_mov_b64 {vr(OA+i,2)}, 0"); g(f"v_mov_b64 {vr(OB+i,2)}, 0"); g(f"v_mov_b64 {vr(SB[1]+i,2)}, 0")
        for i in range(0, 8, 2):
            g(f"v_mov_b64 {vr(VF[1]+i,2)}, 0")
    g(f"""
    v_mov_b32 v{vIDX}, 0xdddddddd
    v_mov_b32 v{vKA}, v{vL16}
    v_and_b32 v{vT}, 31, v{vLANE}
    v_lshrrev_b32 v{vT1}, 5, v{vLANE}
    v_lshlrev_b32 v{vT1}, 8, v{vT1}
    v_lshl_add_u32 v{vT1}, v{vT}, 4, v{vT1}
    v_mov_b32 v{vT2}, 528
    v_mov_b32 v{vT3}, 512
    v_and_b32 v{vVA}, 0x1b, v{vT}
    v_cmp_eq_u32 vcc, 16, v{vVA}
    s_nop 1
    v_cndmask_b32 v{vT2}, v{vT2}, v{vT3}, vcc
    v_cmp_gt_u32 vcc, 16, v{vT}
    s_nop 1
    v_cndmask_b32 v{vVA}, v{vT2}, v{vT1}, vcc
    v_add_u32 v{vVA}, 1024, v{vVA}
    s_mov_b32 s{sRETRY}, 0
    s_lshl_b32 s{sT0}, s{sCB}, 13
    s_lshr_b32 s{sT1}, s{sW}, 1
    s_lshl_b32 s{sT1}, s{sT1}, 12
    s_add_u32 s{sT0}, s{sT0}, s{sT1}
    s_and_b32 s{sT1}, s{sW}, 1
    s_lshl_b32 s{sT1}, s{sT1}, 10
    s_add_u32 s{sT0}, s{sT0}, s{sT1}
    s_add_u32 s{sT0}, s{sT0}, s{sHO}
    s_add_u32 s{sOO}, s{sT0}, {112*2048}
    s_lshl_b32 s{sT0}, s{sW}, 2
    v_add_u32 v{vAD}, s{sT0}, v{vC}
    v_mov_b64 v[188:189], -1
    v_mov_b64 v[190:191], -1
    """)
    zero_state()
    g.wait_cnt(C_QD, 4)
    g("s_setprio 0")
    g.poll_flags(16, sIT, 8192, sleep=O("kvsleep", 1), issued=True)
    g("s_setprio 3")
    g.stamp(6)
    g(f"buffer_load_dwordx4 {vr(KF[0],4)}, v{vL16}, {srd(S_WS)}, 0 offen sc1")
    g.kv_dma(0, sW, 1)
    g(f"s_mov_b32 s{sT1}, {WS_KVF + 2048}")
    g.poll_issue(16, sT1, 8192)
    AB = O("abl", 0)
    def qk(S, K, Q, C): g(f"v_mfma_f32_32x32x16_bf16 {vr(S,16)}, {vr(K,4)}, {vr(Q,4)}, {C}")
    def pv(O_, V, P):
        if AB == 1: return
        if AB == 5: g(f"v_mfma_f32_32x32x16_bf16 {vr(O_,16)}, {vr(V,4)}, {vr(P,4)}, {vr(O_,16)}"); return
        g(f"v_smfmac_f32_32x32x32_bf16 {vr(O_,16)}, {vr(V,4)}, {vr(P,8)}, v{vIDX}")
    def max16(S, d):
        g(f"v_max3_f32 v{d}, v{S}, v{S+1}, v{S+2}")
        for i in range(3, 15, 2):
            g(f"v_max3_f32 v{d}, v{d}, v{S+i}, v{S+i+1}")
        g(f"v_max_f32 v{d}, v{d}, v{S+15}")
    def xhalf_max(d, t):
        g(f"""v_mov_b32 v{t}, v{d}
        s_nop 1
        v_permlane32_swap_b32 v{d}, v{t}
        s_nop 1
        v_max_f32 v{d}, v{d}, v{t}""")
    g.stamp(1)
    g("s_waitcnt vmcnt(4)")
    g.stamp(2)
    qk(SA[0], KF[0], QA, "0"); qk(SB[0], KF[0], QB, "0")
    g.nop(11)
    max16(SA[0], vT); max16(SB[0], vT1)
    xhalf_max(vT, vT2); xhalf_max(vT1, vT2)
    g(f"""v_add_f32 v{vT}, {f2u(FOFF):#x}, v{vT}
    v_add_f32 v{vT1}, {f2u(FOFF):#x}, v{vT1}
    L_ATT_START:
    v_sub_f32 v{CA}, 0, v{vT}
    v_sub_f32 v{CA+1}, 0, v{vT}
    v_sub_f32 v{CB_}, 0, v{vT1}
    v_sub_f32 v{CB_+1}, 0, v{vT1}""")
    for i in range(2, 16, 2):
        g(f"v_mov_b64 {vr(CA+i,2)}, {vr(CA,2)}")
    g(f"""s_mov_b32 s{sIT}, s{sRETRY}
    s_cmp_lg_u32 s{sRETRY}, 0""")
    qk(SA[0], KF[0], QA, vr(CA, 16))
    for i in range(2, 16, 2):
        g(f"v_mov_b64 {vr(CB_+i,2)}, {vr(CB_,2)}")
    g.nop(4)
    g("s_cbranch_scc1 L_ATT_GO")
    g.stamp(3)
    g("s_waitcnt vmcnt(0)")
    g.stamp(11)
    g.arrive(C_H1)
    g.kv_dma(0, sW, 2)
    g.wait_cnt(C_H1, 4)
    g(f"""L_ATT_GO:
    s_setprio {O('aprio', 1)}""")
    g.stamp(7); g.stamp(12, True)
    g("""s_nop 1
    .p2align 6
    L_ATT:""")
    UN = 16
    def exps(S, lo, hi, first64=False):
        for i in range(lo, hi):
            if AB == 2: g(f"v_mul_f32{'_e64' if (first64 and i == lo) else ''} v{S+i}, 0, v{S+i}"); g(f"v_mul_f32 v{vT}, 0, v{vT}"); g("s_nop 0") if False else None; continue
            if AB == 3: g(f"v_exp_f32{'_e64' if (first64 and i == lo) else ''} v{192+i}, v{S+i}"); continue
            g(f"v_exp_f32{'_e64' if (first64 and i == lo) else ''} v{S+i}, v{S+i}")
    def side(it, fn):
        l = g.lab("SB"); r = g.lab("SR")
        g(f"""s_cmp_eq_u32 s{sIT}, {it}
        s_cbranch_scc1 {l}
        {r}:""")
        def blk():
            g(f"{l}:"); fn(); g(f"s_branch {r}")
        g.out_of_line(blk)
    def blk_q1():
        g.poll_flags(16, sT1, 8192, sleep=1, issued=True)
        g.kv_dma(1, sW)
        g(f"""buffer_store_dwordx4 v[188:191], v{vL16}, {srd(S_WS)}, s{sOO} offen sc1
        buffer_store_dwordx4 v[188:191], v{vL16}, {srd(S_WS)}, s{sOO} offen offset:2048 sc1""")
    def blk_h1b():
        g("s_waitcnt vmcnt(10)")
        g.arrive(C_H1B)
    def blk_h1c():
        g("s_waitcnt vmcnt(0)")
        g.arrive(C_H1C)
    for t in range(UN):
        p = t % 2
        qk(SB[p], KF[p], QB, vr(CB_, 16))
        if AB != 4:
            g(f"ds_read_b128 {vr(KF[1-p],4)}, v{vKA} offset:{(t+1)*REC}")
            g(f"ds_read_b128 {vr(VF[p],4)}, v{vVA} offset:{t*REC}")
            g(f"ds_read_b128 {vr(VF[p]+4,4)}, v{vVA} offset:{t*REC+544}")
        exps(SA[p], 0, 4)
        pv(OB, VF[1-p], SB[1-p])
        exps(SA[p], 4, 10)
        pv(OB, VF[1-p] + 4, SB[1-p] + 8)
        g("s_waitcnt lgkmcnt(0)")
        exps(SA[p], 10, 16, True)
        qk(SA[1-p], KF[1-p], QA, vr(CA, 16))
        exps(SB[p], 0, 4)
        pv(OA, VF[p], SA[p])
        if t == UN - 1:
            g(f"""v_add_u32 v{vKA}, {UN*REC}, v{vKA}
            v_add_u32 v{vVA}, {UN*REC}, v{vVA}""")
        exps(SB[p], 4, 10)
        pv(OA, VF[p] + 4, SA[p] + 8)
        if debug and O("itstamp", 0):
            if t == 4: side(0, lambda: g.stamp(3, True))
            if t == 8: side(0, lambda: g.stamp(4, True))
            if t == 0: side(1, lambda: g.stamp(1, True)); side(2, lambda: g.stamp(2, True)); side(3, lambda: g.stamp(11, True))
        if t == 2: side(0, blk_q1)
        if t == 3: side(0, blk_h1b)
        if t == 6: side(0, lambda: g.wait_cnt(C_H1B, 4))
        if t == 9: side(0, blk_h1c)
        if t == UN - 3: side(0, lambda: g.wait_cnt(C_H1C, 4))
        if t == UN - 2: side(1, lambda: g.wait_cnt(C_H2, 4))
        if t == UN - 1:
            g(f"""s_add_u32 s{sIT}, s{sIT}, 1
            s_bitcmp0_b32 s{sIT}, 2""")
        exps(SB[p], 10, 16)
    g("s_cbranch_scc1 L_ATT")
    pv(OB, VF[1], SB[1]); pv(OB, VF[1] + 4, SB[1] + 8)
    g.stamp(8); g.stamp(13, True)
    g("s_setprio 3")
    g.arrive(C_AD0, v=vAD)
    g(f"""v_mov_b32 v{vT2}, {f2u(2.0**110):#x}
    v_fma_f32 v{vT}, v{OA}, 0, v{OA+8}""")
    for i in range(1, 8):
        g(f"v_fma_f32 v{vT}, v{OA+i}, 0, v{vT}")
    g(f"""v_rcp_f32 v{vT3}, v{OA+8}
    v_cmp_nlt_f32 s[{sM}:{sM+1}], v{vT}, v{vT2}
    v_fma_f32 v{vT1}, v{OB}, 0, v{OB+8}""")
    for i in range(1, 8):
        g(f"v_fma_f32 v{vT1}, v{OB+i}, 0, v{vT1}")
    g(f"""v_cmp_nlt_f32 vcc, v{vT1}, v{vT2}
    v_rcp_f32 v{vT1}, v{OB+8}
    s_nop 0
    s_or_b64 vcc, vcc, s[{sM}:{sM+1}]
    s_cmp_lg_u64 vcc, 0
    {'s_nop 0' if AB else 's_cbranch_scc1 L_FALLBACK'}
    L_ATT_OK:""")
    def fallback():
        g(f"""L_FALLBACK:
        s_cmp_lg_u32 s{sRETRY}, 0
        s_cbranch_scc1 L_ATT_OK
        s_mov_b32 s{sRETRY}, 16
        v_subrev_u32 v{vKA}, {64*REC}, v{vKA}
        v_subrev_u32 v{vVA}, {64*REC}, v{vVA}
        v_mov_b32 v{vT3}, v{vKA}
        v_mov_b32 v{vT}, 0xff800000
        v_mov_b32 v{vT1}, 0xff800000
        s_mov_b32 s{sIT}, 0
        L_MAXP:
        ds_read_b128 {vr(KF[0],4)}, v{vT3}
        v_add_u32 v{vT3}, {REC}, v{vT3}
        s_waitcnt lgkmcnt(0)""")
        qk(SA[0], KF[0], QA, "0"); qk(SB[0], KF[0], QB, "0")
        g.nop(12)
        for i in range(0, 16, 2):
            g(f"v_max3_f32 v{vT}, v{vT}, v{SA[0]+i}, v{SA[0]+i+1}")
        for i in range(0, 16, 2):
            g(f"v_max3_f32 v{vT1}, v{vT1}, v{SB[0]+i}, v{SB[0]+i+1}")
        g(f"""s_add_u32 s{sIT}, s{sIT}, 1
        s_cmp_lt_u32 s{sIT}, 64
        s_cbranch_scc1 L_MAXP
        ds_read_b128 {vr(KF[0],4)}, v{vKA}""")
        xhalf_max(vT, vT2); xhalf_max(vT1, vT2)
        zero_state()
        g(f"""s_waitcnt lgkmcnt(0)
        s_branch L_ATT_START""")
    g.out_of_line(fallback)
    for (O_, r, d, off) in ((OA, vT3, 32, 0), (OB, vT1, 36, 2048)):
        for i in range(8):
            g(f"v_mul_f32 v{O_+i}, v{O_+i}, v{r}")
        for i in range(4):
            g(f"v_cvt_pk_bf16_f32 v{d+i}, v{O_+2*i}, v{O_+2*i+1}")
        for i in range(4):
            g(f"v_min_u32 v{d+i}, -2, v{d+i}")
        g(f"buffer_store_dwordx4 {vr(d,4)}, v{vL16}, {srd(S_WS)}, s{sOO} offen offset:{off} sc1")
    g.arrive(C_ADONE)
    g(f"buffer_load_dwordx4 {vr(vXR,4)}, v{vXO}, {srd(S_X)}, 0 offen")
    g.stamp(9)
    g("s_branch L_FINAL")


def gen(debug=False, opt=None):
    opt = opt or {}
    O = lambda k, d: opt.get(k, d)
    g = G(debug)
    g.ff = ['', 'sc1', 'nt', 'sc0 sc1'][O('ff', 0)]
    prologue(g, O)
    layernorm(g, O)
    g_role(g, O)
    final(g, O, debug)
    a_role(g, O, debug)
    g.L += g.tail
    g("L_CODE_END:")
    ref = open(f"cdna_kernels/{NAME}.s.ref").read().split("\n")
    hdr = [l for l in ref if l.startswith(";") and "@launch" not in l]
    out = hdr + [f"; @launch grid=(256,1,1) block=(512,1,1) lds={LDS_BYTES}",
                 '.amdgcn_target "amdgcn-amd-amdhsa--gfx950"', ".text", f".globl {NAME}_kernel", ".p2align 8",
                 f".type {NAME}_kernel,@function", f"{NAME}_kernel:"] + g.L + [
        '.section .rodata,"a"', ".p2align 6", f".amdhsa_kernel {NAME}_kernel",
        "  .amdhsa_next_free_vgpr 256", "  .amdhsa_next_free_sgpr 102", "  .amdhsa_accum_offset 256",
        "  .amdhsa_group_segment_fixed_size 0", "  .amdhsa_kernarg_size 88", "  .amdhsa_user_sgpr_count 2",
        "  .amdhsa_user_sgpr_kernarg_segment_ptr 1", "  .amdhsa_system_sgpr_workgroup_id_x 1", ".end_amdhsa_kernel", ""]
    return "\n".join(out)


if __name__ == "__main__":
    ap = argparse.ArgumentParser()
    ap.add_argument("-o", default=f"cdna_kernels/{NAME}.s")
    ap.add_argument("--debug", action="store_true")
    ap.add_argument("opts", nargs="*")
    a = ap.parse_args()
    opt = {k: int(v) for k, v in (o.split("=") for o in a.opts)}
    open(a.o, "w").write(gen(a.debug, opt))
```

```python
import sys, argparse, struct

NAME = "parallel_sum__grouped_kv_mqa__dense_activation_relu__prompt"

REC = 2112
HALF = 32 * REC
R1, R2, R3 = 0, HALF, 2 * HALF
RING = 6144
CNT = R3 + 4 * RING
(C_H1C, C_H2, C_RST, C_H1B, C_KVDONE, C_KVST, C_QD, C_H1, C_G1, C_WQ, C_ADONE, C_PUB, C_XN, C_WQ2,
 C_QH, C_REL, C_AD0) = range(0, 68, 4)
XB = 16 * REC
LDS_BYTES = 163840
XP = 1040
PP = 272
PIMG = 64 * PP
WS_KV = 0
WS_KVF = 0x40000
WS_HO = 0x80000
HO_RB = 144 * 2048
WS_DBG = 0xA00000
WS_HF = 0xC00000
WS_BYTES = 0x1000000
QSCALE = 0.25 * 1.4426950408889634
SPIN = 1 << 15
NREP = 16

def f2u(x): return struct.unpack("<I", struct.pack("<f", x))[0]

S_X, S_OUT, S_WS, S_WO, S_W2, S_WQ, S_WKV, S_W1, S_DBG = 4, 8, 12, 16, 20, 24, 28, 32, 36
POLL = 24
sKVO = 3
sW, sRB, sCB = 40, 41, 42
sT0, sT1, sT2, sRG = 43, 44, 45, 46
sSPIN, sSO, sSTEP, sIT, sHO, sFL, sRETRY = 47, 48, 49, 50, 51, 52, 53
sM = 54
sJ, sMT = 56, 57
sPC = 58
sOO = 59
sSTAMP = 64
sIDX, sPR = 96, 97
sTM = 98
sN = 100
sRX = 3

vLANE, vC, vONE, vT, vT1, vT2, vT3 = 1, 2, 3, 4, 5, 6, 7
vL16 = 8
vDA, vDB = 9, 10
vXF, vWF = 11, 12
vXO = 13
vN, vZ = 14, 15
vXR = 16
vROW, vCOL, vC16, vTR, vHB = 20, 21, 22, 23, 24
vDUM = 210

def srd(b): return f"s[{b}:{b+3}]"
def vr(b, n=1): return f"v{b}" if n == 1 else f"v[{b}:{b+n-1}]"


class G:
    def __init__(self, debug):
        self.L = []
        self.tail = []
        self.debug = debug
        self.nlab = 0

    def __call__(self, s):
        for line in s.split("\n"):
            line = line.strip()
            if line:
                self.L.append(line if line.endswith(":") else "    " + line)

    def lab(self, p="L"):
        self.nlab += 1
        return f"{p}_{self.nlab}"

    def stamp(self, i, cyc=False):
        if self.debug:
            self(f"{'s_memtime' if cyc else 's_memrealtime'} s[{sSTAMP+2*i}:{sSTAMP+2*i+1}]")

    def nop(self, n):
        while n > 0:
            k = min(n, 16)
            self(f"s_nop {k-1}")
            n -= k

    def out_of_line(self, fn):
        main = self.L; self.L = self.tail
        fn()
        self.L = main

    def arrive(self, c, v=vC):
        self(f"""s_mov_b64 exec, 1
        ds_add_u32 v{v}, v{vONE} offset:{c}
        s_mov_b64 exec, -1""")

    def wait_cnt(self, c, target, sleep=0, v=vC):
        l = self.lab("WC"); d = self.lab("WD")
        self(f"""s_mov_b32 s{sSPIN}, {SPIN}
        {l}:
        ds_read_b32 v{vT}, v{v} offset:{c}
        s_waitcnt lgkmcnt(0)
        v_readfirstlane_b32 s{sT0}, v{vT}
        s_sub_u32 s{sSPIN}, s{sSPIN}, 1
        s_cbranch_scc1 {d}
        s_cmp_ge_u32 s{sT0}, {target}
        s_cbranch_scc1 {d}""")
        if sleep: self(f"s_sleep {sleep}")
        self(f"""s_branch {l}
        {d}:""")

    def poll_issue(self, n, soff, stride):
        for i in range(n):
            self(f"s_buffer_load_dword s{POLL+i}, {srd(S_WS)}, s{soff} offset:{128*i}")
        self(f"s_add_u32 s{soff}, s{soff}, {stride}")

    def poll_flags(self, n, soff, stride, sleep=1, issued=False):
        l = self.lab("PF"); d = self.lab("PD"); v = self.lab("PV"); c = self.lab("PC")
        self(f"s_mov_b32 s{sSPIN}, {NREP-2}")
        if issued: self(f"s_branch {c}")
        self(f"{l}:")
        self.poll_issue(n, soff, stride)
        self(f"""{c}:
        s_waitcnt lgkmcnt(0)
        s_xor_b64 s[{sM}:{sM+1}], s[{POLL}:{POLL+1}], s[{sN}:{sN+1}]""")
        for p in range(POLL + 2, POLL + n, 2):
            self(f"""s_xor_b64 s[{p}:{p+1}], s[{p}:{p+1}], s[{sN}:{sN+1}]
            s_or_b64 s[{sM}:{sM+1}], s[{sM}:{sM+1}], s[{p}:{p+1}]""")
        self(f"s_cbranch_scc0 {d}")
        if sleep: self(f"s_sleep {sleep}")
        self(f"""s_sub_u32 s{sSPIN}, s{sSPIN}, 1
        s_cbranch_scc0 {l}
        v_min_u32 v{vT1}, {n-1}, v{vLANE}
        v_lshlrev_b32 v{vT1}, 7, v{vT1}
        s_mov_b32 s{sSPIN}, {SPIN}
        {v}:
        buffer_load_dword v{vT}, v{vT1}, {srd(S_WS)}, s{soff} offen sc1
        s_waitcnt vmcnt(0)
        v_cmp_eq_u32 vcc, s{sN}, v{vT}
        s_sub_u32 s{sSPIN}, s{sSPIN}, 1
        s_cbranch_scc1 {d}
        s_cmp_eq_u64 vcc, -1
        s_cbranch_scc1 {d}
        s_sleep 4
        s_branch {v}
        {d}:""")

    def publish(self, soff, shift):
        self(f"""v_lshlrev_b32 v{vT}, {shift}, v{vLANE}
        s_mov_b64 exec, {(1 << NREP) - 1}
        buffer_store_dword v{vN}, v{vT}, {srd(S_WS)}, s{soff} offen sc1
        s_mov_b64 exec, -1""")

    def load_nonce(self):
        self(f"buffer_load_dword v{vN}, v{vZ}, {srd(S_DBG)}, 0 offen sc1")

    def get_nonce(self):
        l = self.lab("GN"); d = self.lab("GD")
        self(f"""s_mov_b32 s{sSPIN}, {SPIN}
        {l}:
        v_readfirstlane_b32 s{sN}, v{vN}
        s_sub_u32 s{sSPIN}, s{sSPIN}, 1
        s_cbranch_scc1 {d}
        s_cmp_lg_u32 s{sN}, 0
        s_cbranch_scc1 {d}""")
        self.load_nonce()
        self(f"""s_waitcnt vmcnt(0)
        s_branch {l}
        {d}:
        s_mov_b32 s{sN+1}, s{sN}""")

    def fill(self, slot, sb):
        self(f"""s_add_u32 m0, s{sRG if slot < 3 else sRX}, {(slot if slot < 3 else slot - 3)*2048}
        s_nop 0
        buffer_load_dwordx4 v{vDA}, {srd(sb)}, s{sSO} offen {self.ff} lds
        buffer_load_dwordx4 v{vDB}, {srd(sb)}, s{sSO} offen offset:1024 {self.ff} lds
        s_add_u32 s{sSO}, s{sSO}, s{sSTEP}""")

    def kv_dma(self, q, sidx, part=3):
        base = q * 16 * REC + (16384 if part == 2 else 0)
        self(f"""s_lshl_b32 s{sT0}, s{sidx}, 12
        s_add_u32 s{sSO}, s{sT0}, {WS_KV + base}
        s_add_u32 m0, s{sT0}, {base}""")
        for gi in range(2 if part == 3 else 1):
            self("s_nop 0")
            for i in range(4):
                self(f"buffer_load_dwordx4 v{vL16}, {srd(S_WS)}, s{sSO} offen offset:{i*1024} sc1 lds")
            if part == 1: return
            self(f"""s_add_u32 s{sSO}, s{sSO}, 16384
            s_add_u32 m0, m0, 16384""")
        l = self.lab("KD")
        self(f"""s_cmp_lg_u32 s{sidx}, 0
        s_cbranch_scc1 {l}
        buffer_load_dwordx4 v{vL16}, {srd(S_WS)}, s{sSO} offen sc1 lds
        {l}:""")

    def mf(self, D, A, B, first=False):
        self(f"v_mfma_f32_32x32x16_bf16 {vr(D,16)}, {vr(A,4)}, {vr(B,4)}, {'0' if first else vr(D,16)}")


XR = 32
def prologue(g, O):
    g(f"""
    s_cmp_ge_u32 s2, 256
    s_cbranch_scc1 L_END
    s_load_dwordx2 s[{S_X}:{S_X+1}], s[0:1], 0
    s_load_dwordx2 s[{S_WQ}:{S_WQ+1}], s[0:1], 8
    s_load_dwordx4 s[60:63], s[0:1], 16
    s_load_dwordx2 s[{S_WO}:{S_WO+1}], s[0:1], 32
    s_load_dwordx2 s[{S_W1}:{S_W1+1}], s[0:1], 48
    s_load_dwordx2 s[{S_W2}:{S_W2+1}], s[0:1], 56
    s_load_dwordx2 s[{S_OUT}:{S_OUT+1}], s[0:1], 64
    s_load_dwordx2 s[{S_DBG}:{S_DBG+1}], s[0:1], 72
    s_load_dwordx2 s[{S_WS}:{S_WS+1}], s[0:1], 80
    s_memrealtime s[{sTM}:{sTM+1}]
    """)
    g.stamp(0)
    g(f"""
    s_getpc_b64 s[{sPC}:{sPC+1}]
    L_PC:
    v_lshrrev_b32 v{vT}, 6, v0
    v_and_b32 v{vLANE}, 63, v0
    s_lshr_b32 s{sIDX}, s2, 3
    v_readfirstlane_b32 s{sW}, v{vT}
    """)
    if O("pfc", 1):
        g(f"""
        v_lshlrev_b32 v27, 7, v0
        v_min_u32 v27, L_CODE_END-L_PC-4, v27
        v_and_b32 v27, -4, v27
        v_mov_b32 v29, s{sPC+1}
        v_add_co_u32 v28, vcc, s{sPC}, v27
        s_cmp_ge_u32 s{sW}, 4
        s_cbranch_scc1 L_NPC
        v_addc_co_u32 v29, vcc, 0, v29, vcc
        global_load_dword v{vDUM}, v[28:29], off
        L_NPC:
        """)
    if O("rbmap", 0):
        rbcode = f"""s_lshr_b32 s{sT0}, s{sT0}, 1
        s_and_b32 s{sRB}, s{sIDX}, 7
        s_lshl_b32 s{sRB}, s{sRB}, 2"""
    else:
        rbcode = f"""s_lshl_b32 s{sT0}, s{sT0}, 2
        s_and_b32 s{sRB}, s{sIDX}, 7"""
    touch = ""
    if O("tlb", 1):
        t = [f"s_cmp_lg_u32 s{sW}, {O('tlbw', 7)}", "s_cbranch_scc1 L_NT",
             f"s_mul_i32 s{sT2}, s{sRB}, {HO_RB}", f"s_add_u32 s{sT2}, s{sT2}, {WS_HO}"]
        step = O("tlbstep", 2048) * 1024
        for b, size in ((S_WQ, 524288), (S_W1, 1835008), (S_WKV, 16384), (S_W2, 1835008), (S_WO, 524288), (S_OUT, 1)):
            for off in range(0, size, step):
                if off < (1 << 20): t.append(f"s_load_dword s63, s[{b}:{b+1}], {off}")
                else: t += [f"s_mov_b32 s{sT0}, {off}", f"s_load_dword s63, s[{b}:{b+1}], s{sT0}"]
        t += [f"s_load_dword s63, s[{S_WS}:{S_WS+1}], 0", f"s_load_dword s63, s[{S_WS}:{S_WS+1}], s{sT2}",
              f"s_add_u32 s{sT2}, s{sT2}, {HO_RB - 64}", f"s_load_dword s63, s[{S_WS}:{S_WS+1}], s{sT2}",
              f"s_lshl_b32 s{sT2}, s{sRB}, 16", f"s_add_u32 s{sT2}, s{sT2}, {WS_HF}", f"s_load_dword s63, s[{S_WS}:{S_WS+1}], s{sT2}", "L_NT:"]
        touch = "\n".join(t)
    g(f"""
    s_lshr_b32 s{sPR}, s{sIDX}, 3
    s_and_b32 s{sT0}, s2, 1
    s_lshl_b32 s{sT0}, s{sT0}, 2
    s_add_u32 s{sCB}, s{sT0}, s{sPR}
    s_and_b32 s{sT0}, s2, 6
    {rbcode}
    s_add_u32 s{sRB}, s{sRB}, s{sT0}
    s_mov_b32 s{S_X+2}, 2097152
    s_mov_b32 s{S_X+3}, 0x20000
    v_lshrrev_b32 v{vT}, 3, v{vLANE}
    v_and_b32 v{vT1}, 7, v{vLANE}
    v_lshlrev_b32 v{vT2}, 10, v{vT}
    v_lshl_or_b32 v{vT2}, v{vT1}, 4, v{vT2}
    s_and_b32 s{sT2}, s{sPR}, 1
    s_lshl_b32 s{sT2}, s{sT2}, 2
    s_xor_b32 s{sSTEP}, s{sW}, s{sT2}
    s_lshl_b32 s{sT0}, s{sRB}, 16
    s_lshl_b32 s{sT1}, s{sSTEP}, 13
    s_add_u32 s{sT1}, s{sT0}, s{sT1}
    s_mov_b32 s{S_DBG+2}, 256
    s_mov_b32 s{S_DBG+3}, 0x20000
    v_mov_b32 v{vZ}, 0
    v_lshlrev_b32 v{vL16}, 4, v{vLANE}
    s_sub_u32 s{sJ}, s{sW}, 4
    s_mov_b32 s{S_WKV+2}, 16384
    s_mov_b32 s{S_WKV+3}, 0x20000
    v_lshlrev_b32 v28, 7, v{vLANE}
    v_mov_b32 v{vC}, {CNT}
    v_mov_b32 v{vONE}, 1
    v_lshl_add_u32 v29, v{vLANE}, 2, v{vC}
    ds_write_b32 v29, v{vZ}
    s_cmp_lt_u32 s{sCB}, 4
    s_waitcnt lgkmcnt(0)
    s_barrier
    s_cselect_b32 s{S_WKV}, s60, s62
    s_cselect_b32 s{S_WKV+1}, s61, s63
    {touch}
    s_cmp_lg_u32 s{sPR}, 1
    s_cbranch_scc1 L_PFE
    s_cmp_lg_u32 s{sW}, 0
    s_cbranch_scc1 L_PFE
    s_and_b32 s{sT2}, s{sIDX}, 7
    s_lshl_b32 s{sT2}, s{sT2}, 11
    s_mov_b64 exec, 0xffff
    buffer_load_dword v{vDUM}, v28, {srd(S_WKV)}, s{sT2} offen
    s_mov_b64 exec, -1
    L_PFE:
    s_or_b32 s{sT0}, s2, s{sW}
    s_cmp_lg_u32 s{sT0}, 0
    s_cbranch_scc1 L_NN
    s_or_b32 s{sT0}, s{sTM}, 1
    v_mov_b32 v{vN}, s{sT0}
    s_mov_b64 exec, 1
    buffer_store_dword v{vN}, v{vZ}, {srd(S_DBG)}, 0 offen sc1
    s_mov_b64 exec, -1
    L_NN:""")
    for i in range(8):
        g(f"buffer_load_dwordx4 {vr(XR+4*i,4)}, v{vT2}, {srd(S_X)}, s{sT1} offen offset:{i*128}")
    g.stamp(1)
    g(f"""
    s_cmp_lt_u32 s{sW}, 4
    s_cbranch_scc1 L_NKV
    s_cmp_lg_u32 s{sPR}, 0
    s_cbranch_scc1 L_NKV
    s_mul_i32 s{sT1}, s{sJ}, 4224
    s_add_u32 m0, s{sT1}, {R3}
    s_lshl_b32 s{sT0}, s{sJ}, 12""")
    for i in range(4):
        g(f"buffer_load_dwordx4 v{vL16}, {srd(S_WKV)}, s{sT0} offen offset:{i*1024} lds")
    g(f"""
    L_NKV:
    s_mov_b32 s{S_WQ+2}, 524288
    s_mov_b32 s{S_WQ+3}, 0x20000
    s_mov_b32 s{S_WO+2}, 524288
    s_mov_b32 s{S_WO+3}, 0x20000
    s_mov_b32 s{S_W1+2}, 1835008
    s_mov_b32 s{S_W1+3}, 0x20000
    s_mov_b32 s{S_W2+2}, 1835008
    s_mov_b32 s{S_W2+3}, 0x20000
    s_mov_b32 s{S_OUT+2}, 2097152
    s_mov_b32 s{S_OUT+3}, 0x20000
    s_mov_b32 s{S_WS+2}, {WS_BYTES}
    s_mov_b32 s{S_WS+3}, 0x20000
    v_lshrrev_b32 v{vHB}, 5, v{vLANE}
    v_bfe_u32 v{vTR}, v{vLANE}, 2, 2
    v_lshl_add_u32 v{vROW}, v{vHB}, 2, v{vTR}
    v_bfe_u32 v25, v{vLANE}, 4, 1
    v_and_b32 v26, 3, v{vLANE}
    v_lshlrev_b32 v{vC16}, 4, v26
    v_lshl_add_u32 v{vCOL}, v25, 6, v{vC16}
    s_mul_i32 s{sT1}, s{sSTEP}, {8*XP}
    s_add_u32 s{sT1}, s{sT1}, {R2}
    v_mul_u32_u24 v{vT3}, {XP}, v{vT}
    v_lshl_add_u32 v{vT3}, v{vT1}, 4, v{vT3}
    v_add_u32 v{vT3}, s{sT1}, v{vT3}
    s_mul_i32 s{sHO}, s{sRB}, {HO_RB}
    s_add_u32 s{sHO}, s{sHO}, {WS_HO}
    s_lshl_b32 s{sFL}, s{sRB}, 16
    s_add_u32 s{sFL}, s{sFL}, {WS_HF}
    v_lshrrev_b32 v{vXO}, 3, v0
    v_lshlrev_b32 v{vXO}, 10, v{vXO}
    v_lshl_or_b32 v{vXO}, v{vT1}, 4, v{vXO}
    s_lshl_b32 s{sT1}, s{sRB}, 16
    s_lshl_b32 s{sT2}, s{sCB}, 7
    s_add_u32 s{sT1}, s{sT1}, s{sT2}
    v_add_u32 v{vXO}, s{sT1}, v{vXO}
    v_lshlrev_b32 v{vTR}, 6, v{vTR}
    v_lshl_add_u32 v{vTR}, v25, 5, v{vTR}
    v_lshl_add_u32 v{vTR}, v26, 3, v{vTR}
    v_mov_b32 v138, 0
    v_mov_b32 v139, 0
    v_lshrrev_b32 v27, 4, v{vLANE}
    v_and_b32 v28, 15, v{vLANE}
    v_min_u32 v28, 13, v28
    v_lshlrev_b32 v28, 7, v28
    s_mov_b32 s{sT1}, 3584
    v_mad_u32_u24 v27, v27, s{sT1}, v28
    s_sub_u32 s{sT0}, s{sIDX}, 8
    s_lshl_b32 s{sT0}, s{sT0}, 2
    s_and_b32 s{sT2}, s{sW}, 3
    s_add_u32 s{sT0}, s{sT0}, s{sT2}
    s_mul_i32 s{sT0}, s{sT0}, {4*3584}
    s_lshr_b32 s{sT1}, s{sCB}, 2
    s_mul_i32 s{sT1}, s{sT1}, 1792
    s_add_u32 s{sT0}, s{sT0}, s{sT1}
    v_add_u32 v27, s{sT0}, v27
    s_cmp_ge_u32 s{sW}, 4
    s_cbranch_scc1 L_G_ADDR
    v_lshl_add_u32 v{vDA}, v{vROW}, 10, v{vCOL}
    v_add_u32 v{vDB}, {8*1024-1024}, v{vDA}
    s_lshl_b32 s{sSO}, s{sW}, 16
    s_lshl_b32 s{sT0}, s{sCB}, 7
    s_add_u32 s{sSO}, s{sSO}, s{sT0}
    s_branch L_LN
    L_G_ADDR:
    s_lshr_b32 s{sT1}, s{sCB}, 2
    s_mul_i32 s{sMT}, s{sT1}, 28
    s_lshl_b32 s{sT0}, s{sPR}, 2
    s_add_u32 s{sT0}, s{sT0}, s{sJ}
    s_lshl_b32 s{sT0}, s{sT0}, 1
    s_sub_u32 s{sT0}, s{sT0}, 4
    s_cmp_eq_u32 s{sPR}, 0
    s_cselect_b32 s{sT0}, s{sJ}, s{sT0}
    s_add_u32 s{sMT}, s{sMT}, s{sT0}
    s_lshl_b32 s{sSO}, s{sMT}, 6
    s_mov_b32 s{sT1}, 3584
    v_mad_u32_u24 v{vDA}, v{vROW}, s{sT1}, v{vCOL}
    v_add_u32 v{vDB}, {8*3584-1024}, v{vDA}
    s_mov_b32 s{sSTEP}, {16*3584}
    s_mul_i32 s{sRG}, s{sJ}, {RING}
    s_add_u32 s{sRG}, s{sRG}, {R3}
    s_cmp_lg_u32 s{sPR}, 0
    s_cbranch_scc1 {'L_G_EARLY' if O('efill', 1) else 'L_LN'}
    v_lshrrev_b32 v28, 2, v{vLANE}
    v_mad_u32_u24 v{vDA}, v28, s{sT1}, v{vC16}
    v_add_u32 v{vDB}, {16*3584-1024}, v{vDA}
    s_mov_b32 s{sSTEP}, {32*3584}
    v_and_b32 v142, 15, v{vLANE}
    v_lshrrev_b32 v143, 4, v{vLANE}
    s_mul_i32 s{sT0}, s{sJ}, {16*XP}
    s_add_u32 s{sT0}, s{sT0}, {R2}
    v_mul_u32_u24 v136, {XP}, v142
    v_lshl_add_u32 v136, v143, 8, v136
    v_add_u32 v136, s{sT0}, v136
    v_mul_u32_u24 v137, 4224, v143
    v_lshl_add_u32 v137, v142, 3, v137
    v_add_u32 v137, {R3}, v137
    ; K: ((g&1)*32 + 16*(j&1) + (l&15))*16 + (g>>1)*8 ; V: 1024 + (j&1)*544 + (g>>1)*256 + d*16 + (g&1)*8
    v_and_b32 v140, 1, v143
    v_lshrrev_b32 v141, 1, v143
    v_lshlrev_b32 v142, 4, v142
    v_lshl_add_u32 v138, v140, 9, v142
    v_lshl_add_u32 v138, v141, 3, v138
    v_lshl_add_u32 v139, v141, 8, v142
    v_lshl_add_u32 v139, v140, 3, v139
    s_lshl_b32 s{sT0}, s{sRB}, 1
    s_lshr_b32 s{sT1}, s{sJ}, 1
    s_add_u32 s{sT0}, s{sT0}, s{sT1}
    s_mul_i32 s{sKVO}, s{sT0}, {REC}
    s_and_b32 s{sT1}, s{sJ}, 1
    s_lshl_b32 s{sT0}, s{sT1}, 8
    s_mul_i32 s{sT1}, s{sT1}, 544
    s_add_u32 s{sT1}, s{sT1}, 1024
    s_cmp_eq_u32 s{sCB}, 0
    s_cselect_b32 s{sT0}, s{sT0}, s{sT1}
    s_cselect_b64 vcc, -1, 0
    s_add_u32 s{sKVO}, s{sKVO}, s{sT0}
    v_cndmask_b32 v138, v139, v138, vcc
    v_lshlrev_b32 v139, 3, v{vLANE}
    v_mov_b32 v140, 0x3f803f80
    v_cmp_gt_u32 vcc, 2, v{vLANE}
    s_nop 1
    v_cndmask_b32 v140, 0, v140, vcc
    v_mov_b32 v141, v140
    """)


def pf_w1(g, late=False):
    if late:
        g(f"""s_mov_b32 s{sT0}, {240*3584}
        s_cmp_eq_u32 s{sPR}, 0
        s_cselect_b32 s{sT0}, 0, s{sT0}
        buffer_load_dword v{vDUM}, v27, {srd(S_W1)}, s{sT0} offen""")
        return 1
    g(f"""s_mov_b32 s{sT0}, {384*3584}
    buffer_load_dword v{vDUM}, v27, {srd(S_W1)}, 0 offen
    buffer_load_dword v{vDUM}, v27, {srd(S_W1)}, s{sT0} offen""")
    return 2


def wq_dma(g):
    g(f"""s_lshl_b32 s{sT0}, s{sW}, 13
    s_add_u32 m0, s{sT0}, {XB + 1024 - 1024}""")
    for i in range(8):
        g(f"""s_nop 0
        buffer_load_dwordx4 v{vDA}, {srd(S_WQ)}, s{sSO} offen lds
        buffer_load_dwordx4 v{vDB}, {srd(S_WQ)}, s{sSO} offen offset:1024 lds""")
        if i < 7:
            k = 13 if i == 3 else 1
            g(f"s_add_u32 s{sSO}, s{sSO}, {16384*k}")
            g(f"s_sub_u32 m0, m0, {XB + 3*2048}" if i == 3 else "s_add_u32 m0, m0, 2048")


def layernorm(g, O):
    F = 64
    def stats(after, nonce):
        for i in range(8):
            g(f"s_waitcnt vmcnt({after + 7 - i})")
            if i == 7:
                g.stamp(2)
                if nonce:
                    g(f"""s_cmp_ge_u32 s{sW}, 4
                    s_cbranch_scc1 L_NNL""")
                    g.load_nonce()
                    g("L_NNL:")
            for d in range(4):
                r = XR + 4 * i + d; f = F + 8 * i + 2 * d
                g(f"v_lshlrev_b32 v{f}, 16, v{r}")
                g(f"v_and_b32 v{f+1}, 0xffff0000, v{r}")
            for d in range(4):
                f = F + 8 * i + 2 * d
                a = 128 + 2 * (d % 2); q = 132 + 2 * (d % 2)
                if i == 0 and d < 2:
                    g(f"v_pk_mul_f32 {vr(q,2)}, {vr(f,2)}, {vr(f,2)}")
                    g(f"v_mov_b64 {vr(a,2)}, {vr(f,2)}")
                else:
                    g(f"v_pk_add_f32 {vr(a,2)}, {vr(a,2)}, {vr(f,2)}")
                    g(f"v_pk_fma_f32 {vr(q,2)}, {vr(f,2)}, {vr(f,2)}, {vr(q,2)}")
    if O("efill", 1):
        def early():
            g("L_G_EARLY:")
            n = 6
            if O("efill", 1) == 3:
                g(f"""s_cmp_ge_u32 s{sJ}, 2
                s_cbranch_scc1 L_GE1
                v_lshrrev_b32 v30, 2, v{vLANE}
                v_lshlrev_b32 v30, 10, v30
                v_lshl_add_u32 v30, v26, 7, v30
                s_sub_u32 s{sT0}, s{sIDX}, 8
                s_mul_i32 s{sT1}, s{sJ}, 24
                s_add_u32 s{sT0}, s{sT0}, s{sT1}
                s_lshl_b32 s{sT0}, s{sT0}, 14
                s_lshr_b32 s{sT1}, s{sCB}, 2
                s_lshl_b32 s{sT1}, s{sT1}, 9
                s_add_u32 s{sT0}, s{sT0}, s{sT1}
                buffer_load_dword v{vDUM}, v30, {srd(S_WQ)}, s{sT0} offen
                s_branch L_GE2
                L_GE1:
                s_sub_u32 s{sT0}, s{sIDX}, 8
                s_mul_i32 s{sT0}, s{sT0}, {8*3584}
                s_sub_u32 s{sT0}, {40*3584}, s{sT0}
                v_add_u32 v30, s{sT0}, v27
                buffer_load_dword v{vDUM}, v30, {srd(S_W1)}, 0 offen
                L_GE2:""")
                if O("pfirst", 1) == 0: n += 1
            for s_ in range(3): g.fill(s_, S_W1)
            if O("efill", 1) == 2:
                pf_w1(g); n += 2
            if O("efill", 1) == 3: n = 7
            stats(n, False)
            g("s_branch L_LN2")
        g.out_of_line(early)
    g("L_LN:")
    stats(0, True)
    g(f"""L_LN2:
    v_pk_add_f32 v[128:129], v[128:129], v[130:131]
    v_pk_add_f32 v[132:133], v[132:133], v[134:135]
    v_add_f32 v128, v128, v129
    v_add_f32 v132, v132, v133
    s_nop 1
    v_add_f32_dpp v128, v128, v128 quad_perm:[1,0,3,2] row_mask:0xf bank_mask:0xf
    v_add_f32_dpp v132, v132, v132 quad_perm:[1,0,3,2] row_mask:0xf bank_mask:0xf
    s_nop 1
    v_add_f32_dpp v128, v128, v128 quad_perm:[2,3,0,1] row_mask:0xf bank_mask:0xf
    v_add_f32_dpp v132, v132, v132 quad_perm:[2,3,0,1] row_mask:0xf bank_mask:0xf
    s_nop 1
    v_add_f32_dpp v128, v128, v128 row_half_mirror row_mask:0xf bank_mask:0xf
    v_add_f32_dpp v132, v132, v132 row_half_mirror row_mask:0xf bank_mask:0xf
    v_mul_f32 v128, {f2u(1.0/512):#x}, v128      ; mean
    v_mul_f32 v132, {f2u(1.0/512):#x}, v132      ; E[x^2]
    v_fma_f32 v132, -v128, v128, v132            ; var
    v_max_f32 v132, 0, v132
    v_add_f32 v132, {f2u(1e-5):#x}, v132
    v_rsq_f32 v132, v132
    s_nop 0
    v_mul_f32_e64 v128, -v128, v132              ; -mean*rstd
    """)
    for i in range(8):
        for d in range(4):
            f = F + 8 * i + 2 * d
            g(f"v_pk_fma_f32 {vr(f,2)}, {vr(f,2)}, v[132:133], v[128:129] op_sel_hi:[1,0,0]")
        for d in range(4):
            f = F + 8 * i + 2 * d
            g(f"v_cvt_pk_bf16_f32 v{XR+4*i+d}, v{f}, v{f+1}")
        g(f"ds_write_b128 v{vT3}, {vr(XR+4*i,4)} offset:{i*128}")
    g("s_waitcnt lgkmcnt(0)")
    g.arrive(C_XN)
    g.stamp(3)


ACC = 128
def g_role(g, O):
    g(f"""s_cmp_lt_u32 s{sW}, 4
    s_cbranch_scc1 L_A_PRE
    s_cmp_lg_u32 s{sPR}, 0
    s_cbranch_scc1 L_G_NP
    s_setprio 3""")
    g.wait_cnt(C_XN, 8)
    g.stamp(4)
    def kv_chain(isK):
        FB = 32; NS = 5
        def rd(ks):
            b = FB + 8 * (ks % NS)
            g(f"ds_read_b128 {vr(b,4)}, v136 offset:{ks*16}")
            g(f"ds_read_b64_tr_b16 {vr(b+4,2)}, v137 offset:{ks*256}")
            g(f"ds_read_b64_tr_b16 {vr(b+6,2)}, v137 offset:{ks*256+128}")
        for ks in range(4): rd(ks)
        for ks in range(16):
            b = FB + 8 * (ks % NS)
            g(f"s_waitcnt lgkmcnt({min(9, 3*(15-ks))})")
            c = "0" if ks == 0 else vr(ACC, 4)
            if isK: g(f"v_mfma_f32_16x16x32_bf16 {vr(ACC,4)}, {vr(b+4,4)}, {vr(b,4)}, {c}")
            else:   g(f"v_mfma_f32_16x16x32_bf16 {vr(ACC,4)}, {vr(b,4)}, {vr(b+4,4)}, {c}")
            if ks + 4 < 16: rd(ks + 4)
    g(f"""s_cmp_lg_u32 s{sCB}, 0
    s_cbranch_scc1 L_V""")
    kv_chain(True)
    g("""s_nop 1
    s_branch L_KVS
    L_V:""")
    kv_chain(False)
    g(f"""s_mov_b64 exec, 0xf
    buffer_store_dwordx2 v[140:141], v139, {srd(S_WS)}, s{sKVO} offen offset:512 sc1
    s_mov_b64 exec, -1
    L_KVS:
    s_nop 5
    v_cvt_pk_bf16_f32 v132, v128, v129
    v_cvt_pk_bf16_f32 v133, v130, v131
    buffer_store_dwordx2 v[132:133], v138, {srd(S_WS)}, s{sKVO} offen sc1""")
    g.load_nonce()
    g.arrive(C_KVDONE)
    g.stamp(11)
    g(f"""s_lshl_b32 s{sT1}, s{sRB}, 8
    s_lshl_b32 s{sT2}, s{sCB}, 5
    s_add_u32 s{sT1}, s{sT1}, s{sT2}
    s_add_u32 s{sT1}, s{sT1}, {WS_KVF}
    s_waitcnt vmcnt(0)
    s_mov_b64 exec, 1
    ds_add_rtn_u32 v{vT}, v{vC}, v{vONE} offset:{C_KVST}
    s_mov_b64 exec, -1""")
    g.get_nonce()
    g(f"""s_waitcnt lgkmcnt(0)
    v_readfirstlane_b32 s{sT0}, v{vT}
    s_nop 3
    s_cmp_lg_u32 s{sT0}, 3
    s_cbranch_scc1 L_G_NF""")
    g.publish(sT1, 13)
    g.arrive(C_PUB)
    g("L_G_NF:")
    g.stamp(10)
    g.wait_cnt(C_PUB, 1)
    if O("efill", 1):
        for s_ in range(3): g.fill(s_, S_W1)
    g(f"""L_G_NP:
    s_setprio {O('gprio', 2)}""")
    g.load_nonce()
    if not O("efill", 1):
        for s_ in range(3): g.fill(s_, S_W1)
    g.wait_cnt(C_XN, 8)
    def probe(k):
        if O("probe", 0):
            g(f"""s_memrealtime s[60:61]
            s_waitcnt lgkmcnt(0)
            v_writelane_b32 v31, s60, {k}""")
    vWX = 26
    def reset_o():
        g(f"""v_mov_b64 v[120:121], -1
        v_mov_b64 v[122:123], -1
        s_lshl_b32 s{sT0}, s{sCB}, 13
        s_lshr_b32 s60, s{sJ}, 1
        s_lshl_b32 s60, s60, 12
        s_add_u32 s{sT0}, s{sT0}, s60
        s_and_b32 s60, s{sJ}, 1
        s_lshl_b32 s60, s60, 10
        s_add_u32 s{sT0}, s{sT0}, s60
        s_add_u32 s{sT0}, s{sT0}, s{sHO}
        s_add_u32 s{sT0}, s{sT0}, {112*2048}
        buffer_store_dwordx4 v[120:123], v{vL16}, {srd(S_WS)}, s{sT0} offen sc1
        buffer_store_dwordx4 v[120:123], v{vL16}, {srd(S_WS)}, s{sT0} offen offset:2048 sc1""")
    def gemm1(n, rd, mfs, ka, kb, nrd, gapfrom, kq):
        order = [("w", 0)] * 2 + [("w", 1)] * 2 + [("w", 2)] * 2 + ([("n", 0)] if O("efill", 1) else [])
        slot = {0: 0, 1: 1, 2: 2}; free = []; st = {"next": 3, "rel": False}
        def wait_for(k):
            last = max(i for i, t in enumerate(order) if t == ("w", k))
            g(f"s_waitcnt vmcnt({len(order) - 1 - last})")
        def read(k):
            return rd(k, vWF if slot[k] < 3 else vWX, (slot[k] if slot[k] < 3 else slot[k] - 3) * 2048)
        def refill(k, maxn=9):
            if k is not None: free.append(slot[k])
            while st["next"] < n and maxn:
                c = [x for x in free if x < 3 or st["next"] < kb]
                if not c: break
                x = max(c); free.remove(x)
                slot[st["next"]] = x
                g.fill(x, S_W1); order.extend([("w", st["next"])] * 2)
                st["next"] += 1; maxn -= 1
            if k is not None and NX and not st["rel"] and k >= ka and all(v < 3 for kk, v in slot.items() if kk > k) and (st["next"] >= kb or st["next"] >= n):
                g.arrive(C_REL); st["rel"] = True
        for k in range(2):
            wait_for(k)
            for r in read(k): r()
        g(f"s_waitcnt lgkmcnt({nrd})")
        for k in range(n):
            m = mfs(k)
            gap = O("gap1", 14) if k >= gapfrom else 0
            m[0]()
            if NX and k == ka:
                g.wait_cnt(C_QH, 4)
                free.extend(range(3, 3 + NX))
            if k == kq:
                g.wait_cnt(C_H1, 4, sleep=1)
                g(f"s_mov_b32 s{sIT}, s{sSO}")
                g.kv_dma(1, sJ)
                g(f"s_mov_b32 s{sSO}, s{sIT}")
                order.extend([("q", 0)] * 8)
                if O("rstpos", 1) == 1:
                    reset_o(); order.extend([("r", 0)] * 2)
                st["q"] = st["next"]
            n0 = len(g.L)
            refill(k, 2)
            g.nop(gap - min(gap, len(g.L) - n0))
            m[1]()
            if k + 2 < n:
                wait_for(k + 2)
                if st.get("q") == k + 2: g.arrive(C_H1C)
                r = read(k + 2)
                r[0]()
            g.nop(max(0, gap - 3))
            m[2]()
            if k + 2 < n: r[1]()
            g.nop(max(0, gap - 4))
            m[3]()
            if k + 1 < n:
                g(f"s_waitcnt lgkmcnt({nrd if k + 2 < n else 0})")
                probe(k)
            if k + 2 == n:
                g.arrive(C_G1)
                g(f"""s_lshl_b32 s{sIT}, s{sJ}, 10
                s_add_u32 s{sIT}, s{sIT}, {WS_KVF + 4096}""")
                g.poll_issue(8, sIT, 8192)
        assert st["rel"] or not NX
    NX = O("nx", 0)
    def h_cvt(mt):
        for nt in range(2):
            a = ACC + 32*mt + 16*nt; o = 64 + 8 * (2*mt + nt)
            for i in range(8):
                g(f"v_cvt_pk_bf16_f32 v{o+i}, v{a+2*i}, v{a+2*i+1}")
            for i in range(8):
                g(f"v_pk_max_i16 v{o+i}, v{o+i}, 0")
    def h_store(mt, sM_):
        for nt in range(2):
            o = 64 + 8 * (2*mt + nt)
            g(f"buffer_store_dwordx4 {vr(o,4)}, v{vL16}, {srd(S_WS)}, s{sM_} offen offset:{nt*1024} sc1")
            g(f"buffer_store_dwordx4 {vr(o+4,4)}, v{vL16}, {srd(S_WS)}, s{sM_} offen offset:{2048+nt*1024} sc1")
    g(f"""
    v_and_b32 v25, 31, v{vLANE}
    v_mul_u32_u24 v{vXF}, {XP}, v25
    v_lshl_add_u32 v{vXF}, v{vHB}, 4, v{vXF}
    v_add_u32 v{vXF}, {R2}, v{vXF}
    s_lshl_b32 s{sRX}, s{sJ}, 13
    s_add_u32 s{sRX}, s{sRX}, {XB}
    s_cmp_eq_u32 s{sPR}, 0
    s_cbranch_scc1 L_G1_N
    v_lshl_add_u32 v{vWF}, v{vHB}, 10, v{vTR}
    v_add_u32 v{vWX}, s{sRX}, v{vWF}
    v_add_u32 v{vWF}, s{sRG}, v{vWF}
    """)
    FS = [32, 48, 64]
    def rd_w(ks, va, sl):
        b = FS[ks % 3]
        def r0():
            g(f"ds_read_b128 {vr(b,4)}, v{vXF} offset:{ks*32}")
            g(f"ds_read_b128 {vr(b+4,4)}, v{vXF} offset:{32*XP+ks*32}")
        def r1():
            for mt in range(2):
                for i in range(2):
                    g(f"ds_read_b64_tr_b16 {vr(b+8+4*mt+2*i,2)}, v{va} offset:{sl+mt*256+i*512}")
        return [r0, r1]
    def mf_w(ks):
        b = FS[ks % 3]
        return [(lambda mt=mt, nt=nt: g.mf(ACC + 32*mt + 16*nt, b + 8 + 4*mt, b + 4*nt, ks == 0)) for mt in range(2) for nt in range(2)]
    gemm1(32, rd_w, mf_w, O("ka", 3), O("kb", 28), 6, O("k0", 12), O("kq", 13))
    if O("probe", 0):
        g(f"""s_lshl_b32 s{sT0}, s2, 2
        s_add_u32 s{sT0}, s{sT0}, s{sJ}
        s_lshl_b32 s{sT0}, s{sT0}, 8
        s_add_u32 s{sT0}, s{sT0}, {WS_DBG + 0x80000}
        v_lshlrev_b32 v30, 2, v{vLANE}
        buffer_store_dword v31, v30, {srd(S_WS)}, s{sT0} offen""")
    g.nop(10)
    h_cvt(0); h_cvt(1)
    g(f"""s_branch L_G1_DONE
    L_G1_N:
    v_lshl_add_u32 v{vWF}, v{vHB}, 9, v{vTR}
    v_add_u32 v{vWX}, s{sRX}, v{vWF}
    v_add_u32 v{vWF}, s{sRG}, v{vWF}""")
    FN = [32, 56, 80]
    def rd_n(sl_, va, so):
        b = FN[sl_ % 3]
        def half(sub):
            ks = 2 * sl_ + sub; bb = b + 12 * sub
            g(f"ds_read_b128 {vr(bb,4)}, v{vXF} offset:{ks*32}")
            g(f"ds_read_b128 {vr(bb+4,4)}, v{vXF} offset:{32*XP+ks*32}")
            for i in range(2):
                g(f"ds_read_b64_tr_b16 {vr(bb+8+2*i,2)}, v{va} offset:{so+sub*1024+i*256}")
        return [lambda: half(0), lambda: (g("s_waitcnt lgkmcnt(10)"), half(1))]
    def mf_n(sl_):
        b = FN[sl_ % 3]
        return [(lambda sub=sub, nt=nt: g.mf(ACC + 16*nt, b + 12*sub + 8, b + 12*sub + 4*nt, sl_ == 0 and sub == 0)) for sub in range(2) for nt in range(2)]
    gemm1(16, rd_n, mf_n, O("kan", 1), O("kbn", 14), 8, O("k0n", 6), O("kqn", 8))
    g.nop(12)
    h_cvt(0)
    g("L_G1_DONE:")
    g.stamp(6)
    NK2 = 28
    g(f"""v_lshl_add_u32 v{vDA}, v{vROW}, 10, v{vCOL}
    v_add_u32 v{vDB}, {8*1024-1024}, v{vDA}
    s_mov_b32 s{sSTEP}, 16384
    v_lshl_add_u32 v{vWF}, v{vHB}, 9, v{vTR}
    v_add_u32 v{vWF}, s{sRG}, v{vWF}""")
    g.get_nonce()
    g.poll_flags(8, sIT, 8192, sleep=4, issued=True)
    g.arrive(C_G1)
    g.wait_cnt(C_QD, 4, sleep=2)
    g.wait_cnt(C_G1, 8, sleep=1)
    g.kv_dma(2, sJ); g.kv_dma(3, sJ)
    g(f"""s_lshl_b32 s{sT0}, s{sMT}, 12
    s_add_u32 s{sT1}, s{sT0}, s{sHO}
    s_add_u32 s{sT2}, s{sT1}, 4096
    s_waitcnt vmcnt(0)""")
    g.arrive(C_H2)
    g.stamp(5)
    if O("rstpos", 1) == 0: reset_o()
    h_store(0, sT1)
    g(f"""s_cmp_eq_u32 s{sPR}, 0
    s_cbranch_scc1 L_HS1""")
    h_store(1, sT2)
    g(f"""L_HS1:
    v_lshrrev_b32 v100, 2, v{vLANE}
    v_and_b32 v{vT}, 3, v{vLANE}
    v_lshlrev_b32 v{vT}, 7, v{vT}
    v_and_b32 v101, 3, v100
    v_lshl_add_u32 v100, v100, 10, v{vT}
    v_lshl_add_u32 v101, v101, 10, v{vT}
    s_lshr_b32 s60, s{sCB}, 2
    s_lshl_b32 s60, s60, 9
    s_mul_i32 s{sT0}, s{sIDX}, {56*1024}
    s_lshl_b32 s{sT2}, s{sJ}, 14
    s_add_u32 s{sT0}, s{sT0}, s{sT2}
    s_add_u32 s{sT0}, s{sT0}, s60
    v_add_u32 v100, s{sT0}, v100
    s_lshl_b32 s{sT0}, s{sIDX}, 14
    s_lshl_b32 s{sT2}, s{sJ}, 12
    s_add_u32 s{sT0}, s{sT0}, s{sT2}
    s_add_u32 s{sT0}, s{sT0}, s60
    v_add_u32 v101, s{sT0}, v101
    s_lshl_b32 s{sT1}, s{sCB}, 9
    s_lshl_b32 s{sT2}, s{sJ}, 7
    s_add_u32 s{sT1}, s{sT1}, s{sT2}
    s_add_u32 s{sT1}, s{sT1}, s{sFL}""")
    g("s_waitcnt vmcnt(0)")
    g.publish(sT1, 12)
    g.arrive(C_RST)
    if O("pf2", 1):
        g(f"""buffer_load_dword v{vDUM}, v100, {srd(S_W2)}, 0 offen
        buffer_load_dword v{vDUM}, v101, {srd(S_WO)}, 0 offen""")
    ND = O("nd", 7)
    NT = NK2 + 8
    def fill2(t):
        if t == 0:
            g(f"""s_lshl_b32 s{sSO}, s{sJ}, 17
            s_lshl_b32 s{sT0}, s{sCB}, 7
            s_add_u32 s{sSO}, s{sSO}, s{sT0}""")
        if t == 8:
            g(f"""s_mul_i32 s{sSO}, s{sJ}, {NK2*16384}
            s_lshl_b32 s{sT0}, s{sCB}, 7
            s_add_u32 s{sSO}, s{sSO}, s{sT0}""")
        g.fill(t % 3, S_WO if t < 8 else S_W2)
    NH = O("nh", 7)
    HB = [120 - 8*i for i in range(NH)]
    WB = [32, 40]
    WO = 192
    sHS = sIT
    def ldh(ks):
        b = HB[ks % NH]
        g(f"buffer_load_dwordx4 {vr(b,4)}, v{vL16}, {srd(S_WS)}, s{sHS} offen sc1")
        g(f"buffer_load_dwordx4 {vr(b+4,4)}, v{vL16}, {srd(S_WS)}, s{sHS} offen offset:1024 sc1")
        g(f"s_add_u32 s{sHS}, s{sHS}, 2048")
    def rd2(t):
        b = WO + 8 * t if t < 8 else WB[t % 2]; sl = (t % 3) * 2048
        for mt in range(2):
            for i in range(2):
                g(f"ds_read_b64_tr_b16 {vr(b+4*mt+2*i,2)}, v{vWF} offset:{sl+mt*256+i*1024}")
    order = []
    def issued(tag, n): order.extend([tag] * n)
    def wait_for(tag):
        last = max(i for i, t in enumerate(order) if t == tag)
        g(f"s_waitcnt vmcnt({len(order) - 1 - last})")
    for t in range(3):
        fill2(t); issued(("w", t), 2)
    g.stamp(7)
    if O("gidle", 0): g("s_branch L_G_SKIP")
    wait_for(("w", 0))
    rd2(0)
    g("s_waitcnt lgkmcnt(0)")
    fill2(3); issued(("w", 3), 2)
    for t in range(NT):
        ks = t - 8
        if t == 7:
            g(f"""s_and_b32 s{sT0}, s{sJ}, 2
            s_add_u32 s{sT0}, s{sT0}, s{sJ}
            s_lshl_b32 s{sT0}, s{sT0}, 9
            s_add_u32 s{sT1}, s{sFL}, s{sT0}""")
            g.poll_flags(12, sT1, 4096, sleep=8)
            g.stamp(8)
            g(f"""s_setprio {O('gprio2', 0)}
            s_mul_i32 s{sHS}, s{sJ}, {NK2*2048}
            s_add_u32 s{sHS}, s{sHS}, s{sHO}""")
            for k in range(NH - 1):
                ldh(k); issued(("h", k), 2)
        if ND and ks == NK2 - ND:
            g(f"buffer_load_dwordx4 {vr(vXR,4)}, v{vXO}, {srd(S_X)}, 0 offen"); issued(("x", 0), 1)
            g.stamp(9)
            g(f"""s_lshl_b32 s{sT1}, s{sJ}, 2
            v_add_u32 v25, s{sT1}, v{vC}""")
            g.wait_cnt(C_AD0, 1, sleep=2, v=25)
            g("s_setprio 3")
        if t + 1 < NT:
            wait_for(("w", t + 1))
            rd2(t + 1)
        if ks >= 0:
            if ks + NH - 1 < NK2:
                ldh(ks + NH - 1); issued(("h", ks + NH - 1), 2)
            wait_for(("h", ks))
            b = WB[t % 2]; hb_ = HB[ks % NH]
        def refill2():
            if t + 1 < NT:
                g("s_waitcnt lgkmcnt(0)")
                if t + 4 < NT:
                    fill2(t + 4); issued(("w", t + 4), 2)
        if ks >= 0:
            for mt in range(2):
                for nt in range(2):
                    g.mf(ACC + 32*mt + 16*nt, b + 4*mt, hb_ + 4*nt, ks == 0)
                    if 2*mt + nt == O("rp2", 3): refill2()
                    if (mt, nt) != (1, 1) and ks < NK2 - ND: g.nop(O("gap2", 0))
        else:
            refill2()
    if not ND:
        g(f"buffer_load_dwordx4 {vr(vXR,4)}, v{vXO}, {srd(S_X)}, 0 offen")
        g.stamp(9)
    g(f"""L_G_SKIP:
    s_lshl_b32 s{sT2}, s{sJ}, 14
    s_add_u32 s{sT2}, s{sT2}, s{sHO}
    s_add_u32 s{sT1}, s{sT2}, {112*2048}
    s_add_u32 s{sT2}, s{sT1}, 4096
    s_add_u32 s60, s{sT1}, 8192
    s_add_u32 s61, s{sT1}, 12288
    v_and_b32 v25, 31, v{vLANE}
    v_mul_u32_u24 v25, {PP}, v25
    v_lshl_add_u32 v25, v{vHB}, 4, v25
    s_mul_i32 s{sT0}, s{sJ}, {PIMG}
    v_add_u32 v25, s{sT0}, v25""")
    g.wait_cnt(C_ADONE, 4, sleep=2)
    g("s_setprio 3")
    if O("odelay", 0): g(f"s_sleep {O('odelay', 0)}")
    g.stamp(12)
    OF = 32
    NST = O("nst", 4); KP = 8 // NST
    def o_issue(st):
        for i in range(KP * st, KP * st + KP):
            so = [sT1, sT2, 60, 61][i // 2]
            for nt in range(2):
                g(f"buffer_load_dwordx4 {vr(OF+8*i+4*nt,4)}, v{vL16}, {srd(S_WS)}, s{so} offen offset:{(i%2)*2048+nt*1024} sc1")
    def o_check(st):
        r = list(range(OF + 8 * KP * st, OF + 8 * KP * (st + 1)))
        acc = [vT, vT1]
        g(f"v_max3_u32 v{vT}, v{r[0]}, v{r[1]}, v{r[2]}")
        g(f"v_max3_u32 v{vT1}, v{r[3]}, v{r[4]}, v{r[5]}")
        for n_, k in enumerate(range(6, len(r), 2)):
            g(f"v_max3_u32 v{acc[n_%2]}, v{acc[n_%2]}, v{r[k]}, v{r[k+1]}")
        g(f"""v_max_u32 v{vT}, v{vT}, v{vT1}
        v_cmp_eq_u32 vcc, -1, v{vT}
        s_cmp_lg_u64 vcc, 0""")
    g(f"s_mov_b32 s{sSPIN}, {SPIN}")
    for st in range(NST): o_issue(st)
    for st in range(NST):
        g(f"""L_OW{st}:
        s_waitcnt vmcnt({2 * KP * (NST - 1 - st)})""")
        o_check(st)
        g(f"""s_cbranch_scc1 L_OR{st}
        L_OM{st}:""")
        for i in range(KP * st, KP * st + KP):
            for mt in range(2):
                for nt in range(2):
                    g.mf(ACC + 32*mt + 16*nt, WO + 8*i + 4*mt, OF + 8*i + 4*nt)
        def retry(st=st):
            g(f"""L_OR{st}:
            s_sub_u32 s{sSPIN}, s{sSPIN}, 1
            s_cselect_b32 s{sSPIN}, 0, s{sSPIN}
            s_cbranch_scc1 L_OM{st}
            s_waitcnt vmcnt(0)""")
            for t_ in range(st, NST): o_issue(t_)
            g(f"s_branch L_OW{st}")
        g.out_of_line(retry)
    g.stamp(13)
    g.nop(9)
    for mt in range(2):
        for nt in range(2):
            for q in range(4):
                g(f"ds_write_b128 v25, {vr(ACC+32*mt+16*nt+4*q,4)} offset:{nt*32*PP + mt*128 + q*32}")
    g("s_waitcnt lgkmcnt(0)")


def final(g, O, debug):
    g(f"""L_FINAL:
    v_lshrrev_b32 v{vT}, 3, v0
    v_and_b32 v{vT1}, 7, v0
    v_mul_u32_u24 v{vT}, {PP}, v{vT}
    v_lshl_add_u32 v{vT}, v{vT1}, 5, v{vT}
    s_waitcnt vmcnt(0)""")
    for d in range(4):
        g(f"v_lshlrev_b32 v{64+2*d}, 16, v{vXR+d}")
        g(f"v_and_b32 v{65+2*d}, 0xffff0000, v{vXR+d}")
    g("s_barrier")
    for j in range(4):
        g(f"ds_read_b128 {vr(32+8*j,4)}, v{vT} offset:{j*PIMG}")
        g(f"ds_read_b128 {vr(36+8*j,4)}, v{vT} offset:{j*PIMG+16}")
    for j in range(4):
        g(f"s_waitcnt lgkmcnt({6-2*j})")
        for d in range(4):
            g(f"v_pk_add_f32 {vr(64+2*d,2)}, {vr(64+2*d,2)}, {vr(32+8*j+2*d,2)}")
    for d in range(4):
        g(f"v_cvt_pk_bf16_f32 v{72+d}, v{64+2*d}, v{65+2*d}")
    g(f"buffer_store_dwordx4 v[72:75], v{vXO}, {srd(S_OUT)}, 0 offen{['', ' sc1', ' nt', ' sc0 sc1'][O('outsc', 1)]}")
    if debug:
        g.stamp(14)
        g("s_waitcnt vmcnt(0)")
        g.stamp(15)
        g(f"""s_waitcnt lgkmcnt(0)
        s_lshl_b32 s{sT0}, s2, 3
        s_add_u32 s{sT0}, s{sT0}, s{sW}
        s_lshl_b32 s{sT0}, s{sT0}, 7
        s_add_u32 s{sT0}, s{sT0}, {WS_DBG}
        v_mov_b32 v{vT}, 0""")
        for i in range(16):
            g(f"v_writelane_b32 v{vT}, s{sSTAMP+2*i}, {i}")
        g(f"v_writelane_b32 v{vT}, s{sRETRY}, 16")
        g(f"v_writelane_b32 v{vT}, s{sRB}, 17")
        g(f"v_writelane_b32 v{vT}, s{sCB}, 18")
        g(f"""v_lshlrev_b32 v{vT1}, 2, v{vLANE}
        s_mov_b32 exec_hi, 0
        buffer_store_dword v{vT}, v{vT1}, {srd(S_WS)}, s{sT0} offen""")
        if O("dbgmax", 0):
            g(f"""s_load_dwordx2 s[{S_DBG}:{S_DBG+1}], s[0:1], 72
            s_mov_b32 s{S_DBG+2}, 256
            s_mov_b32 s{S_DBG+3}, 0x20000
            v_subrev_u32 v{vT}, s{sN}, v{vT}
            s_waitcnt lgkmcnt(0)
            s_cmp_lg_u32 s{sW}, {O("dbgmax", 0) - 1}
            s_cbranch_scc1 L_END
            s_mov_b64 exec, 0xfffe
            buffer_atomic_smax v{vT}, v{vT1}, {srd(S_DBG)}, 0 offen""")
    if O("amp", 0):
        st = O("amp", 0) % 100; role = O("amp", 0) // 100
        g(f"""s_sub_u32 s62, s{sSTAMP+2*st}, s{sN}
        s_lshl_b32 s62, s62, 2
        s_cmp_{'lt' if role == 1 else 'ge'}_u32 s{sW}, 4
        s_cselect_b32 s62, s62, 0
        s_max_i32 s62, s62, 0
        s_add_u32 s62, s62, 4000
        L_PAD:
        s_memrealtime s[60:61]
        s_waitcnt lgkmcnt(0)
        s_sub_u32 s60, s60, s{sN}
        s_cmp_lt_u32 s60, s62
        s_cbranch_scc1 L_PAD""")
    g("""L_END:
    s_endpgm""")


def a_role(g, O, debug):
    FOFF = float(O('foff', 80))
    g(f"""L_A_PRE:
    s_cmp_eq_u32 s{sPR}, 0
    s_cbranch_scc1 L_WQP
    s_setprio 2
    L_WQP:""")
    g.stamp(4)
    wq_dma(g)
    NPF = 0
    if O("efill", 1) != 2:
        NPF = pf_w1(g, O("efill", 1) == 3)
    QACC = 144
    g(f"""
    v_and_b32 v25, 31, v{vLANE}
    s_and_b32 s{sT0}, s{sW}, 1
    s_mul_i32 s{sT0}, s{sT0}, {32*XP}
    s_add_u32 s{sT0}, s{sT0}, {R2}
    v_mul_u32_u24 v{vXF}, {XP}, v25
    v_lshl_add_u32 v{vXF}, v{vHB}, 4, v{vXF}
    v_add_u32 v{vXF}, s{sT0}, v{vXF}
    s_lshr_b32 s{sT0}, s{sW}, 1
    s_lshl_b32 s{sT0}, s{sT0}, 8
    v_lshl_add_u32 v{vWF}, v{vHB}, 10, v{vTR}
    v_add_u32 v{vWF}, s{sT0}, v{vWF}
    """)
    xq = lambda ks: (32 + 4 * ks) if ks < 28 else (160 + 4 * (ks - 28))
    g.wait_cnt(C_XN, 8, sleep=1)
    g(f"""s_cmp_lg_u32 s{sPR}, 0
    s_cbranch_scc1 L_XQ""")
    g.wait_cnt(C_KVDONE, 4, sleep=1)
    g("L_XQ:")
    for ks in range(32):
        g(f"ds_read_b128 {vr(xq(ks),4)}, v{vXF} offset:{ks*32}")
        if ks % 8 == 7 and ks < 31: g("s_waitcnt lgkmcnt(4)")
    g(f"""s_waitcnt vmcnt({8 + NPF})
    s_setprio 2""")
    g.arrive(C_WQ)
    g.wait_cnt(C_WQ, 4)
    g.stamp(10)
    FB = 176; NS = 8
    def rdq(ks):
        b = FB + 4 * (ks % NS)
        o = XB + ks * 2048 if ks < 16 else (ks - 16) * 2048
        g(f"ds_read_b64_tr_b16 {vr(b,2)}, v{vWF} offset:{o}")
        g(f"ds_read_b64_tr_b16 {vr(b+2,2)}, v{vWF} offset:{o+512}")
    for ks in range(7): rdq(ks)
    for ks in range(32):
        b = FB + 4 * (ks % NS)
        g(f"s_waitcnt lgkmcnt({min(12, 2*(31-ks))})")
        g.mf(QACC, b, xq(ks), ks == 0)
        if ks + 7 == 16:
            g(f"s_waitcnt vmcnt({NPF})")
            g.arrive(C_WQ2)
            g.wait_cnt(C_WQ2, 4)
        if ks == 15: g.arrive(C_QH)
        if ks + 7 < 32: rdq(ks + 7)
    g.arrive(C_QD)
    g.stamp(5)
    QA, QB = 24, 28
    g.get_nonce()
    g(f"s_mov_b32 s{sIT}, {WS_KVF}")
    g.poll_issue(16, sIT, 8192)
    g(f"s_mov_b32 s{sT0}, {f2u(QSCALE):#x}")
    for i in range(16):
        g(f"v_mul_f32 v{QACC+i}, s{sT0}, v{QACC+i}")
    for i in range(8):
        g(f"v_cvt_pk_bf16_f32 v{QA+i}, v{QACC+2*i}, v{QACC+2*i+1}")
    SA = [32, 48]; SB = [64, 80]; CA, CB_ = 96, 112; OA, OB = 128, 144
    KF = [160, 164]; VF = [168, 176]; vIDX, vKA, vVA = 184, 185, 186
    vAD, vCK, vCV = 187, 188, 189
    def zero_state():
        for i in range(0, 16, 2):
            g(f"v_mov_b64 {vr(OA+i,2)}, 0"); g(f"v_mov_b64 {vr(OB+i,2)}, 0"); g(f"v_mov_b64 {vr(SB[1]+i,2)}, 0")
        for i in range(0, 8, 2):
            g(f"v_mov_b64 {vr(VF[1]+i,2)}, 0")
    g(f"""
    v_mov_b32 v{vIDX}, 0xdddddddd
    v_mov_b32 v{vKA}, v{vL16}
    v_and_b32 v{vT}, 31, v{vLANE}
    v_lshrrev_b32 v{vT1}, 5, v{vLANE}
    v_lshlrev_b32 v{vT1}, 8, v{vT1}
    v_lshl_add_u32 v{vT1}, v{vT}, 4, v{vT1}
    v_mov_b32 v{vT2}, 528
    v_mov_b32 v{vT3}, 512
    v_and_b32 v{vVA}, 0x1b, v{vT}
    v_cmp_eq_u32 vcc, 16, v{vVA}
    s_nop 1
    v_cndmask_b32 v{vT2}, v{vT2}, v{vT3}, vcc
    v_cmp_gt_u32 vcc, 16, v{vT}
    s_nop 1
    v_cndmask_b32 v{vVA}, v{vT2}, v{vT1}, vcc
    v_add_u32 v{vVA}, 1024, v{vVA}
    s_mov_b32 s{sRETRY}, 0
    s_lshl_b32 s{sT0}, s{sCB}, 13
    s_lshr_b32 s{sT1}, s{sW}, 1
    s_lshl_b32 s{sT1}, s{sT1}, 12
    s_add_u32 s{sT0}, s{sT0}, s{sT1}
    s_and_b32 s{sT1}, s{sW}, 1
    s_lshl_b32 s{sT1}, s{sT1}, 10
    s_add_u32 s{sT0}, s{sT0}, s{sT1}
    s_add_u32 s{sT0}, s{sT0}, s{sHO}
    s_add_u32 s{sOO}, s{sT0}, {112*2048}
    s_lshl_b32 s{sT0}, s{sW}, 2
    v_add_u32 v{vAD}, s{sT0}, v{vC}
    v_mov_b32 v{vCK}, v{vC}
    s_mov_b32 s{sSTEP}, 4
    """)
    zero_state()
    g.wait_cnt(C_QD, 4)
    g("s_setprio 0")
    g.poll_flags(16, sIT, 8192, sleep=O("kvsleep", 1), issued=True)
    g("s_setprio 3")
    g.stamp(6)
    g(f"buffer_load_dwordx4 {vr(KF[0],4)}, v{vL16}, {srd(S_WS)}, 0 offen sc1")
    g.kv_dma(0, sW, 1)
    g(f"s_mov_b32 s{sT1}, {WS_KVF + 2048}")
    g.poll_issue(16, sT1, 8192)
    AB = O("abl", 0)
    def qk(S, K, Q, C): g(f"v_mfma_f32_32x32x16_bf16 {vr(S,16)}, {vr(K,4)}, {vr(Q,4)}, {C}")
    def pv(O_, V, P):
        if AB == 1: return
        if AB == 5: g(f"v_mfma_f32_32x32x16_bf16 {vr(O_,16)}, {vr(V,4)}, {vr(P,4)}, {vr(O_,16)}"); return
        g(f"v_smfmac_f32_32x32x32_bf16 {vr(O_,16)}, {vr(V,4)}, {vr(P,8)}, v{vIDX}")
    def max16(S, d):
        g(f"v_max3_f32 v{d}, v{S}, v{S+1}, v{S+2}")
        for i in range(3, 15, 2):
            g(f"v_max3_f32 v{d}, v{d}, v{S+i}, v{S+i+1}")
        g(f"v_max_f32 v{d}, v{d}, v{S+15}")
    def xhalf_max(d, t):
        g(f"""v_mov_b32 v{t}, v{d}
        s_nop 1
        v_permlane32_swap_b32 v{d}, v{t}
        s_nop 1
        v_max_f32 v{d}, v{d}, v{t}""")
    g.stamp(1)
    g("s_waitcnt vmcnt(4)")
    g.stamp(2)
    qk(SA[0], KF[0], QA, "0"); qk(SB[0], KF[0], QB, "0")
    g.nop(11)
    max16(SA[0], vT); max16(SB[0], vT1)
    xhalf_max(vT, vT2); xhalf_max(vT1, vT2)
    g(f"""v_add_f32 v{vT}, {f2u(FOFF):#x}, v{vT}
    v_add_f32 v{vT1}, {f2u(FOFF):#x}, v{vT1}
    L_ATT_START:
    v_sub_f32 v{CA}, 0, v{vT}
    v_sub_f32 v{CA+1}, 0, v{vT}
    v_sub_f32 v{CB_}, 0, v{vT1}
    v_sub_f32 v{CB_+1}, 0, v{vT1}""")
    for i in range(2, 16, 2):
        g(f"v_mov_b64 {vr(CA+i,2)}, {vr(CA,2)}")
    g(f"""s_mov_b32 s{sIT}, s{sRETRY}
    s_cmp_lg_u32 s{sRETRY}, 0""")
    qk(SA[0], KF[0], QA, vr(CA, 16))
    for i in range(2, 16, 2):
        g(f"v_mov_b64 {vr(CB_+i,2)}, {vr(CB_,2)}")
    g.nop(4)
    g("s_cbranch_scc1 L_ATT_GO")
    g.stamp(3)
    g("s_waitcnt vmcnt(0)")
    g.stamp(11)
    g.poll_flags(16, sT1, 8192, sleep=1, issued=True)
    g.arrive(C_H1)
    g.kv_dma(0, sW, 2)
    g.wait_cnt(C_H1, 4)
    g(f"""L_ATT_GO:
    s_setprio {O('aprio', 1)}""")
    g.stamp(7); g.stamp(12, True)
    g("""s_nop 1
    .p2align 6
    L_ATT:""")
    UN = 16
    def exps(S, lo, hi, first64=False):
        for i in range(lo, hi):
            if AB == 2: g(f"v_mul_f32{'_e64' if (first64 and i == lo) else ''} v{S+i}, 0, v{S+i}"); g(f"v_mul_f32 v{vT}, 0, v{vT}"); g("s_nop 0") if False else None; continue
            if AB == 3: g(f"v_exp_f32{'_e64' if (first64 and i == lo) else ''} v{192+i}, v{S+i}"); continue
            g(f"v_exp_f32{'_e64' if (first64 and i == lo) else ''} v{S+i}, v{S+i}")
    def side(it, fn):
        l = g.lab("SB"); r = g.lab("SR")
        g(f"""s_cmp_eq_u32 s{sIT}, {it}
        s_cbranch_scc1 {l}
        {r}:""")
        def blk():
            g(f"{l}:"); fn(); g(f"s_branch {r}")
        g.out_of_line(blk)
    def spin(v, off, target):
        l = g.lab("SB"); r = g.lab("SR")
        g(f"""s_cmp_lt_u32 s{sT2}, {target}
        s_cbranch_scc1 {l}
        {r}:""")
        def blk():
            g(f"{l}:"); g.wait_cnt(off, target, v=v); g(f"s_branch {r}")
        g.out_of_line(blk)
    CHK = {6: (vC, C_H1B, 4 if O('lane1', 1) else 256), UN - 2: (vCK, 0, 4)}
    for t in range(UN):
        p = t % 2
        qk(SB[p], KF[p], QB, vr(CB_, 16))
        if AB != 4:
            g(f"ds_read_b128 {vr(KF[1-p],4)}, v{vKA} offset:{(t+1)*REC}")
            g(f"ds_read_b128 {vr(VF[p],4)}, v{vVA} offset:{t*REC}")
            g(f"ds_read_b128 {vr(VF[p]+4,4)}, v{vVA} offset:{t*REC+544}")
        if t in CHK: g(f"ds_read_b32 v{vCV}, v{CHK[t][0]} offset:{CHK[t][1]}")
        exps(SA[p], 0, 4)
        pv(OB, VF[1-p], SB[1-p])
        exps(SA[p], 4, 10)
        pv(OB, VF[1-p] + 4, SB[1-p] + 8)
        g("s_waitcnt lgkmcnt(0)")
        exps(SA[p], 10, 16, True)
        qk(SA[1-p], KF[1-p], QA, vr(CA, 16))
        if t in CHK:
            g(f"v_readfirstlane_b32 s{sT2}, v{vCV}")
            exps(SB[p], 0, 4, True)
        else:
            exps(SB[p], 0, 4)
        pv(OA, VF[p], SA[p])
        if t == 3:
            if O("lane1", 1):
                g(f"""s_waitcnt vmcnt(0)
                s_mov_b64 exec, 1
                ds_add_u32 v{vC}, v{vONE} offset:{C_H1B}
                s_mov_b64 exec, -1
                s_nop 0""")
            else:
                g(f"""s_waitcnt vmcnt(0)
                s_nop 0
                ds_add_u32 v{vC}, v{vONE} offset:{C_H1B}""")
        if t == UN - 1:
            g(f"v_add_u32_e64 v{vCK}, s{sSTEP}, v{vCK}")
        if t == UN - 1:
            g(f"""v_add_u32 v{vKA}, {UN*REC}, v{vKA}
            v_add_u32 v{vVA}, {UN*REC}, v{vVA}""")
        exps(SB[p], 4, 10)
        pv(OA, VF[p] + 4, SA[p] + 8)
        if debug and O("itstamp", 0):
            if t == 4: side(0, lambda: g.stamp(3, True))
            if t == 8: side(0, lambda: g.stamp(4, True))
            if t == 0: side(1, lambda: g.stamp(1, True)); side(2, lambda: g.stamp(2, True)); side(3, lambda: g.stamp(11, True))
        if debug and O("clkprobe", 0) and t % 4 == 0:
            g(f"""s_memtime s[60:61]
            s_memrealtime s[62:63]
            s_lshl_b32 s{sT0}, s{sIT}, 2
            s_add_u32 s{sT0}, s{sT0}, {t // 4}
            s_mov_b32 m0, s{sT0}
            s_waitcnt lgkmcnt(0)
            v_writelane_b32 v192, s60, m0
            v_writelane_b32 v193, s62, m0""")
        if t in CHK: spin(*CHK[t])
        if t == UN - 1:
            g(f"""s_add_u32 s{sIT}, s{sIT}, 1
            s_bitcmp0_b32 s{sIT}, 2""")
        exps(SB[p], 10, 16)
    g("s_cbranch_scc1 L_ATT")
    pv(OB, VF[1], SB[1]); pv(OB, VF[1] + 4, SB[1] + 8)
    g.stamp(8); g.stamp(13, True)
    g("s_setprio 3")
    g.arrive(C_AD0, v=vAD)
    def finish(O_, d, off, ok):
        g(f"v_fma_f32 v{vT}, v{O_}, 0, v{O_+8}")
        for i in range(1, 8):
            g(f"v_fma_f32 v{vT}, v{O_+i}, 0, v{vT}")
        g(f"""v_rcp_f32 v{vT3}, v{O_+8}
        v_cmp_nlt_f32 vcc, v{vT}, v{vT2}""")
        for i in range(8):
            g(f"v_mul_f32 v{O_+i}, v{O_+i}, v{vT3}")
        g(f"""s_cmp_lg_u64 vcc, 0
        {'s_nop 0' if AB else 's_cbranch_scc1 L_FB_' + ok}
        L_OK_{ok}:""")
        for i in range(4):
            g(f"v_cvt_pk_bf16_f32 v{d+i}, v{O_+2*i}, v{O_+2*i+1}")
        for i in range(4):
            g(f"v_min_u32 v{d+i}, -2, v{d+i}")
        g(f"buffer_store_dwordx4 {vr(d,4)}, v{vL16}, {srd(S_WS)}, s{sOO} offen offset:{off} sc1")
    g(f"v_mov_b32 v{vT2}, {f2u(2.0**110):#x}")
    finish(OA, 32, 0, "A")
    finish(OB, 36, 2048, "B")
    def fallback():
        g(f"""L_FB_A:
        s_cmp_lg_u32 s{sRETRY}, 0
        s_cbranch_scc1 L_OK_A
        s_branch L_FALLBACK
        L_FB_B:
        s_cmp_lg_u32 s{sRETRY}, 0
        s_cbranch_scc1 L_OK_B
        s_waitcnt vmcnt(0)
        L_FALLBACK:
        s_mov_b32 s{sRETRY}, 16
        v_mov_b32 v{vCK}, v{vC}
        s_mov_b32 s{sSTEP}, 0
        v_subrev_u32 v{vKA}, {64*REC}, v{vKA}
        v_subrev_u32 v{vVA}, {64*REC}, v{vVA}
        v_mov_b32 v{vT3}, v{vKA}
        v_mov_b32 v{vT}, 0xff800000
        v_mov_b32 v{vT1}, 0xff800000
        s_mov_b32 s{sIT}, 0
        L_MAXP:
        ds_read_b128 {vr(KF[0],4)}, v{vT3}
        v_add_u32 v{vT3}, {REC}, v{vT3}
        s_waitcnt lgkmcnt(0)""")
        qk(SA[0], KF[0], QA, "0"); qk(SB[0], KF[0], QB, "0")
        g.nop(12)
        for i in range(0, 16, 2):
            g(f"v_max3_f32 v{vT}, v{vT}, v{SA[0]+i}, v{SA[0]+i+1}")
        for i in range(0, 16, 2):
            g(f"v_max3_f32 v{vT1}, v{vT1}, v{SB[0]+i}, v{SB[0]+i+1}")
        g(f"""s_add_u32 s{sIT}, s{sIT}, 1
        s_cmp_lt_u32 s{sIT}, 64
        s_cbranch_scc1 L_MAXP
        ds_read_b128 {vr(KF[0],4)}, v{vKA}""")
        xhalf_max(vT, vT2); xhalf_max(vT1, vT2)
        zero_state()
        g(f"""s_waitcnt lgkmcnt(0)
        s_branch L_ATT_START""")
    g.out_of_line(fallback)
    g.arrive(C_ADONE)
    if debug and O("clkprobe", 0):
        g(f"""s_lshl_b32 s{sT0}, s2, 2
        s_add_u32 s{sT0}, s{sT0}, s{sW}
        s_lshl_b32 s{sT0}, s{sT0}, 9
        s_add_u32 s{sT0}, s{sT0}, {WS_DBG + 0x100000}
        v_lshlrev_b32 v30, 3, v{vLANE}
        buffer_store_dwordx2 v[192:193], v30, {srd(S_WS)}, s{sT0} offen""")
    g(f"buffer_load_dwordx4 {vr(vXR,4)}, v{vXO}, {srd(S_X)}, 0 offen")
    g.stamp(9)
    g("s_branch L_FINAL")


def gen(debug=False, opt=None):
    opt = opt or {}
    O = lambda k, d: opt.get(k, d)
    g = G(debug)
    g.ff = ['', 'sc1', 'nt', 'sc0 sc1'][O('ff', 0)]
    prologue(g, O)
    layernorm(g, O)
    g_role(g, O)
    final(g, O, debug)
    a_role(g, O, debug)
    g.L += g.tail
    g("L_CODE_END:")
    ref = open(f"cdna_kernels/{NAME}.s.ref").read().split("\n")
    hdr = [l for l in ref if l.startswith(";") and "@launch" not in l]
    out = hdr + [f"; @launch grid=(256,1,1) block=(512,1,1) lds={LDS_BYTES}",
                 '.amdgcn_target "amdgcn-amd-amdhsa--gfx950"', ".text", f".globl {NAME}_kernel", ".p2align 8",
                 f".type {NAME}_kernel,@function", f"{NAME}_kernel:"] + g.L + [
        '.section .rodata,"a"', ".p2align 6", f".amdhsa_kernel {NAME}_kernel",
        "  .amdhsa_next_free_vgpr 256", "  .amdhsa_next_free_sgpr 102", "  .amdhsa_accum_offset 256",
        "  .amdhsa_group_segment_fixed_size 0", "  .amdhsa_kernarg_size 88", "  .amdhsa_user_sgpr_count 2",
        "  .amdhsa_user_sgpr_kernarg_segment_ptr 1", "  .amdhsa_system_sgpr_workgroup_id_x 1", ".end_amdhsa_kernel", ""]
    return "\n".join(out)


if __name__ == "__main__":
    ap = argparse.ArgumentParser()
    ap.add_argument("-o", default=f"cdna_kernels/{NAME}.s")
    ap.add_argument("--debug", action="store_true")
    ap.add_argument("opts", nargs="*")
    a = ap.parse_args()
    opt = {k: int(v) for k, v in (o.split("=") for o in a.opts)}
    open(a.o, "w").write(gen(a.debug, opt))
```

```python
import sys, argparse, struct

NAME = "parallel_sum__grouped_kv_mqa__dense_activation_relu__prompt"

REC = 2112
HALF = 32 * REC
R1, R2, R3 = 0, HALF, 2 * HALF
RING = 6144
CNT = R3 + 4 * RING
(C_H1C, C_H2, C_RST, C_H1B, C_KVDONE, C_KVST, C_QD, C_H1, C_G1, C_WQ, C_ADONE, C_PUB, C_XN, C_WQ2,
 C_PRG, C_AD0) = range(0, 64, 4)
LDS_BYTES = 163840
XP = 1040
PP = 272
PIMG = 64 * PP
WS_KV = 0
WS_KVF = 0x40000
WS_HO = 0x80000
HO_RB = 144 * 2048
WS_DBG = 0xA00000
WS_HF = 0xC00000
WS_BYTES = 0x1000000
QSCALE = 0.25 * 1.4426950408889634
SPIN = 1 << 15
NREP = 16

def f2u(x): return struct.unpack("<I", struct.pack("<f", x))[0]

S_X, S_OUT, S_WS, S_WO, S_W2, S_WQ, S_WKV, S_W1, S_DBG = 4, 8, 12, 16, 20, 24, 28, 32, 36
POLL = 24
sKVO = 3
sW, sRB, sCB = 40, 41, 42
sT0, sT1, sT2, sRG = 43, 44, 45, 46
sSPIN, sSO, sSTEP, sIT, sHO, sFL, sRETRY = 47, 48, 49, 50, 51, 52, 53
sM = 54
sJ, sMT = 56, 57
sOO = 59
sSTAMP = 64
sIDX, sPR = 96, 97
sTM = 98
sN = 100

vLANE, vC, vONE, vT, vT1, vT2, vT3 = 1, 2, 3, 4, 5, 6, 7
vL16 = 8
vDA, vDB = 9, 10
vXF, vWF = 11, 12
vXO = 13
vN, vZ = 14, 15
vXR = 16
vROW, vCOL, vC16, vTR, vHB = 20, 21, 22, 23, 24
vDUM = 210

def srd(b): return f"s[{b}:{b+3}]"
def vr(b, n=1): return f"v{b}" if n == 1 else f"v[{b}:{b+n-1}]"


class G:
    def __init__(self, debug):
        self.L = []
        self.tail = []
        self.debug = debug
        self.nlab = 0

    def __call__(self, s):
        for line in s.split("\n"):
            line = line.strip()
            if line:
                self.L.append(line if line.endswith(":") else "    " + line)

    def lab(self, p="L"):
        self.nlab += 1
        return f"{p}_{self.nlab}"

    def stamp(self, i, cyc=False):
        if self.debug:
            self(f"{'s_memtime' if cyc else 's_memrealtime'} s[{sSTAMP+2*i}:{sSTAMP+2*i+1}]")

    def nop(self, n):
        while n > 0:
            k = min(n, 16)
            self(f"s_nop {k-1}")
            n -= k

    def out_of_line(self, fn):
        main = self.L; self.L = self.tail
        fn()
        self.L = main

    def arrive(self, c, v=vC):
        self(f"""s_mov_b64 exec, 1
        ds_add_u32 v{v}, v{vONE} offset:{c}
        s_mov_b64 exec, -1""")

    def wait_cnt(self, c, target, sleep=0, v=vC):
        l = self.lab("WC"); d = self.lab("WD")
        self(f"""s_mov_b32 s{sSPIN}, {SPIN}
        {l}:
        ds_read_b32 v{vT}, v{v} offset:{c}
        s_waitcnt lgkmcnt(0)
        v_readfirstlane_b32 s{sT0}, v{vT}
        s_sub_u32 s{sSPIN}, s{sSPIN}, 1
        s_cbranch_scc1 {d}
        s_cmp_ge_u32 s{sT0}, {target}
        s_cbranch_scc1 {d}""")
        if sleep: self(f"s_sleep {sleep}")
        self(f"""s_branch {l}
        {d}:""")

    def poll_issue(self, n, soff, stride):
        for i in range(n):
            self(f"s_buffer_load_dword s{POLL+i}, {srd(S_WS)}, s{soff} offset:{128*i}")
        self(f"s_add_u32 s{soff}, s{soff}, {stride}")

    def poll_flags(self, n, soff, stride, sleep=1, issued=False):
        l = self.lab("PF"); d = self.lab("PD"); v = self.lab("PV"); c = self.lab("PC")
        self(f"s_mov_b32 s{sSPIN}, {NREP-2}")
        if issued: self(f"s_branch {c}")
        self(f"{l}:")
        self.poll_issue(n, soff, stride)
        self(f"""{c}:
        s_waitcnt lgkmcnt(0)
        s_xor_b64 s[{sM}:{sM+1}], s[{POLL}:{POLL+1}], s[{sN}:{sN+1}]""")
        for p in range(POLL + 2, POLL + n, 2):
            self(f"""s_xor_b64 s[{p}:{p+1}], s[{p}:{p+1}], s[{sN}:{sN+1}]
            s_or_b64 s[{sM}:{sM+1}], s[{sM}:{sM+1}], s[{p}:{p+1}]""")
        self(f"s_cbranch_scc0 {d}")
        if sleep: self(f"s_sleep {sleep}")
        self(f"""s_sub_u32 s{sSPIN}, s{sSPIN}, 1
        s_cbranch_scc0 {l}
        v_min_u32 v{vT1}, {n-1}, v{vLANE}
        v_lshlrev_b32 v{vT1}, 7, v{vT1}
        s_mov_b32 s{sSPIN}, {SPIN}
        {v}:
        buffer_load_dword v{vT}, v{vT1}, {srd(S_WS)}, s{soff} offen sc1
        s_waitcnt vmcnt(0)
        v_cmp_eq_u32 vcc, s{sN}, v{vT}
        s_sub_u32 s{sSPIN}, s{sSPIN}, 1
        s_cbranch_scc1 {d}
        s_cmp_eq_u64 vcc, -1
        s_cbranch_scc1 {d}
        s_sleep 4
        s_branch {v}
        {d}:""")

    def publish(self, soff, shift):
        self(f"""v_lshlrev_b32 v{vT}, {shift}, v{vLANE}
        s_mov_b64 exec, {(1 << NREP) - 1}
        buffer_store_dword v{vN}, v{vT}, {srd(S_WS)}, s{soff} offen sc1
        s_mov_b64 exec, -1""")

    def load_nonce(self):
        self(f"buffer_load_dword v{vN}, v{vZ}, {srd(S_DBG)}, 0 offen sc1")

    def get_nonce(self):
        l = self.lab("GN"); d = self.lab("GD")
        self(f"""s_mov_b32 s{sSPIN}, {SPIN}
        {l}:
        v_readfirstlane_b32 s{sN}, v{vN}
        s_sub_u32 s{sSPIN}, s{sSPIN}, 1
        s_cbranch_scc1 {d}
        s_cmp_lg_u32 s{sN}, 0
        s_cbranch_scc1 {d}""")
        self.load_nonce()
        self(f"""s_waitcnt vmcnt(0)
        s_branch {l}
        {d}:
        s_mov_b32 s{sN+1}, s{sN}""")

    def fill(self, slot, sb):
        self(f"""s_add_u32 m0, s{sRG}, {slot*2048}
        s_nop 0
        buffer_load_dwordx4 v{vDA}, {srd(sb)}, s{sSO} offen lds
        buffer_load_dwordx4 v{vDB}, {srd(sb)}, s{sSO} offen offset:1024 lds
        s_add_u32 s{sSO}, s{sSO}, s{sSTEP}""")

    def kv_dma(self, q, sidx, part=3):
        base = q * 16 * REC + (16384 if part == 2 else 0)
        self(f"""s_lshl_b32 s{sT0}, s{sidx}, 12
        s_add_u32 s{sSO}, s{sT0}, {WS_KV + base}
        s_add_u32 m0, s{sT0}, {base}""")
        for gi in range(2 if part == 3 else 1):
            self("s_nop 0")
            for i in range(4):
                self(f"buffer_load_dwordx4 v{vL16}, {srd(S_WS)}, s{sSO} offen offset:{i*1024} sc1 lds")
            if part == 1: return
            self(f"""s_add_u32 s{sSO}, s{sSO}, 16384
            s_add_u32 m0, m0, 16384""")
        l = self.lab("KD")
        self(f"""s_cmp_lg_u32 s{sidx}, 0
        s_cbranch_scc1 {l}
        buffer_load_dwordx4 v{vL16}, {srd(S_WS)}, s{sSO} offen sc1 lds
        {l}:""")

    def mf(self, D, A, B, first=False):
        self(f"v_mfma_f32_32x32x16_bf16 {vr(D,16)}, {vr(A,4)}, {vr(B,4)}, {'0' if first else vr(D,16)}")


XR = 32
def prologue(g, O):
    g(f"""
    s_cmp_ge_u32 s2, 256
    s_cbranch_scc1 L_END
    s_load_dwordx2 s[{S_X}:{S_X+1}], s[0:1], 0
    s_load_dwordx2 s[{S_WQ}:{S_WQ+1}], s[0:1], 8
    s_load_dwordx4 s[60:63], s[0:1], 16
    s_load_dwordx2 s[{S_WO}:{S_WO+1}], s[0:1], 32
    s_load_dwordx2 s[{S_W1}:{S_W1+1}], s[0:1], 48
    s_load_dwordx2 s[{S_W2}:{S_W2+1}], s[0:1], 56
    s_load_dwordx2 s[{S_OUT}:{S_OUT+1}], s[0:1], 64
    s_load_dwordx2 s[{S_DBG}:{S_DBG+1}], s[0:1], 72
    s_load_dwordx2 s[{S_WS}:{S_WS+1}], s[0:1], 80
    s_memrealtime s[{sTM}:{sTM+1}]
    """)
    g.stamp(0)
    g(f"""
    v_lshrrev_b32 v{vT}, 6, v0
    v_and_b32 v{vLANE}, 63, v0
    s_lshr_b32 s{sIDX}, s2, 3
    v_readfirstlane_b32 s{sW}, v{vT}
    """)
    g(f"""
    s_lshr_b32 s{sPR}, s{sIDX}, 3
    s_and_b32 s{sT0}, s2, 1
    s_lshl_b32 s{sT0}, s{sT0}, 2
    s_add_u32 s{sCB}, s{sT0}, s{sPR}
    s_and_b32 s{sT0}, s2, 6
    s_lshl_b32 s{sT0}, s{sT0}, 2
    s_and_b32 s{sRB}, s{sIDX}, 7
    s_add_u32 s{sRB}, s{sRB}, s{sT0}
    s_mov_b32 s{S_X+2}, 2097152
    s_mov_b32 s{S_X+3}, 0x20000
    v_lshrrev_b32 v{vT}, 3, v{vLANE}
    v_and_b32 v{vT1}, 7, v{vLANE}
    v_lshlrev_b32 v{vT2}, 10, v{vT}
    v_lshl_or_b32 v{vT2}, v{vT1}, 4, v{vT2}
    s_and_b32 s{sT2}, s{sPR}, 1
    s_lshl_b32 s{sT2}, s{sT2}, 2
    s_xor_b32 s{sSTEP}, s{sW}, s{sT2}
    s_lshl_b32 s{sT0}, s{sRB}, 16
    s_lshl_b32 s{sT1}, s{sSTEP}, 13
    s_add_u32 s{sT1}, s{sT0}, s{sT1}
    s_mov_b32 s{S_DBG+2}, 256
    s_mov_b32 s{S_DBG+3}, 0x20000
    v_mov_b32 v{vZ}, 0
    v_lshlrev_b32 v{vL16}, 4, v{vLANE}
    s_sub_u32 s{sJ}, s{sW}, 4
    s_mov_b32 s{S_WKV+2}, 16384
    s_mov_b32 s{S_WKV+3}, 0x20000
    v_lshlrev_b32 v28, 7, v{vLANE}
    v_mov_b32 v{vC}, {CNT}
    v_mov_b32 v{vONE}, 1
    v_lshl_add_u32 v29, v{vLANE}, 2, v{vC}
    ds_write_b32 v29, v{vZ}
    s_cmp_lt_u32 s{sCB}, 4
    s_waitcnt lgkmcnt(0)
    s_barrier
    s_cselect_b32 s{S_WKV}, s60, s62
    s_cselect_b32 s{S_WKV+1}, s61, s63
    s_cmp_lg_u32 s{sPR}, 1
    s_cbranch_scc1 L_PFE
    s_cmp_lg_u32 s{sW}, 0
    s_cbranch_scc1 L_PFE
    s_and_b32 s{sT2}, s{sIDX}, 7
    s_lshl_b32 s{sT2}, s{sT2}, 11
    s_mov_b64 exec, 0xffff
    buffer_load_dword v{vDUM}, v28, {srd(S_WKV)}, s{sT2} offen
    s_mov_b64 exec, -1
    L_PFE:
    s_or_b32 s{sT0}, s2, s{sW}
    s_cmp_lg_u32 s{sT0}, 0
    s_cbranch_scc1 L_NN
    s_or_b32 s{sT0}, s{sTM}, 1
    v_mov_b32 v{vN}, s{sT0}
    s_mov_b64 exec, 1
    buffer_store_dword v{vN}, v{vZ}, {srd(S_DBG)}, 0 offen sc1
    s_mov_b64 exec, -1
    L_NN:""")
    for i in range(8):
        g(f"buffer_load_dwordx4 {vr(XR+4*i,4)}, v{vT2}, {srd(S_X)}, s{sT1} offen offset:{i*128}")
    g.stamp(1)
    g(f"""
    s_cmp_lt_u32 s{sW}, 4
    s_cbranch_scc1 L_NKV
    s_cmp_lg_u32 s{sPR}, 0
    s_cbranch_scc1 L_NKV
    s_mul_i32 s{sT1}, s{sJ}, 4224
    s_add_u32 m0, s{sT1}, {R3}
    s_lshl_b32 s{sT0}, s{sJ}, 12""")
    for i in range(4):
        g(f"buffer_load_dwordx4 v{vL16}, {srd(S_WKV)}, s{sT0} offen offset:{i*1024} lds")
    g(f"""
    L_NKV:
    s_mov_b32 s{S_WQ+2}, 524288
    s_mov_b32 s{S_WQ+3}, 0x20000
    s_mov_b32 s{S_WO+2}, 524288
    s_mov_b32 s{S_WO+3}, 0x20000
    s_mov_b32 s{S_W1+2}, 1835008
    s_mov_b32 s{S_W1+3}, 0x20000
    s_mov_b32 s{S_W2+2}, 1835008
    s_mov_b32 s{S_W2+3}, 0x20000
    s_mov_b32 s{S_OUT+2}, 2097152
    s_mov_b32 s{S_OUT+3}, 0x20000
    s_mov_b32 s{S_WS+2}, {WS_BYTES}
    s_mov_b32 s{S_WS+3}, 0x20000
    v_lshrrev_b32 v{vHB}, 5, v{vLANE}
    v_bfe_u32 v{vTR}, v{vLANE}, 2, 2
    v_lshl_add_u32 v{vROW}, v{vHB}, 2, v{vTR}
    v_bfe_u32 v25, v{vLANE}, 4, 1
    v_and_b32 v26, 3, v{vLANE}
    v_lshlrev_b32 v{vC16}, 4, v26
    v_lshl_add_u32 v{vCOL}, v25, 6, v{vC16}
    s_mul_i32 s{sT1}, s{sSTEP}, {8*XP}
    s_add_u32 s{sT1}, s{sT1}, {R2}
    v_mul_u32_u24 v{vT3}, {XP}, v{vT}
    v_lshl_add_u32 v{vT3}, v{vT1}, 4, v{vT3}
    v_add_u32 v{vT3}, s{sT1}, v{vT3}
    s_mul_i32 s{sHO}, s{sRB}, {HO_RB}
    s_add_u32 s{sHO}, s{sHO}, {WS_HO}
    s_lshl_b32 s{sFL}, s{sRB}, 16
    s_add_u32 s{sFL}, s{sFL}, {WS_HF}
    v_lshrrev_b32 v{vXO}, 3, v0
    v_lshlrev_b32 v{vXO}, 10, v{vXO}
    v_lshl_or_b32 v{vXO}, v{vT1}, 4, v{vXO}
    s_lshl_b32 s{sT1}, s{sRB}, 16
    s_lshl_b32 s{sT2}, s{sCB}, 7
    s_add_u32 s{sT1}, s{sT1}, s{sT2}
    v_add_u32 v{vXO}, s{sT1}, v{vXO}
    v_lshlrev_b32 v{vTR}, 6, v{vTR}
    v_lshl_add_u32 v{vTR}, v25, 5, v{vTR}
    v_lshl_add_u32 v{vTR}, v26, 3, v{vTR}
    v_mov_b32 v138, 0
    v_mov_b32 v139, 0
    v_lshrrev_b32 v27, 4, v{vLANE}
    v_and_b32 v28, 15, v{vLANE}
    v_min_u32 v28, 13, v28
    v_lshlrev_b32 v28, 7, v28
    s_mov_b32 s{sT1}, 3584
    v_mad_u32_u24 v27, v27, s{sT1}, v28
    s_sub_u32 s{sT0}, s{sIDX}, 8
    s_lshl_b32 s{sT0}, s{sT0}, 2
    s_and_b32 s{sT2}, s{sW}, 3
    s_add_u32 s{sT0}, s{sT0}, s{sT2}
    s_mul_i32 s{sT0}, s{sT0}, {4*3584}
    s_lshr_b32 s{sT1}, s{sCB}, 2
    s_mul_i32 s{sT1}, s{sT1}, 1792
    s_add_u32 s{sT0}, s{sT0}, s{sT1}
    v_add_u32 v27, s{sT0}, v27
    s_cmp_ge_u32 s{sW}, 4
    s_cbranch_scc1 L_G_ADDR
    v_lshl_add_u32 v{vDA}, v{vROW}, 10, v{vCOL}
    v_add_u32 v{vDB}, {8*1024-1024}, v{vDA}
    s_lshl_b32 s{sSO}, s{sW}, 16
    s_lshl_b32 s{sT0}, s{sCB}, 7
    s_add_u32 s{sSO}, s{sSO}, s{sT0}
    s_branch L_LN
    L_G_ADDR:
    s_lshr_b32 s{sT1}, s{sCB}, 2
    s_mul_i32 s{sMT}, s{sT1}, 28
    s_lshl_b32 s{sT0}, s{sPR}, 2
    s_add_u32 s{sT0}, s{sT0}, s{sJ}
    s_lshl_b32 s{sT0}, s{sT0}, 1
    s_sub_u32 s{sT0}, s{sT0}, 4
    s_cmp_eq_u32 s{sPR}, 0
    s_cselect_b32 s{sT0}, s{sJ}, s{sT0}
    s_add_u32 s{sMT}, s{sMT}, s{sT0}
    s_lshl_b32 s{sSO}, s{sMT}, 6
    s_mov_b32 s{sT1}, 3584
    v_mad_u32_u24 v{vDA}, v{vROW}, s{sT1}, v{vCOL}
    v_add_u32 v{vDB}, {8*3584-1024}, v{vDA}
    s_mov_b32 s{sSTEP}, {16*3584}
    s_mul_i32 s{sRG}, s{sJ}, {RING}
    s_add_u32 s{sRG}, s{sRG}, {R3}
    s_cmp_lg_u32 s{sPR}, 0
    s_cbranch_scc1 L_G_EARLY
    v_lshrrev_b32 v28, 2, v{vLANE}
    v_mad_u32_u24 v{vDA}, v28, s{sT1}, v{vC16}
    v_add_u32 v{vDB}, {16*3584-1024}, v{vDA}
    s_mov_b32 s{sSTEP}, {32*3584}
    v_and_b32 v142, 15, v{vLANE}
    v_lshrrev_b32 v143, 4, v{vLANE}
    s_mul_i32 s{sT0}, s{sJ}, {16*XP}
    s_add_u32 s{sT0}, s{sT0}, {R2}
    v_mul_u32_u24 v136, {XP}, v142
    v_lshl_add_u32 v136, v143, 8, v136
    v_add_u32 v136, s{sT0}, v136
    v_mul_u32_u24 v137, 4224, v143
    v_lshl_add_u32 v137, v142, 3, v137
    v_add_u32 v137, {R3}, v137
    ; K: ((g&1)*32 + 16*(j&1) + (l&15))*16 + (g>>1)*8 ; V: 1024 + (j&1)*544 + (g>>1)*256 + d*16 + (g&1)*8
    v_and_b32 v140, 1, v143
    v_lshrrev_b32 v141, 1, v143
    v_lshlrev_b32 v142, 4, v142
    v_lshl_add_u32 v138, v140, 9, v142
    v_lshl_add_u32 v138, v141, 3, v138
    v_lshl_add_u32 v139, v141, 8, v142
    v_lshl_add_u32 v139, v140, 3, v139
    s_lshl_b32 s{sT0}, s{sRB}, 1
    s_lshr_b32 s{sT1}, s{sJ}, 1
    s_add_u32 s{sT0}, s{sT0}, s{sT1}
    s_mul_i32 s{sKVO}, s{sT0}, {REC}
    s_and_b32 s{sT1}, s{sJ}, 1
    s_lshl_b32 s{sT0}, s{sT1}, 8
    s_mul_i32 s{sT1}, s{sT1}, 544
    s_add_u32 s{sT1}, s{sT1}, 1024
    s_cmp_eq_u32 s{sCB}, 0
    s_cselect_b32 s{sT0}, s{sT0}, s{sT1}
    s_cselect_b64 vcc, -1, 0
    s_add_u32 s{sKVO}, s{sKVO}, s{sT0}
    v_cndmask_b32 v138, v139, v138, vcc
    v_lshlrev_b32 v139, 3, v{vLANE}
    v_mov_b32 v140, 0x3f803f80
    v_cmp_gt_u32 vcc, 2, v{vLANE}
    s_nop 1
    v_cndmask_b32 v140, 0, v140, vcc
    v_mov_b32 v141, v140
    """)


def pf_w1(g):
    g(f"""s_mov_b32 s{sT0}, {384*3584}
    buffer_load_dword v{vDUM}, v27, {srd(S_W1)}, 0 offen
    buffer_load_dword v{vDUM}, v27, {srd(S_W1)}, s{sT0} offen""")


def wq_dma(g):
    g(f"""s_lshl_b32 s{sT0}, s{sW}, 13
    s_add_u32 m0, s{sT0}, {R1}""")
    for i in range(8):
        g(f"""s_nop 0
        buffer_load_dwordx4 v{vDA}, {srd(S_WQ)}, s{sSO} offen lds
        buffer_load_dwordx4 v{vDB}, {srd(S_WQ)}, s{sSO} offen offset:1024 lds""")
        if i < 7:
            k = 13 if i == 3 else 1
            g(f"s_add_u32 s{sSO}, s{sSO}, {16384*k}")
            g(f"s_add_u32 m0, m0, {2048*k}")


def layernorm(g, O):
    F = 64
    def stats(after, nonce):
        for i in range(8):
            g(f"s_waitcnt vmcnt({after + 7 - i})")
            if i == 7:
                g.stamp(2)
                if nonce:
                    g(f"""s_cmp_ge_u32 s{sW}, 4
                    s_cbranch_scc1 L_NNL""")
                    g.load_nonce()
                    g("L_NNL:")
            for d in range(4):
                r = XR + 4 * i + d; f = F + 8 * i + 2 * d
                g(f"v_lshlrev_b32 v{f}, 16, v{r}")
                g(f"v_and_b32 v{f+1}, 0xffff0000, v{r}")
            for d in range(4):
                f = F + 8 * i + 2 * d
                a = 128 + 2 * (d % 2); q = 132 + 2 * (d % 2)
                if i == 0 and d < 2:
                    g(f"v_pk_mul_f32 {vr(q,2)}, {vr(f,2)}, {vr(f,2)}")
                    g(f"v_mov_b64 {vr(a,2)}, {vr(f,2)}")
                else:
                    g(f"v_pk_add_f32 {vr(a,2)}, {vr(a,2)}, {vr(f,2)}")
                    g(f"v_pk_fma_f32 {vr(q,2)}, {vr(f,2)}, {vr(f,2)}, {vr(q,2)}")
    def early():
        g("L_G_EARLY:")
        for s_ in range(3): g.fill(s_, S_W1)
        stats(6, False)
        g("s_branch L_LN2")
    g.out_of_line(early)
    g("L_LN:")
    stats(0, True)
    g(f"""L_LN2:
    v_pk_add_f32 v[128:129], v[128:129], v[130:131]
    v_pk_add_f32 v[132:133], v[132:133], v[134:135]
    v_add_f32 v128, v128, v129
    v_add_f32 v132, v132, v133
    s_nop 1
    v_add_f32_dpp v128, v128, v128 quad_perm:[1,0,3,2] row_mask:0xf bank_mask:0xf
    v_add_f32_dpp v132, v132, v132 quad_perm:[1,0,3,2] row_mask:0xf bank_mask:0xf
    s_nop 1
    v_add_f32_dpp v128, v128, v128 quad_perm:[2,3,0,1] row_mask:0xf bank_mask:0xf
    v_add_f32_dpp v132, v132, v132 quad_perm:[2,3,0,1] row_mask:0xf bank_mask:0xf
    s_nop 1
    v_add_f32_dpp v128, v128, v128 row_half_mirror row_mask:0xf bank_mask:0xf
    v_add_f32_dpp v132, v132, v132 row_half_mirror row_mask:0xf bank_mask:0xf
    v_mul_f32 v128, {f2u(1.0/512):#x}, v128      ; mean
    v_mul_f32 v132, {f2u(1.0/512):#x}, v132      ; E[x^2]
    v_fma_f32 v132, -v128, v128, v132            ; var
    v_max_f32 v132, 0, v132
    v_add_f32 v132, {f2u(1e-5):#x}, v132
    v_rsq_f32 v132, v132
    s_nop 0
    v_mul_f32_e64 v128, -v128, v132              ; -mean*rstd
    """)
    for i in range(8):
        for d in range(4):
            f = F + 8 * i + 2 * d
            g(f"v_pk_fma_f32 {vr(f,2)}, {vr(f,2)}, v[132:133], v[128:129] op_sel_hi:[1,0,0]")
        for d in range(4):
            f = F + 8 * i + 2 * d
            g(f"v_cvt_pk_bf16_f32 v{XR+4*i+d}, v{f}, v{f+1}")
        g(f"ds_write_b128 v{vT3}, {vr(XR+4*i,4)} offset:{i*128}")
    g("s_waitcnt lgkmcnt(0)")
    g.arrive(C_XN)
    g.stamp(3)


ACC = 128
def g_role(g, O):
    g(f"""s_cmp_lt_u32 s{sW}, 4
    s_cbranch_scc1 L_A_PRE
    s_cmp_lg_u32 s{sPR}, 0
    s_cbranch_scc1 L_G_NP
    s_setprio 3""")
    g.wait_cnt(C_XN, 8)
    g.stamp(4)
    def kv_chain(isK):
        FB = 32; NS = 5
        def rd(ks):
            b = FB + 8 * (ks % NS)
            g(f"ds_read_b128 {vr(b,4)}, v136 offset:{ks*16}")
            g(f"ds_read_b64_tr_b16 {vr(b+4,2)}, v137 offset:{ks*256}")
            g(f"ds_read_b64_tr_b16 {vr(b+6,2)}, v137 offset:{ks*256+128}")
        for ks in range(4): rd(ks)
        for ks in range(16):
            b = FB + 8 * (ks % NS)
            g(f"s_waitcnt lgkmcnt({min(9, 3*(15-ks))})")
            c = "0" if ks == 0 else vr(ACC, 4)
            if isK: g(f"v_mfma_f32_16x16x32_bf16 {vr(ACC,4)}, {vr(b+4,4)}, {vr(b,4)}, {c}")
            else:   g(f"v_mfma_f32_16x16x32_bf16 {vr(ACC,4)}, {vr(b,4)}, {vr(b+4,4)}, {c}")
            if ks + 4 < 16: rd(ks + 4)
    g(f"""s_cmp_lg_u32 s{sCB}, 0
    s_cbranch_scc1 L_V""")
    kv_chain(True)
    g("""s_nop 1
    s_branch L_KVS
    L_V:""")
    kv_chain(False)
    g(f"""s_mov_b64 exec, 0xf
    buffer_store_dwordx2 v[140:141], v139, {srd(S_WS)}, s{sKVO} offen offset:512 sc1
    s_mov_b64 exec, -1
    L_KVS:
    s_nop 5
    v_cvt_pk_bf16_f32 v132, v128, v129
    v_cvt_pk_bf16_f32 v133, v130, v131
    buffer_store_dwordx2 v[132:133], v138, {srd(S_WS)}, s{sKVO} offen sc1""")
    g.load_nonce()
    g.arrive(C_KVDONE)
    g.stamp(11)
    g(f"""s_lshl_b32 s{sT1}, s{sRB}, 8
    s_lshl_b32 s{sT2}, s{sCB}, 5
    s_add_u32 s{sT1}, s{sT1}, s{sT2}
    s_add_u32 s{sT1}, s{sT1}, {WS_KVF}
    s_waitcnt vmcnt(0)
    s_mov_b64 exec, 1
    ds_add_rtn_u32 v{vT}, v{vC}, v{vONE} offset:{C_KVST}
    s_mov_b64 exec, -1""")
    g.get_nonce()
    g(f"""s_waitcnt lgkmcnt(0)
    v_readfirstlane_b32 s{sT0}, v{vT}
    s_nop 3
    s_cmp_lg_u32 s{sT0}, 3
    s_cbranch_scc1 L_G_NF""")
    g.publish(sT1, 13)
    g.arrive(C_PUB)
    g("L_G_NF:")
    g.stamp(10)
    g.wait_cnt(C_PUB, 1)
    for s_ in range(3): g.fill(s_, S_W1)
    g(f"""L_G_NP:
    s_setprio 2""")
    g.load_nonce()
    g.wait_cnt(C_XN, 8)
    def probe(k):
        if O("probe", 0):
            g(f"""s_memrealtime s[60:61]
            s_waitcnt lgkmcnt(0)
            v_writelane_b32 v31, s60, {k}""")
    def reset_o():
        g(f"""v_mov_b64 v[120:121], -1
        v_mov_b64 v[122:123], -1
        s_lshl_b32 s{sT0}, s{sCB}, 13
        s_lshr_b32 s60, s{sJ}, 1
        s_lshl_b32 s60, s60, 12
        s_add_u32 s{sT0}, s{sT0}, s60
        s_and_b32 s60, s{sJ}, 1
        s_lshl_b32 s60, s60, 10
        s_add_u32 s{sT0}, s{sT0}, s60
        s_add_u32 s{sT0}, s{sT0}, s{sHO}
        s_add_u32 s{sT0}, s{sT0}, {112*2048}
        buffer_store_dwordx4 v[120:123], v{vL16}, {srd(S_WS)}, s{sT0} offen sc1
        buffer_store_dwordx4 v[120:123], v{vL16}, {srd(S_WS)}, s{sT0} offen offset:2048 sc1""")
    def gemm1(n, rd, mfs, nrd, kq):
        order = [("w", 0)] * 2 + [("w", 1)] * 2 + [("w", 2)] * 2 + [("n", 0)]
        def wait_for(k):
            last = max(i for i, t in enumerate(order) if t == ("w", k))
            g(f"s_waitcnt vmcnt({len(order) - 1 - last})")
        for k in range(2):
            wait_for(k)
            for r in rd(k): r()
        g(f"s_waitcnt lgkmcnt({nrd})")
        for k in range(n):
            m = [(lambda f=f: (g("s_setprio 0"), f(), g("s_setprio 2"))) for f in mfs(k)]
            m[0]()
            if k == kq:
                g.wait_cnt(C_H1, 4, sleep=1)
                g(f"s_mov_b32 s{sIT}, s{sSO}")
                g.kv_dma(1, sJ)
                g(f"s_mov_b32 s{sSO}, s{sIT}")
                reset_o()
                order.extend([("q", 0)] * 10)
            if k + 3 < n:
                g.fill(k % 3, S_W1); order.extend([("w", k + 3)] * 2)
            m[1]()
            if k + 2 < n:
                wait_for(k + 2)
                if k + 2 == kq + 3: g.arrive(C_H1C)
                r = rd(k + 2)
                r[0]()
            m[2]()
            if k + 2 < n: r[1]()
            m[3]()
            if k + 1 < n:
                g(f"s_waitcnt lgkmcnt({nrd if k + 2 < n else 0})")
                probe(k)
            if k + 2 == n:
                g.arrive(C_G1)
                g(f"""s_lshl_b32 s{sIT}, s{sJ}, 10
                s_add_u32 s{sIT}, s{sIT}, {WS_KVF + 4096}""")
                g.poll_issue(8, sIT, 8192)
    def h_cvt(mt):
        for nt in range(2):
            a = ACC + 32*mt + 16*nt; o = 64 + 8 * (2*mt + nt)
            for i in range(8):
                g(f"v_cvt_pk_bf16_f32 v{o+i}, v{a+2*i}, v{a+2*i+1}")
            for i in range(8):
                g(f"v_pk_max_i16 v{o+i}, v{o+i}, 0")
    def h_store(mt, sM_):
        for nt in range(2):
            o = 64 + 8 * (2*mt + nt)
            g(f"buffer_store_dwordx4 {vr(o,4)}, v{vL16}, {srd(S_WS)}, s{sM_} offen offset:{nt*1024} sc1")
            g(f"buffer_store_dwordx4 {vr(o+4,4)}, v{vL16}, {srd(S_WS)}, s{sM_} offen offset:{2048+nt*1024} sc1")
    g(f"""
    v_and_b32 v25, 31, v{vLANE}
    v_mul_u32_u24 v{vXF}, {XP}, v25
    v_lshl_add_u32 v{vXF}, v{vHB}, 4, v{vXF}
    v_add_u32 v{vXF}, {R2}, v{vXF}
    s_cmp_eq_u32 s{sPR}, 0
    s_cbranch_scc1 L_G1_N
    v_lshl_add_u32 v{vWF}, v{vHB}, 10, v{vTR}
    v_add_u32 v{vWF}, s{sRG}, v{vWF}
    """)
    FS = [32, 48, 64]
    def rd_w(ks):
        b = FS[ks % 3]; va = vWF; sl = (ks % 3) * 2048
        def r0():
            g(f"ds_read_b128 {vr(b,4)}, v{vXF} offset:{ks*32}")
            g(f"ds_read_b128 {vr(b+4,4)}, v{vXF} offset:{32*XP+ks*32}")
        def r1():
            for mt in range(2):
                for i in range(2):
                    g(f"ds_read_b64_tr_b16 {vr(b+8+4*mt+2*i,2)}, v{va} offset:{sl+mt*256+i*512}")
        return [r0, r1]
    def mf_w(ks):
        b = FS[ks % 3]
        return [(lambda mt=mt, nt=nt: g.mf(ACC + 32*mt + 16*nt, b + 8 + 4*mt, b + 4*nt, ks == 0)) for mt in range(2) for nt in range(2)]
    gemm1(32, rd_w, mf_w, 6, O("kq", 13))
    if O("probe", 0):
        g(f"""s_lshl_b32 s{sT0}, s2, 2
        s_add_u32 s{sT0}, s{sT0}, s{sJ}
        s_lshl_b32 s{sT0}, s{sT0}, 8
        s_add_u32 s{sT0}, s{sT0}, {WS_DBG + 0x80000}
        v_lshlrev_b32 v30, 2, v{vLANE}
        buffer_store_dword v31, v30, {srd(S_WS)}, s{sT0} offen""")
    g.nop(10)
    h_cvt(0); h_cvt(1)
    g(f"""s_branch L_G1_DONE
    L_G1_N:
    v_lshl_add_u32 v{vWF}, v{vHB}, 9, v{vTR}
    v_add_u32 v{vWF}, s{sRG}, v{vWF}""")
    FN = [32, 56, 80]
    def rd_n(sl_):
        b = FN[sl_ % 3]; va = vWF; so = (sl_ % 3) * 2048
        def half(sub):
            ks = 2 * sl_ + sub; bb = b + 12 * sub
            g(f"ds_read_b128 {vr(bb,4)}, v{vXF} offset:{ks*32}")
            g(f"ds_read_b128 {vr(bb+4,4)}, v{vXF} offset:{32*XP+ks*32}")
            for i in range(2):
                g(f"ds_read_b64_tr_b16 {vr(bb+8+2*i,2)}, v{va} offset:{so+sub*1024+i*256}")
        return [lambda: half(0), lambda: (g("s_waitcnt lgkmcnt(10)"), half(1))]
    def mf_n(sl_):
        b = FN[sl_ % 3]
        return [(lambda sub=sub, nt=nt: g.mf(ACC + 16*nt, b + 12*sub + 8, b + 12*sub + 4*nt, sl_ == 0 and sub == 0)) for sub in range(2) for nt in range(2)]
    gemm1(16, rd_n, mf_n, 8, O("kqn", 8))
    g.nop(12)
    h_cvt(0)
    g("L_G1_DONE:")
    g.stamp(6)
    NK2 = 28
    g(f"""v_lshl_add_u32 v{vDA}, v{vROW}, 10, v{vCOL}
    v_add_u32 v{vDB}, {8*1024-1024}, v{vDA}
    s_mov_b32 s{sSTEP}, 16384
    v_lshl_add_u32 v{vWF}, v{vHB}, 9, v{vTR}
    v_add_u32 v{vWF}, s{sRG}, v{vWF}""")
    g.get_nonce()
    g.poll_flags(8, sIT, 8192, sleep=4, issued=True)
    g.arrive(C_G1)
    g.wait_cnt(C_QD, 4, sleep=2)
    g.wait_cnt(C_G1, 8, sleep=1)
    g.kv_dma(2, sJ); g.kv_dma(3, sJ)
    g(f"""s_lshl_b32 s{sT0}, s{sMT}, 12
    s_add_u32 s{sT1}, s{sT0}, s{sHO}
    s_add_u32 s{sT2}, s{sT1}, 4096
    s_waitcnt vmcnt(0)""")
    g.arrive(C_H2)
    g.stamp(5)
    h_store(0, sT1)
    g(f"""s_cmp_eq_u32 s{sPR}, 0
    s_cbranch_scc1 L_HS1""")
    h_store(1, sT2)
    g(f"""L_HS1:
    v_lshrrev_b32 v100, 2, v{vLANE}
    v_and_b32 v{vT}, 3, v{vLANE}
    v_lshlrev_b32 v{vT}, 7, v{vT}
    v_and_b32 v101, 3, v100
    v_lshl_add_u32 v100, v100, 10, v{vT}
    v_lshl_add_u32 v101, v101, 10, v{vT}
    s_lshr_b32 s60, s{sCB}, 2
    s_lshl_b32 s60, s60, 9
    s_mul_i32 s{sT0}, s{sIDX}, {56*1024}
    s_lshl_b32 s{sT2}, s{sJ}, 14
    s_add_u32 s{sT0}, s{sT0}, s{sT2}
    s_add_u32 s{sT0}, s{sT0}, s60
    v_add_u32 v100, s{sT0}, v100
    s_lshl_b32 s{sT0}, s{sIDX}, 14
    s_lshl_b32 s{sT2}, s{sJ}, 12
    s_add_u32 s{sT0}, s{sT0}, s{sT2}
    s_add_u32 s{sT0}, s{sT0}, s60
    v_add_u32 v101, s{sT0}, v101
    s_lshl_b32 s{sT1}, s{sCB}, 9
    s_lshl_b32 s{sT2}, s{sJ}, 7
    s_add_u32 s{sT1}, s{sT1}, s{sT2}
    s_add_u32 s{sT1}, s{sT1}, s{sFL}""")
    g("s_waitcnt vmcnt(0)")
    g.publish(sT1, 12)
    g.arrive(C_RST)
    if O("pf2", 1):
        g(f"""buffer_load_dword v{vDUM}, v100, {srd(S_W2)}, 0 offen
        buffer_load_dword v{vDUM}, v101, {srd(S_WO)}, 0 offen""")
    ND = O("nd", 7)
    NT = NK2 + 8
    def fill2(t):
        if t == 0:
            g(f"""s_lshl_b32 s{sSO}, s{sJ}, 17
            s_lshl_b32 s{sT0}, s{sCB}, 7
            s_add_u32 s{sSO}, s{sSO}, s{sT0}""")
        if t == 8:
            g(f"""s_mul_i32 s{sSO}, s{sJ}, {NK2*16384}
            s_lshl_b32 s{sT0}, s{sCB}, 7
            s_add_u32 s{sSO}, s{sSO}, s{sT0}""")
        g.fill(t % 3, S_WO if t < 8 else S_W2)
    NH = O("nh", 7)
    HB = [120 - 8*i for i in range(NH)]
    WB = [32, 40]
    WO = 192
    sHS = sIT
    def ldh(ks):
        b = HB[ks % NH]
        g(f"buffer_load_dwordx4 {vr(b,4)}, v{vL16}, {srd(S_WS)}, s{sHS} offen sc1")
        g(f"buffer_load_dwordx4 {vr(b+4,4)}, v{vL16}, {srd(S_WS)}, s{sHS} offen offset:1024 sc1")
        g(f"s_add_u32 s{sHS}, s{sHS}, 2048")
    def rd2(t):
        b = WO + 8 * t if t < 8 else WB[t % 2]; sl = (t % 3) * 2048
        for mt in range(2):
            for i in range(2):
                g(f"ds_read_b64_tr_b16 {vr(b+4*mt+2*i,2)}, v{vWF} offset:{sl+mt*256+i*1024}")
    order = []
    def issued(tag, n): order.extend([tag] * n)
    def wait_for(tag):
        last = max(i for i, t in enumerate(order) if t == tag)
        g(f"s_waitcnt vmcnt({len(order) - 1 - last})")
    for t in range(3):
        fill2(t); issued(("w", t), 2)
    g.stamp(7)
    if O("gidle", 0): g("s_branch L_G_SKIP")
    wait_for(("w", 0))
    rd2(0)
    g("s_waitcnt lgkmcnt(0)")
    fill2(3); issued(("w", 3), 2)
    for t in range(NT):
        ks = t - 8
        if t == 7:
            g(f"""s_and_b32 s{sT0}, s{sJ}, 2
            s_add_u32 s{sT0}, s{sT0}, s{sJ}
            s_lshl_b32 s{sT0}, s{sT0}, 9
            s_add_u32 s{sT1}, s{sFL}, s{sT0}""")
            g.poll_flags(12, sT1, 4096, sleep=8)
            g.stamp(8)
            g(f"""s_setprio {O('gprio2', 0)}
            s_mul_i32 s{sHS}, s{sJ}, {NK2*2048}
            s_add_u32 s{sHS}, s{sHS}, s{sHO}""")
            for k in range(NH - 1):
                ldh(k); issued(("h", k), 2)
            if O("tp", 45): g.wait_cnt(C_PRG, 4 * (O("tp", 45) // 16) + 1, sleep=8)
        if ND and ks == NK2 - ND:
            g(f"buffer_load_dwordx4 {vr(vXR,4)}, v{vXO}, {srd(S_X)}, 0 offen"); issued(("x", 0), 1)
            g.stamp(9)
            g(f"""s_lshl_b32 s{sT1}, s{sJ}, 2
            v_add_u32 v25, s{sT1}, v{vC}""")
            g.wait_cnt(C_AD0, 1, sleep=2, v=25)
            g("s_setprio 3")
        if t + 1 < NT:
            wait_for(("w", t + 1))
            rd2(t + 1)
        if ks >= 0:
            if ks + NH - 1 < NK2:
                ldh(ks + NH - 1); issued(("h", ks + NH - 1), 2)
            wait_for(("h", ks))
            b = WB[t % 2]; hb_ = HB[ks % NH]
        def refill2():
            if t + 1 < NT:
                g("s_waitcnt lgkmcnt(0)")
                if t + 4 < NT:
                    fill2(t + 4); issued(("w", t + 4), 2)
        if ks >= 0:
            for mt in range(2):
                for nt in range(2):
                    g.mf(ACC + 32*mt + 16*nt, b + 4*mt, hb_ + 4*nt, ks == 0)
        refill2()
    if not ND:
        g(f"buffer_load_dwordx4 {vr(vXR,4)}, v{vXO}, {srd(S_X)}, 0 offen")
        g.stamp(9)
    g(f"""L_G_SKIP:
    s_lshl_b32 s{sT2}, s{sJ}, 14
    s_add_u32 s{sT2}, s{sT2}, s{sHO}
    s_add_u32 s{sT1}, s{sT2}, {112*2048}
    s_add_u32 s{sT2}, s{sT1}, 4096
    s_add_u32 s60, s{sT1}, 8192
    s_add_u32 s61, s{sT1}, 12288
    v_and_b32 v25, 31, v{vLANE}
    v_mul_u32_u24 v25, {PP}, v25
    v_lshl_add_u32 v25, v{vHB}, 4, v25
    s_mul_i32 s{sT0}, s{sJ}, {PIMG}
    v_add_u32 v25, s{sT0}, v25""")
    g.wait_cnt(C_ADONE, 4, sleep=2)
    g("s_setprio 3")
    g.stamp(12)
    OF = 32
    NST = O("nst", 4); KP = 8 // NST
    def o_issue(st):
        for i in range(KP * st, KP * st + KP):
            so = [sT1, sT2, 60, 61][i // 2]
            for nt in range(2):
                g(f"buffer_load_dwordx4 {vr(OF+8*i+4*nt,4)}, v{vL16}, {srd(S_WS)}, s{so} offen offset:{(i%2)*2048+nt*1024} sc1")
    def o_check(st):
        r = list(range(OF + 8 * KP * st, OF + 8 * KP * (st + 1)))
        acc = [vT, vT1]
        g(f"v_max3_u32 v{vT}, v{r[0]}, v{r[1]}, v{r[2]}")
        g(f"v_max3_u32 v{vT1}, v{r[3]}, v{r[4]}, v{r[5]}")
        for n_, k in enumerate(range(6, len(r), 2)):
            g(f"v_max3_u32 v{acc[n_%2]}, v{acc[n_%2]}, v{r[k]}, v{r[k+1]}")
        g(f"""v_max_u32 v{vT}, v{vT}, v{vT1}
        v_cmp_eq_u32 vcc, -1, v{vT}
        s_cmp_lg_u64 vcc, 0""")
    g(f"s_mov_b32 s{sSPIN}, {SPIN}")
    for st in range(NST): o_issue(st)
    for st in range(NST):
        g(f"""L_OW{st}:
        s_waitcnt vmcnt({2 * KP * (NST - 1 - st)})""")
        o_check(st)
        g(f"""s_cbranch_scc1 L_OR{st}
        L_OM{st}:""")
        for i in range(KP * st, KP * st + KP):
            for mt in range(2):
                for nt in range(2):
                    g.mf(ACC + 32*mt + 16*nt, WO + 8*i + 4*mt, OF + 8*i + 4*nt)
        def retry(st=st):
            g(f"""L_OR{st}:
            s_sub_u32 s{sSPIN}, s{sSPIN}, 1
            s_cselect_b32 s{sSPIN}, 0, s{sSPIN}
            s_cbranch_scc1 L_OM{st}
            s_waitcnt vmcnt(0)""")
            for t_ in range(st, NST): o_issue(t_)
            g(f"s_branch L_OW{st}")
        g.out_of_line(retry)
    g.stamp(13)
    g.nop(9)
    for mt in range(2):
        for nt in range(2):
            for q in range(4):
                a = ACC + 32*mt + 16*nt + 4*q
                g(f"ds_write_b128 v25, {vr(a,4)} offset:{nt*32*PP + mt*128 + q*32}")
    g("s_waitcnt lgkmcnt(0)")


def final(g, O, debug):
    g(f"""L_FINAL:
    v_lshrrev_b32 v{vT}, 3, v0
    v_and_b32 v{vT1}, 7, v0
    v_mul_u32_u24 v{vT}, {PP}, v{vT}
    v_lshl_add_u32 v{vT}, v{vT1}, 5, v{vT}
    s_waitcnt vmcnt(0)""")
    for d in range(4):
        g(f"v_lshlrev_b32 v{64+2*d}, 16, v{vXR+d}")
        g(f"v_and_b32 v{65+2*d}, 0xffff0000, v{vXR+d}")
    g("s_barrier")
    for j in range(4):
        g(f"ds_read_b128 {vr(32+8*j,4)}, v{vT} offset:{j*PIMG}")
        g(f"ds_read_b128 {vr(36+8*j,4)}, v{vT} offset:{j*PIMG+16}")
    for j in range(4):
        g(f"s_waitcnt lgkmcnt({6-2*j})")
        for d in range(4):
            g(f"v_pk_add_f32 {vr(64+2*d,2)}, {vr(64+2*d,2)}, {vr(32+8*j+2*d,2)}")
    for d in range(4):
        g(f"v_cvt_pk_bf16_f32 v{72+d}, v{64+2*d}, v{65+2*d}")
    g(f"buffer_store_dwordx4 v[72:75], v{vXO}, {srd(S_OUT)}, 0 offen{['', ' sc1', ' nt', ' sc0 sc1'][O('outsc', 1)]}")
    if debug:
        g.stamp(14)
        g("s_waitcnt vmcnt(0)")
        g.stamp(15)
        g(f"""s_waitcnt lgkmcnt(0)
        s_lshl_b32 s{sT0}, s2, 3
        s_add_u32 s{sT0}, s{sT0}, s{sW}
        s_lshl_b32 s{sT0}, s{sT0}, 7
        s_add_u32 s{sT0}, s{sT0}, {WS_DBG}
        v_mov_b32 v{vT}, 0""")
        for i in range(16):
            g(f"v_writelane_b32 v{vT}, s{sSTAMP+2*i}, {i}")
        g(f"v_writelane_b32 v{vT}, s{sRETRY}, 16")
        g(f"v_writelane_b32 v{vT}, s{sRB}, 17")
        g(f"v_writelane_b32 v{vT}, s{sCB}, 18")
        g(f"""v_lshlrev_b32 v{vT1}, 2, v{vLANE}
        s_mov_b32 exec_hi, 0
        buffer_store_dword v{vT}, v{vT1}, {srd(S_WS)}, s{sT0} offen""")
        if O("dbgmax", 0):
            g(f"""s_load_dwordx2 s[{S_DBG}:{S_DBG+1}], s[0:1], 72
            s_mov_b32 s{S_DBG+2}, 256
            s_mov_b32 s{S_DBG+3}, 0x20000
            v_subrev_u32 v{vT}, s{sN}, v{vT}
            s_waitcnt lgkmcnt(0)
            s_cmp_lg_u32 s{sW}, {O("dbgmax", 0) - 1}
            s_cbranch_scc1 L_END
            s_mov_b64 exec, 0xfffe
            buffer_atomic_smax v{vT}, v{vT1}, {srd(S_DBG)}, 0 offen""")
    if O("amp", 0):
        st = O("amp", 0) % 100; role = O("amp", 0) // 100
        g(f"""s_sub_u32 s62, s{sSTAMP+2*st}, s{sN}
        s_lshl_b32 s62, s62, 2
        s_cmp_{'lt' if role == 1 else 'ge'}_u32 s{sW}, 4
        s_cselect_b32 s62, s62, 0
        s_max_i32 s62, s62, 0
        s_add_u32 s62, s62, 4000
        L_PAD:
        s_memrealtime s[60:61]
        s_waitcnt lgkmcnt(0)
        s_sub_u32 s60, s60, s{sN}
        s_cmp_lt_u32 s60, s62
        s_cbranch_scc1 L_PAD""")
    g("""L_END:
    s_endpgm""")


def a_role(g, O, debug):
    FOFF = float(O('foff', 80))
    g(f"""L_A_PRE:
    s_cmp_eq_u32 s{sPR}, 0
    s_cbranch_scc1 L_WQP
    s_setprio 2
    L_WQP:""")
    g.stamp(4)
    wq_dma(g)
    pf_w1(g); NPF = 2
    QACC = 144
    g(f"""
    v_and_b32 v25, 31, v{vLANE}
    s_and_b32 s{sT0}, s{sW}, 1
    s_mul_i32 s{sT0}, s{sT0}, {32*XP}
    s_add_u32 s{sT0}, s{sT0}, {R2}
    v_mul_u32_u24 v{vXF}, {XP}, v25
    v_lshl_add_u32 v{vXF}, v{vHB}, 4, v{vXF}
    v_add_u32 v{vXF}, s{sT0}, v{vXF}
    s_lshr_b32 s{sT0}, s{sW}, 1
    s_lshl_b32 s{sT0}, s{sT0}, 8
    v_lshl_add_u32 v{vWF}, v{vHB}, 10, v{vTR}
    v_add_u32 v{vWF}, s{sT0}, v{vWF}
    """)
    xq = lambda ks: (32 + 4 * ks) if ks < 28 else (160 + 4 * (ks - 28))
    g.wait_cnt(C_XN, 8, sleep=1)
    g(f"""s_cmp_lg_u32 s{sPR}, 0
    s_cbranch_scc1 L_XQ""")
    g.wait_cnt(C_KVDONE, 4, sleep=1)
    g("L_XQ:")
    for ks in range(32):
        g(f"ds_read_b128 {vr(xq(ks),4)}, v{vXF} offset:{ks*32}")
        if ks % 8 == 7 and ks < 31: g("s_waitcnt lgkmcnt(4)")
    g(f"""s_waitcnt vmcnt({8 + NPF})
    s_setprio 2""")
    g.arrive(C_WQ)
    g.wait_cnt(C_WQ, 4)
    g.stamp(10)
    FB = 176; NS = 8
    def rdq(ks):
        b = FB + 4 * (ks % NS)
        o = R1 + ks * 2048
        g(f"ds_read_b64_tr_b16 {vr(b,2)}, v{vWF} offset:{o}")
        g(f"ds_read_b64_tr_b16 {vr(b+2,2)}, v{vWF} offset:{o+512}")
    for ks in range(7): rdq(ks)
    for ks in range(32):
        b = FB + 4 * (ks % NS)
        g(f"s_waitcnt lgkmcnt({min(12, 2*(31-ks))})")
        g.mf(QACC, b, xq(ks), ks == 0)
        if ks + 7 == 16:
            g(f"s_waitcnt vmcnt({NPF})")
            g.arrive(C_WQ2)
            g.wait_cnt(C_WQ2, 4)
        if ks + 7 < 32: rdq(ks + 7)
    g.arrive(C_QD)
    g.stamp(5)
    QA, QB = 24, 28
    g.get_nonce()
    g(f"s_mov_b32 s{sIT}, {WS_KVF}")
    g.poll_issue(16, sIT, 8192)
    g(f"s_mov_b32 s{sT0}, {f2u(QSCALE):#x}")
    for i in range(16):
        g(f"v_mul_f32 v{QACC+i}, s{sT0}, v{QACC+i}")
    for i in range(8):
        g(f"v_cvt_pk_bf16_f32 v{QA+i}, v{QACC+2*i}, v{QACC+2*i+1}")
    SA = [32, 48]; SB = [64, 80]; CA, CB_ = 96, 112; OA, OB = 128, 144
    KF = [160, 164]; VF = [168, 176]; vIDX, vKA, vVA = 184, 185, 186
    vAD, vCK, vCV = 187, 188, 189
    def zero_state():
        for i in range(0, 16, 2):
            g(f"v_mov_b64 {vr(OA+i,2)}, 0"); g(f"v_mov_b64 {vr(OB+i,2)}, 0"); g(f"v_mov_b64 {vr(SB[1]+i,2)}, 0")
        for i in range(0, 8, 2):
            g(f"v_mov_b64 {vr(VF[1]+i,2)}, 0")
    g(f"""
    v_mov_b32 v{vIDX}, 0xdddddddd
    v_mov_b32 v{vKA}, v{vL16}
    v_and_b32 v{vT}, 31, v{vLANE}
    v_lshrrev_b32 v{vT1}, 5, v{vLANE}
    v_lshlrev_b32 v{vT1}, 8, v{vT1}
    v_lshl_add_u32 v{vT1}, v{vT}, 4, v{vT1}
    v_mov_b32 v{vT2}, 528
    v_mov_b32 v{vT3}, 512
    v_and_b32 v{vVA}, 0x1b, v{vT}
    v_cmp_eq_u32 vcc, 16, v{vVA}
    s_nop 1
    v_cndmask_b32 v{vT2}, v{vT2}, v{vT3}, vcc
    v_cmp_gt_u32 vcc, 16, v{vT}
    s_nop 1
    v_cndmask_b32 v{vVA}, v{vT2}, v{vT1}, vcc
    v_add_u32 v{vVA}, 1024, v{vVA}
    s_mov_b32 s{sRETRY}, 0
    s_lshl_b32 s{sT0}, s{sCB}, 13
    s_lshr_b32 s{sT1}, s{sW}, 1
    s_lshl_b32 s{sT1}, s{sT1}, 12
    s_add_u32 s{sT0}, s{sT0}, s{sT1}
    s_and_b32 s{sT1}, s{sW}, 1
    s_lshl_b32 s{sT1}, s{sT1}, 10
    s_add_u32 s{sT0}, s{sT0}, s{sT1}
    s_add_u32 s{sT0}, s{sT0}, s{sHO}
    s_add_u32 s{sOO}, s{sT0}, {112*2048}
    s_lshl_b32 s{sT0}, s{sW}, 2
    v_add_u32 v{vAD}, s{sT0}, v{vC}
    v_mov_b32 v{vCK}, v{vC}
    s_mov_b32 s{sSTEP}, 4
    """)
    zero_state()
    g.wait_cnt(C_QD, 4)
    g("s_setprio 0")
    g.poll_flags(16, sIT, 8192, sleep=O("kvsleep", 1), issued=True)
    g("s_setprio 3")
    g.stamp(6)
    g(f"buffer_load_dwordx4 {vr(KF[0],4)}, v{vL16}, {srd(S_WS)}, 0 offen sc1")
    g.kv_dma(0, sW, 1)
    g(f"s_mov_b32 s{sT1}, {WS_KVF + 2048}")
    g.poll_issue(16, sT1, 8192)
    AB = O("abl", 0)
    def qk(S, K, Q, C): g(f"v_mfma_f32_32x32x16_bf16 {vr(S,16)}, {vr(K,4)}, {vr(Q,4)}, {C}")
    def pv(O_, V, P):
        if AB == 1: return
        if AB == 5: g(f"v_mfma_f32_32x32x16_bf16 {vr(O_,16)}, {vr(V,4)}, {vr(P,4)}, {vr(O_,16)}"); return
        g(f"v_smfmac_f32_32x32x32_bf16 {vr(O_,16)}, {vr(V,4)}, {vr(P,8)}, v{vIDX}")
    def max16(S, d):
        g(f"v_max3_f32 v{d}, v{S}, v{S+1}, v{S+2}")
        for i in range(3, 15, 2):
            g(f"v_max3_f32 v{d}, v{d}, v{S+i}, v{S+i+1}")
        g(f"v_max_f32 v{d}, v{d}, v{S+15}")
    def xhalf_max(d, t):
        g(f"""v_mov_b32 v{t}, v{d}
        s_nop 1
        v_permlane32_swap_b32 v{d}, v{t}
        s_nop 1
        v_max_f32 v{d}, v{d}, v{t}""")
    g.stamp(1)
    g("s_waitcnt vmcnt(4)")
    g.stamp(2)
    qk(SA[0], KF[0], QA, "0"); qk(SB[0], KF[0], QB, "0")
    g.nop(11)
    max16(SA[0], vT); max16(SB[0], vT1)
    xhalf_max(vT, vT2); xhalf_max(vT1, vT2)
    g(f"""v_add_f32 v{vT}, {f2u(FOFF):#x}, v{vT}
    v_add_f32 v{vT1}, {f2u(FOFF):#x}, v{vT1}
    L_ATT_START:
    v_sub_f32 v{CA}, 0, v{vT}
    v_sub_f32 v{CA+1}, 0, v{vT}
    v_sub_f32 v{CB_}, 0, v{vT1}
    v_sub_f32 v{CB_+1}, 0, v{vT1}""")
    for i in range(2, 16, 2):
        g(f"v_mov_b64 {vr(CA+i,2)}, {vr(CA,2)}")
    g(f"""s_mov_b32 s{sIT}, s{sRETRY}
    s_cmp_lg_u32 s{sRETRY}, 0""")
    qk(SA[0], KF[0], QA, vr(CA, 16))
    for i in range(2, 16, 2):
        g(f"v_mov_b64 {vr(CB_+i,2)}, {vr(CB_,2)}")
    g.nop(4)
    g("s_cbranch_scc1 L_ATT_GO")
    g.stamp(3)
    g("s_waitcnt vmcnt(0)")
    g.stamp(11)
    g.poll_flags(16, sT1, 8192, sleep=1, issued=True)
    g.arrive(C_H1)
    g.kv_dma(0, sW, 2)
    g.wait_cnt(C_H1, 4)
    g(f"""L_ATT_GO:
    s_setprio {O('aprio', 1)}""")
    g.stamp(7); g.stamp(12, True)
    g("""s_nop 1
    .p2align 6
    L_ATT:""")
    UN = 16
    def exps(S, lo, hi, first64=False):
        for i in range(lo, hi):
            if AB == 2: g(f"v_mul_f32{'_e64' if (first64 and i == lo) else ''} v{S+i}, 0, v{S+i}"); g(f"v_mul_f32 v{vT}, 0, v{vT}"); g("s_nop 0") if False else None; continue
            if AB == 3: g(f"v_exp_f32{'_e64' if (first64 and i == lo) else ''} v{192+i}, v{S+i}"); continue
            g(f"v_exp_f32{'_e64' if (first64 and i == lo) else ''} v{S+i}, v{S+i}")
    def side(it, fn):
        l = g.lab("SB"); r = g.lab("SR")
        g(f"""s_cmp_eq_u32 s{sIT}, {it}
        s_cbranch_scc1 {l}
        {r}:""")
        def blk():
            g(f"{l}:"); fn(); g(f"s_branch {r}")
        g.out_of_line(blk)
    def spin(v, off, target):
        l = g.lab("SB"); r = g.lab("SR")
        g(f"""s_cmp_lt_u32 s{sT2}, {target}
        s_cbranch_scc1 {l}
        {r}:""")
        def blk():
            g(f"{l}:"); g.wait_cnt(off, target, v=v); g(f"s_branch {r}")
        g.out_of_line(blk)
    CHK = {6: (vC, C_H1B, 4), UN - 2: (vCK, 0, 4)}
    for t in range(UN):
        p = t % 2
        qk(SB[p], KF[p], QB, vr(CB_, 16))
        if AB != 4:
            g(f"ds_read_b128 {vr(KF[1-p],4)}, v{vKA} offset:{(t+1)*REC}")
            g(f"ds_read_b128 {vr(VF[p],4)}, v{vVA} offset:{t*REC}")
            g(f"ds_read_b128 {vr(VF[p]+4,4)}, v{vVA} offset:{t*REC+544}")
        if t in CHK: g(f"ds_read_b32 v{vCV}, v{CHK[t][0]} offset:{CHK[t][1]}")
        exps(SA[p], 0, 4)
        pv(OB, VF[1-p], SB[1-p])
        exps(SA[p], 4, 10)
        pv(OB, VF[1-p] + 4, SB[1-p] + 8)
        g("s_waitcnt lgkmcnt(0)")
        exps(SA[p], 10, 16, True)
        qk(SA[1-p], KF[1-p], QA, vr(CA, 16))
        if t in CHK:
            g(f"v_readfirstlane_b32 s{sT2}, v{vCV}")
            exps(SB[p], 0, 4, True)
        else:
            exps(SB[p], 0, 4)
        pv(OA, VF[p], SA[p])
        if t == 3:
            g(f"""s_waitcnt vmcnt(0)
            s_mov_b64 exec, 1
            ds_add_u32 v{vC}, v{vONE} offset:{C_H1B}
            s_mov_b64 exec, -1
            s_nop 0""")
        if O("tp", 45) and t == O("tp", 45) % 16:
            g(f"""s_mov_b64 exec, 1
            s_nop 0
            ds_add_u32 v{vC}, v{vONE} offset:{C_PRG}
            s_mov_b64 exec, -1
            s_nop 0""")
        if t == UN - 1:
            g(f"v_add_u32_e64 v{vCK}, s{sSTEP}, v{vCK}")
        if t == UN - 1:
            g(f"""v_add_u32 v{vKA}, {UN*REC}, v{vKA}
            v_add_u32 v{vVA}, {UN*REC}, v{vVA}""")
        exps(SB[p], 4, 10)
        pv(OA, VF[p] + 4, SA[p] + 8)
        if debug and O("itstamp", 0):
            if t == 4: side(0, lambda: g.stamp(3, True))
            if t == 8: side(0, lambda: g.stamp(4, True))
            if t == 0: side(1, lambda: g.stamp(1, True)); side(2, lambda: g.stamp(2, True)); side(3, lambda: g.stamp(11, True))
        if debug and O("clkprobe", 0) and t % 4 == 0:
            g(f"""s_memtime s[60:61]
            s_memrealtime s[62:63]
            s_lshl_b32 s{sT0}, s{sIT}, 2
            s_add_u32 s{sT0}, s{sT0}, {t // 4}
            s_mov_b32 m0, s{sT0}
            s_waitcnt lgkmcnt(0)
            v_writelane_b32 v192, s60, m0
            v_writelane_b32 v193, s62, m0""")
        if t in CHK: spin(*CHK[t])
        if t == UN - 1:
            g(f"""s_add_u32 s{sIT}, s{sIT}, 1
            s_bitcmp0_b32 s{sIT}, 2""")
        exps(SB[p], 10, 16)
    g("s_cbranch_scc1 L_ATT")
    pv(OB, VF[1], SB[1]); pv(OB, VF[1] + 4, SB[1] + 8)
    g.stamp(8); g.stamp(13, True)
    g("s_setprio 3")
    g.arrive(C_AD0, v=vAD)
    def finish(O_, d, off, ok):
        g(f"v_fma_f32 v{vT}, v{O_}, 0, v{O_+8}")
        for i in range(1, 8):
            g(f"v_fma_f32 v{vT}, v{O_+i}, 0, v{vT}")
        g(f"""v_rcp_f32 v{vT3}, v{O_+8}
        v_cmp_nlt_f32 vcc, v{vT}, v{vT2}""")
        for i in range(8):
            g(f"v_mul_f32 v{O_+i}, v{O_+i}, v{vT3}")
        g(f"""s_cmp_lg_u64 vcc, 0
        {'s_nop 0' if AB else 's_cbranch_scc1 L_FB_' + ok}
        L_OK_{ok}:""")
        for i in range(4):
            g(f"v_cvt_pk_bf16_f32 v{d+i}, v{O_+2*i}, v{O_+2*i+1}")
        for i in range(4):
            g(f"v_min_u32 v{d+i}, -2, v{d+i}")
        g(f"buffer_store_dwordx4 {vr(d,4)}, v{vL16}, {srd(S_WS)}, s{sOO} offen offset:{off} sc1")
    g(f"v_mov_b32 v{vT2}, {f2u(2.0**110):#x}")
    finish(OA, 32, 0, "A")
    finish(OB, 36, 2048, "B")
    def fallback():
        g(f"""L_FB_A:
        s_cmp_lg_u32 s{sRETRY}, 0
        s_cbranch_scc1 L_OK_A
        s_branch L_FALLBACK
        L_FB_B:
        s_cmp_lg_u32 s{sRETRY}, 0
        s_cbranch_scc1 L_OK_B
        s_waitcnt vmcnt(0)
        L_FALLBACK:
        s_mov_b32 s{sRETRY}, 16
        v_mov_b32 v{vCK}, v{vC}
        s_mov_b32 s{sSTEP}, 0
        v_subrev_u32 v{vKA}, {64*REC}, v{vKA}
        v_subrev_u32 v{vVA}, {64*REC}, v{vVA}
        v_mov_b32 v{vT3}, v{vKA}
        v_mov_b32 v{vT}, 0xff800000
        v_mov_b32 v{vT1}, 0xff800000
        s_mov_b32 s{sIT}, 0
        L_MAXP:
        ds_read_b128 {vr(KF[0],4)}, v{vT3}
        v_add_u32 v{vT3}, {REC}, v{vT3}
        s_waitcnt lgkmcnt(0)""")
        qk(SA[0], KF[0], QA, "0"); qk(SB[0], KF[0], QB, "0")
        g.nop(12)
        for i in range(0, 16, 2):
            g(f"v_max3_f32 v{vT}, v{vT}, v{SA[0]+i}, v{SA[0]+i+1}")
        for i in range(0, 16, 2):
            g(f"v_max3_f32 v{vT1}, v{vT1}, v{SB[0]+i}, v{SB[0]+i+1}")
        g(f"""s_add_u32 s{sIT}, s{sIT}, 1
        s_cmp_lt_u32 s{sIT}, 64
        s_cbranch_scc1 L_MAXP
        ds_read_b128 {vr(KF[0],4)}, v{vKA}""")
        xhalf_max(vT, vT2); xhalf_max(vT1, vT2)
        zero_state()
        g(f"""s_waitcnt lgkmcnt(0)
        s_branch L_ATT_START""")
    g.out_of_line(fallback)
    g.arrive(C_ADONE)
    if debug and O("clkprobe", 0):
        g(f"""s_lshl_b32 s{sT0}, s2, 2
        s_add_u32 s{sT0}, s{sT0}, s{sW}
        s_lshl_b32 s{sT0}, s{sT0}, 9
        s_add_u32 s{sT0}, s{sT0}, {WS_DBG + 0x100000}
        v_lshlrev_b32 v30, 3, v{vLANE}
        buffer_store_dwordx2 v[192:193], v30, {srd(S_WS)}, s{sT0} offen""")
    g(f"buffer_load_dwordx4 {vr(vXR,4)}, v{vXO}, {srd(S_X)}, 0 offen")
    g.stamp(9)
    g("s_branch L_FINAL")


def gen(debug=False, opt=None):
    opt = opt or {}
    O = lambda k, d: opt.get(k, d)
    g = G(debug)
    prologue(g, O)
    layernorm(g, O)
    g_role(g, O)
    final(g, O, debug)
    a_role(g, O, debug)
    g.L += g.tail
    g("L_CODE_END:")
    ref = open(f"cdna_kernels/{NAME}.s.ref").read().split("\n")
    hdr = [l for l in ref if l.startswith(";") and "@launch" not in l]
    out = hdr + [f"; @launch grid=(256,1,1) block=(512,1,1) lds={LDS_BYTES}",
                 '.amdgcn_target "amdgcn-amd-amdhsa--gfx950"', ".text", f".globl {NAME}_kernel", ".p2align 8",
                 f".type {NAME}_kernel,@function", f"{NAME}_kernel:"] + g.L + [
        '.section .rodata,"a"', ".p2align 6", f".amdhsa_kernel {NAME}_kernel",
        "  .amdhsa_next_free_vgpr 256", "  .amdhsa_next_free_sgpr 102", "  .amdhsa_accum_offset 256",
        "  .amdhsa_group_segment_fixed_size 0", "  .amdhsa_kernarg_size 88", "  .amdhsa_user_sgpr_count 2",
        "  .amdhsa_user_sgpr_kernarg_segment_ptr 1", "  .amdhsa_system_sgpr_workgroup_id_x 1", ".end_amdhsa_kernel", ""]
    return "\n".join(out)


if __name__ == "__main__":
    ap = argparse.ArgumentParser()
    ap.add_argument("-o", default=f"cdna_kernels/{NAME}.s")
    ap.add_argument("--debug", action="store_true")
    ap.add_argument("opts", nargs="*")
    a = ap.parse_args()
    opt = {k: int(v) for k, v in (o.split("=") for o in a.opts)}
    open(a.o, "w").write(gen(a.debug, opt))
```

```python
import sys, argparse, struct

NAME = "parallel_sum__grouped_kv_mqa__dense_activation_relu__prompt"

REC = 2112
HALF = 32 * REC
R1, R2, R3 = 0, HALF, 2 * HALF
RING = 6144
CNT = R3 + 4 * RING
(C_H1C, C_H2, C_RST, C_H1B, C_KVDONE, C_KVST, C_QD, C_H1, C_G1, C_WQ, C_ADONE, C_PUB, C_XN, C_WQ2,
 C_PRG, C_AD0) = range(0, 64, 4)
LDS_BYTES = 163840
XP = 1040
PP = 272
PIMG = 64 * PP
WS_KV = 0
WS_KVF = 0x40000
WS_HO = 0x80000
HO_RB = 144 * 2048
WS_DBG = 0xA00000
WS_HF = 0xC00000
WS_BYTES = 0x1000000
QSCALE = 0.25 * 1.4426950408889634
SPIN = 1 << 15
NREP = 16

def f2u(x): return struct.unpack("<I", struct.pack("<f", x))[0]

S_X, S_OUT, S_WS, S_WO, S_W2, S_WQ, S_WKV, S_W1, S_DBG = 4, 8, 12, 16, 20, 24, 28, 32, 36
POLL = 24
sKVO = 3
sW, sRB, sCB = 40, 41, 42
sT0, sT1, sT2, sRG = 43, 44, 45, 46
sSPIN, sSO, sSTEP, sIT, sHO, sFL, sRETRY = 47, 48, 49, 50, 51, 52, 53
sM = 54
sJ, sMT = 56, 57
sOO = 59
sSTAMP = 64
sIDX, sPR = 96, 97
sTM = 98
sN = 100

vLANE, vC, vONE, vT, vT1, vT2, vT3 = 1, 2, 3, 4, 5, 6, 7
vL16 = 8
vDA, vDB = 9, 10
vXF, vWF = 11, 12
vXO = 13
vN, vZ = 14, 15
vXR = 16
vROW, vCOL, vC16, vTR, vHB = 20, 21, 22, 23, 24
vDUM = 210

def srd(b): return f"s[{b}:{b+3}]"
def vr(b, n=1): return f"v{b}" if n == 1 else f"v[{b}:{b+n-1}]"


class G:
    def __init__(self, debug):
        self.L = []
        self.tail = []
        self.debug = debug
        self.nlab = 0

    def __call__(self, s):
        for line in s.split("\n"):
            line = line.strip()
            if line:
                self.L.append(line if line.endswith(":") else "    " + line)

    def lab(self, p="L"):
        self.nlab += 1
        return f"{p}_{self.nlab}"

    def stamp(self, i, cyc=False):
        if self.debug:
            self(f"{'s_memtime' if cyc else 's_memrealtime'} s[{sSTAMP+2*i}:{sSTAMP+2*i+1}]")

    def nop(self, n):
        while n > 0:
            k = min(n, 16)
            self(f"s_nop {k-1}")
            n -= k

    def out_of_line(self, fn):
        main = self.L; self.L = self.tail
        fn()
        self.L = main

    def arrive(self, c, v=vC):
        self(f"""s_mov_b64 exec, 1
        ds_add_u32 v{v}, v{vONE} offset:{c}
        s_mov_b64 exec, -1""")

    def wait_cnt(self, c, target, sleep=0, v=vC):
        l = self.lab("WC"); d = self.lab("WD")
        self(f"""s_mov_b32 s{sSPIN}, {SPIN}
        {l}:
        ds_read_b32 v{vT}, v{v} offset:{c}
        s_waitcnt lgkmcnt(0)
        v_readfirstlane_b32 s{sT0}, v{vT}
        s_sub_u32 s{sSPIN}, s{sSPIN}, 1
        s_cbranch_scc1 {d}
        s_cmp_ge_u32 s{sT0}, {target}
        s_cbranch_scc1 {d}""")
        if sleep: self(f"s_sleep {sleep}")
        self(f"""s_branch {l}
        {d}:""")

    def poll_issue(self, n, soff, stride):
        for i in range(n):
            self(f"s_buffer_load_dword s{POLL+i}, {srd(S_WS)}, s{soff} offset:{128*i}")
        self(f"s_add_u32 s{soff}, s{soff}, {stride}")

    def poll_flags(self, n, soff, stride, sleep=1, issued=False):
        l = self.lab("PF"); d = self.lab("PD"); v = self.lab("PV"); c = self.lab("PC")
        self(f"s_mov_b32 s{sSPIN}, {NREP-2}")
        if issued: self(f"s_branch {c}")
        self(f"{l}:")
        self.poll_issue(n, soff, stride)
        self(f"""{c}:
        s_waitcnt lgkmcnt(0)
        s_xor_b64 s[{sM}:{sM+1}], s[{POLL}:{POLL+1}], s[{sN}:{sN+1}]""")
        for p in range(POLL + 2, POLL + n, 2):
            self(f"""s_xor_b64 s[{p}:{p+1}], s[{p}:{p+1}], s[{sN}:{sN+1}]
            s_or_b64 s[{sM}:{sM+1}], s[{sM}:{sM+1}], s[{p}:{p+1}]""")
        self(f"s_cbranch_scc0 {d}")
        if sleep: self(f"s_sleep {sleep}")
        self(f"""s_sub_u32 s{sSPIN}, s{sSPIN}, 1
        s_cbranch_scc0 {l}
        v_min_u32 v{vT1}, {n-1}, v{vLANE}
        v_lshlrev_b32 v{vT1}, 7, v{vT1}
        s_mov_b32 s{sSPIN}, {SPIN}
        {v}:
        buffer_load_dword v{vT}, v{vT1}, {srd(S_WS)}, s{soff} offen sc1
        s_waitcnt vmcnt(0)
        v_cmp_eq_u32 vcc, s{sN}, v{vT}
        s_sub_u32 s{sSPIN}, s{sSPIN}, 1
        s_cbranch_scc1 {d}
        s_cmp_eq_u64 vcc, -1
        s_cbranch_scc1 {d}
        s_sleep 4
        s_branch {v}
        {d}:""")

    def publish(self, soff, shift):
        self(f"""v_lshlrev_b32 v{vT}, {shift}, v{vLANE}
        s_mov_b64 exec, {(1 << NREP) - 1}
        buffer_store_dword v{vN}, v{vT}, {srd(S_WS)}, s{soff} offen sc1
        s_mov_b64 exec, -1""")

    def load_nonce(self):
        self(f"buffer_load_dword v{vN}, v{vZ}, {srd(S_DBG)}, 0 offen sc1")

    def get_nonce(self):
        l = self.lab("GN"); d = self.lab("GD")
        self(f"""s_mov_b32 s{sSPIN}, {SPIN}
        {l}:
        v_readfirstlane_b32 s{sN}, v{vN}
        s_sub_u32 s{sSPIN}, s{sSPIN}, 1
        s_cbranch_scc1 {d}
        s_cmp_lg_u32 s{sN}, 0
        s_cbranch_scc1 {d}""")
        self.load_nonce()
        self(f"""s_waitcnt vmcnt(0)
        s_branch {l}
        {d}:
        s_mov_b32 s{sN+1}, s{sN}""")

    def fill(self, slot, sb):
        self(f"""s_add_u32 m0, s{sRG}, {slot*2048}
        s_nop 0
        buffer_load_dwordx4 v{vDA}, {srd(sb)}, s{sSO} offen lds
        buffer_load_dwordx4 v{vDB}, {srd(sb)}, s{sSO} offen offset:1024 lds
        s_add_u32 s{sSO}, s{sSO}, s{sSTEP}""")

    def kv_dma(self, q, sidx, part=3):
        base = q * 16 * REC + (16384 if part == 2 else 0)
        self(f"""s_lshl_b32 s{sT0}, s{sidx}, 12
        s_add_u32 s{sSO}, s{sT0}, {WS_KV + base}
        s_add_u32 m0, s{sT0}, {base}""")
        for gi in range(2 if part == 3 else 1):
            self("s_nop 0")
            for i in range(4):
                self(f"buffer_load_dwordx4 v{vL16}, {srd(S_WS)}, s{sSO} offen offset:{i*1024} sc1 lds")
            if part == 1: return
            self(f"""s_add_u32 s{sSO}, s{sSO}, 16384
            s_add_u32 m0, m0, 16384""")
        l = self.lab("KD")
        self(f"""s_cmp_lg_u32 s{sidx}, 0
        s_cbranch_scc1 {l}
        buffer_load_dwordx4 v{vL16}, {srd(S_WS)}, s{sSO} offen sc1 lds
        {l}:""")

    def mf(self, D, A, B, first=False):
        self(f"v_mfma_f32_32x32x16_bf16 {vr(D,16)}, {vr(A,4)}, {vr(B,4)}, {'0' if first else vr(D,16)}")


XR = 32
def prologue(g, O):
    g(f"""
    s_cmp_ge_u32 s2, 256
    s_cbranch_scc1 L_END
    s_load_dwordx2 s[{S_X}:{S_X+1}], s[0:1], 0
    s_load_dwordx2 s[{S_WQ}:{S_WQ+1}], s[0:1], 8
    s_load_dwordx4 s[60:63], s[0:1], 16
    s_load_dwordx2 s[{S_WO}:{S_WO+1}], s[0:1], 32
    s_load_dwordx2 s[{S_W1}:{S_W1+1}], s[0:1], 48
    s_load_dwordx2 s[{S_W2}:{S_W2+1}], s[0:1], 56
    s_load_dwordx2 s[{S_OUT}:{S_OUT+1}], s[0:1], 64
    s_load_dwordx2 s[{S_DBG}:{S_DBG+1}], s[0:1], 72
    s_load_dwordx2 s[{S_WS}:{S_WS+1}], s[0:1], 80
    s_memrealtime s[{sTM}:{sTM+1}]
    """)
    g.stamp(0)
    g(f"""
    v_lshrrev_b32 v{vT}, 6, v0
    v_and_b32 v{vLANE}, 63, v0
    s_lshr_b32 s{sIDX}, s2, 3
    v_readfirstlane_b32 s{sW}, v{vT}
    """)
    g(f"""
    s_lshr_b32 s{sPR}, s{sIDX}, 3
    s_and_b32 s{sT0}, s2, 1
    s_lshl_b32 s{sT0}, s{sT0}, 2
    s_add_u32 s{sCB}, s{sT0}, s{sPR}
    s_and_b32 s{sT0}, s2, 6
    s_lshl_b32 s{sT0}, s{sT0}, 2
    s_and_b32 s{sRB}, s{sIDX}, 7
    s_add_u32 s{sRB}, s{sRB}, s{sT0}
    s_mov_b32 s{S_X+2}, 2097152
    s_mov_b32 s{S_X+3}, 0x20000
    v_lshrrev_b32 v{vT}, 3, v{vLANE}
    v_and_b32 v{vT1}, 7, v{vLANE}
    v_lshlrev_b32 v{vT2}, 10, v{vT}
    v_lshl_or_b32 v{vT2}, v{vT1}, 4, v{vT2}
    s_and_b32 s{sT2}, s{sPR}, 1
    s_lshl_b32 s{sT2}, s{sT2}, 2
    s_xor_b32 s{sSTEP}, s{sW}, s{sT2}
    s_lshl_b32 s{sT0}, s{sRB}, 16
    s_lshl_b32 s{sT1}, s{sSTEP}, 13
    s_add_u32 s{sT1}, s{sT0}, s{sT1}
    s_mov_b32 s{S_DBG+2}, 256
    s_mov_b32 s{S_DBG+3}, 0x20000
    v_mov_b32 v{vZ}, 0
    v_lshlrev_b32 v{vL16}, 4, v{vLANE}
    s_sub_u32 s{sJ}, s{sW}, 4
    s_mov_b32 s{S_WKV+2}, 16384
    s_mov_b32 s{S_WKV+3}, 0x20000
    v_lshlrev_b32 v28, 7, v{vLANE}
    v_mov_b32 v{vC}, {CNT}
    v_mov_b32 v{vONE}, 1
    v_lshl_add_u32 v29, v{vLANE}, 2, v{vC}
    ds_write_b32 v29, v{vZ}
    s_cmp_lt_u32 s{sCB}, 4
    s_waitcnt lgkmcnt(0)
    s_barrier
    s_cselect_b32 s{S_WKV}, s60, s62
    s_cselect_b32 s{S_WKV+1}, s61, s63
    s_cmp_lg_u32 s{sPR}, 1
    s_cbranch_scc1 L_PFE
    s_cmp_lg_u32 s{sW}, 0
    s_cbranch_scc1 L_PFE
    s_and_b32 s{sT2}, s{sIDX}, 7
    s_lshl_b32 s{sT2}, s{sT2}, 11
    s_mov_b64 exec, 0xffff
    buffer_load_dword v{vDUM}, v28, {srd(S_WKV)}, s{sT2} offen
    s_mov_b64 exec, -1
    L_PFE:
    s_or_b32 s{sT0}, s2, s{sW}
    s_cmp_lg_u32 s{sT0}, 0
    s_cbranch_scc1 L_NN
    s_or_b32 s{sT0}, s{sTM}, 1
    v_mov_b32 v{vN}, s{sT0}
    s_mov_b64 exec, 1
    buffer_store_dword v{vN}, v{vZ}, {srd(S_DBG)}, 0 offen sc1
    s_mov_b64 exec, -1
    L_NN:""")
    for i in range(8):
        g(f"buffer_load_dwordx4 {vr(XR+4*i,4)}, v{vT2}, {srd(S_X)}, s{sT1} offen offset:{i*128}")
    g.stamp(1)
    g(f"""
    s_cmp_lt_u32 s{sW}, 4
    s_cbranch_scc1 L_NKV
    s_cmp_lg_u32 s{sPR}, 0
    s_cbranch_scc1 L_NKV
    s_mul_i32 s{sT1}, s{sJ}, 4224
    s_add_u32 m0, s{sT1}, {R3}
    s_lshl_b32 s{sT0}, s{sJ}, 12""")
    for i in range(4):
        g(f"buffer_load_dwordx4 v{vL16}, {srd(S_WKV)}, s{sT0} offen offset:{i*1024} lds")
    g(f"""
    L_NKV:
    s_mov_b32 s{S_WQ+2}, 524288
    s_mov_b32 s{S_WQ+3}, 0x20000
    s_mov_b32 s{S_WO+2}, 524288
    s_mov_b32 s{S_WO+3}, 0x20000
    s_mov_b32 s{S_W1+2}, 1835008
    s_mov_b32 s{S_W1+3}, 0x20000
    s_mov_b32 s{S_W2+2}, 1835008
    s_mov_b32 s{S_W2+3}, 0x20000
    s_mov_b32 s{S_OUT+2}, 2097152
    s_mov_b32 s{S_OUT+3}, 0x20000
    s_mov_b32 s{S_WS+2}, {WS_BYTES}
    s_mov_b32 s{S_WS+3}, 0x20000
    v_lshrrev_b32 v{vHB}, 5, v{vLANE}
    v_bfe_u32 v{vTR}, v{vLANE}, 2, 2
    v_lshl_add_u32 v{vROW}, v{vHB}, 2, v{vTR}
    v_bfe_u32 v25, v{vLANE}, 4, 1
    v_and_b32 v26, 3, v{vLANE}
    v_lshlrev_b32 v{vC16}, 4, v26
    v_lshl_add_u32 v{vCOL}, v25, 6, v{vC16}
    s_mul_i32 s{sT1}, s{sSTEP}, {8*XP}
    s_add_u32 s{sT1}, s{sT1}, {R2}
    v_mul_u32_u24 v{vT3}, {XP}, v{vT}
    v_lshl_add_u32 v{vT3}, v{vT1}, 4, v{vT3}
    v_add_u32 v{vT3}, s{sT1}, v{vT3}
    s_mul_i32 s{sHO}, s{sRB}, {HO_RB}
    s_add_u32 s{sHO}, s{sHO}, {WS_HO}
    s_lshl_b32 s{sFL}, s{sRB}, 16
    s_add_u32 s{sFL}, s{sFL}, {WS_HF}
    v_lshrrev_b32 v{vXO}, 3, v0
    v_lshlrev_b32 v{vXO}, 10, v{vXO}
    v_lshl_or_b32 v{vXO}, v{vT1}, 4, v{vXO}
    s_lshl_b32 s{sT1}, s{sRB}, 16
    s_lshl_b32 s{sT2}, s{sCB}, 7
    s_add_u32 s{sT1}, s{sT1}, s{sT2}
    v_add_u32 v{vXO}, s{sT1}, v{vXO}
    v_lshlrev_b32 v{vTR}, 6, v{vTR}
    v_lshl_add_u32 v{vTR}, v25, 5, v{vTR}
    v_lshl_add_u32 v{vTR}, v26, 3, v{vTR}
    v_mov_b32 v138, 0
    v_mov_b32 v139, 0
    v_lshrrev_b32 v27, 4, v{vLANE}
    v_and_b32 v28, 15, v{vLANE}
    v_min_u32 v28, 13, v28
    v_lshlrev_b32 v28, 7, v28
    s_mov_b32 s{sT1}, 3584
    v_mad_u32_u24 v27, v27, s{sT1}, v28
    s_sub_u32 s{sT0}, s{sIDX}, 8
    s_lshl_b32 s{sT0}, s{sT0}, 2
    s_and_b32 s{sT2}, s{sW}, 3
    s_add_u32 s{sT0}, s{sT0}, s{sT2}
    s_mul_i32 s{sT0}, s{sT0}, {4*3584}
    s_lshr_b32 s{sT1}, s{sCB}, 2
    s_mul_i32 s{sT1}, s{sT1}, 1792
    s_add_u32 s{sT0}, s{sT0}, s{sT1}
    v_add_u32 v27, s{sT0}, v27
    s_cmp_ge_u32 s{sW}, 4
    s_cbranch_scc1 L_G_ADDR
    v_lshl_add_u32 v{vDA}, v{vROW}, 10, v{vCOL}
    v_add_u32 v{vDB}, {8*1024-1024}, v{vDA}
    s_lshl_b32 s{sSO}, s{sW}, 16
    s_lshl_b32 s{sT0}, s{sCB}, 7
    s_add_u32 s{sSO}, s{sSO}, s{sT0}
    s_branch L_LN
    L_G_ADDR:
    s_lshr_b32 s{sT1}, s{sCB}, 2
    s_mul_i32 s{sMT}, s{sT1}, 28
    s_lshl_b32 s{sT0}, s{sPR}, 2
    s_add_u32 s{sT0}, s{sT0}, s{sJ}
    s_lshl_b32 s{sT0}, s{sT0}, 1
    s_sub_u32 s{sT0}, s{sT0}, 4
    s_cmp_eq_u32 s{sPR}, 0
    s_cselect_b32 s{sT0}, s{sJ}, s{sT0}
    s_add_u32 s{sMT}, s{sMT}, s{sT0}
    s_lshl_b32 s{sSO}, s{sMT}, 6
    s_mov_b32 s{sT1}, 3584
    v_mad_u32_u24 v{vDA}, v{vROW}, s{sT1}, v{vCOL}
    v_add_u32 v{vDB}, {8*3584-1024}, v{vDA}
    s_mov_b32 s{sSTEP}, {16*3584}
    s_mul_i32 s{sRG}, s{sJ}, {RING}
    s_add_u32 s{sRG}, s{sRG}, {R3}
    s_cmp_lg_u32 s{sPR}, 0
    s_cbranch_scc1 L_G_EARLY
    v_lshrrev_b32 v28, 2, v{vLANE}
    v_mad_u32_u24 v{vDA}, v28, s{sT1}, v{vC16}
    v_add_u32 v{vDB}, {16*3584-1024}, v{vDA}
    s_mov_b32 s{sSTEP}, {32*3584}
    v_and_b32 v142, 15, v{vLANE}
    v_lshrrev_b32 v143, 4, v{vLANE}
    s_mul_i32 s{sT0}, s{sJ}, {16*XP}
    s_add_u32 s{sT0}, s{sT0}, {R2}
    v_mul_u32_u24 v136, {XP}, v142
    v_lshl_add_u32 v136, v143, 8, v136
    v_add_u32 v136, s{sT0}, v136
    v_mul_u32_u24 v137, 4224, v143
    v_lshl_add_u32 v137, v142, 3, v137
    v_add_u32 v137, {R3}, v137
    ; K: ((g&1)*32 + 16*(j&1) + (l&15))*16 + (g>>1)*8 ; V: 1024 + (j&1)*544 + (g>>1)*256 + d*16 + (g&1)*8
    v_and_b32 v140, 1, v143
    v_lshrrev_b32 v141, 1, v143
    v_lshlrev_b32 v142, 4, v142
    v_lshl_add_u32 v138, v140, 9, v142
    v_lshl_add_u32 v138, v141, 3, v138
    v_lshl_add_u32 v139, v141, 8, v142
    v_lshl_add_u32 v139, v140, 3, v139
    s_lshl_b32 s{sT0}, s{sRB}, 1
    s_lshr_b32 s{sT1}, s{sJ}, 1
    s_add_u32 s{sT0}, s{sT0}, s{sT1}
    s_mul_i32 s{sKVO}, s{sT0}, {REC}
    s_and_b32 s{sT1}, s{sJ}, 1
    s_lshl_b32 s{sT0}, s{sT1}, 8
    s_mul_i32 s{sT1}, s{sT1}, 544
    s_add_u32 s{sT1}, s{sT1}, 1024
    s_cmp_eq_u32 s{sCB}, 0
    s_cselect_b32 s{sT0}, s{sT0}, s{sT1}
    s_cselect_b64 vcc, -1, 0
    s_add_u32 s{sKVO}, s{sKVO}, s{sT0}
    v_cndmask_b32 v138, v139, v138, vcc
    v_lshlrev_b32 v139, 3, v{vLANE}
    v_mov_b32 v140, 0x3f803f80
    v_cmp_gt_u32 vcc, 2, v{vLANE}
    s_nop 1
    v_cndmask_b32 v140, 0, v140, vcc
    v_mov_b32 v141, v140
    """)


def pf_w1(g):
    g(f"""s_mov_b32 s{sT0}, {384*3584}
    buffer_load_dword v{vDUM}, v27, {srd(S_W1)}, 0 offen
    buffer_load_dword v{vDUM}, v27, {srd(S_W1)}, s{sT0} offen""")


def wq_dma(g):
    g(f"""s_lshl_b32 s{sT0}, s{sW}, 13
    s_add_u32 m0, s{sT0}, {R1}""")
    for i in range(8):
        g(f"""s_nop 0
        buffer_load_dwordx4 v{vDA}, {srd(S_WQ)}, s{sSO} offen lds
        buffer_load_dwordx4 v{vDB}, {srd(S_WQ)}, s{sSO} offen offset:1024 lds""")
        if i < 7:
            k = 13 if i == 3 else 1
            g(f"s_add_u32 s{sSO}, s{sSO}, {16384*k}")
            g(f"s_add_u32 m0, m0, {2048*k}")


def layernorm(g, O):
    F = 64
    def stats(after, nonce):
        for i in range(8):
            g(f"s_waitcnt vmcnt({after + 7 - i})")
            if i == 7:
                g.stamp(2)
                if nonce:
                    g(f"""s_cmp_ge_u32 s{sW}, 4
                    s_cbranch_scc1 L_NNL""")
                    g.load_nonce()
                    g("L_NNL:")
            for d in range(4):
                r = XR + 4 * i + d; f = F + 8 * i + 2 * d
                g(f"v_lshlrev_b32 v{f}, 16, v{r}")
                g(f"v_and_b32 v{f+1}, 0xffff0000, v{r}")
            for d in range(4):
                f = F + 8 * i + 2 * d
                a = 128 + 2 * (d % 2); q = 132 + 2 * (d % 2)
                if i == 0 and d < 2:
                    g(f"v_pk_mul_f32 {vr(q,2)}, {vr(f,2)}, {vr(f,2)}")
                    g(f"v_mov_b64 {vr(a,2)}, {vr(f,2)}")
                else:
                    g(f"v_pk_add_f32 {vr(a,2)}, {vr(a,2)}, {vr(f,2)}")
                    g(f"v_pk_fma_f32 {vr(q,2)}, {vr(f,2)}, {vr(f,2)}, {vr(q,2)}")
    def early():
        g("L_G_EARLY:")
        for s_ in range(3): g.fill(s_, S_W1)
        stats(6, False)
        g("s_branch L_LN2")
    g.out_of_line(early)
    g("L_LN:")
    stats(0, True)
    g(f"""L_LN2:
    v_pk_add_f32 v[128:129], v[128:129], v[130:131]
    v_pk_add_f32 v[132:133], v[132:133], v[134:135]
    v_add_f32 v128, v128, v129
    v_add_f32 v132, v132, v133
    s_nop 1
    v_add_f32_dpp v128, v128, v128 quad_perm:[1,0,3,2] row_mask:0xf bank_mask:0xf
    v_add_f32_dpp v132, v132, v132 quad_perm:[1,0,3,2] row_mask:0xf bank_mask:0xf
    s_nop 1
    v_add_f32_dpp v128, v128, v128 quad_perm:[2,3,0,1] row_mask:0xf bank_mask:0xf
    v_add_f32_dpp v132, v132, v132 quad_perm:[2,3,0,1] row_mask:0xf bank_mask:0xf
    s_nop 1
    v_add_f32_dpp v128, v128, v128 row_half_mirror row_mask:0xf bank_mask:0xf
    v_add_f32_dpp v132, v132, v132 row_half_mirror row_mask:0xf bank_mask:0xf
    v_mul_f32 v128, {f2u(1.0/512):#x}, v128      ; mean
    v_mul_f32 v132, {f2u(1.0/512):#x}, v132      ; E[x^2]
    v_fma_f32 v132, -v128, v128, v132            ; var
    v_max_f32 v132, 0, v132
    v_add_f32 v132, {f2u(1e-5):#x}, v132
    v_rsq_f32 v132, v132
    s_nop 0
    v_mul_f32_e64 v128, -v128, v132              ; -mean*rstd
    """)
    for i in range(8):
        for d in range(4):
            f = F + 8 * i + 2 * d
            g(f"v_pk_fma_f32 {vr(f,2)}, {vr(f,2)}, v[132:133], v[128:129] op_sel_hi:[1,0,0]")
        for d in range(4):
            f = F + 8 * i + 2 * d
            g(f"v_cvt_pk_bf16_f32 v{XR+4*i+d}, v{f}, v{f+1}")
        g(f"ds_write_b128 v{vT3}, {vr(XR+4*i,4)} offset:{i*128}")
    g("s_waitcnt lgkmcnt(0)")
    g.arrive(C_XN)
    g.stamp(3)


ACC = 128
def g_role(g, O):
    g(f"""s_cmp_lt_u32 s{sW}, 4
    s_cbranch_scc1 L_A_PRE
    s_cmp_lg_u32 s{sPR}, 0
    s_cbranch_scc1 L_G_NP
    s_setprio 3""")
    g.wait_cnt(C_XN, 8)
    g.stamp(4)
    def kv_chain(isK):
        FB = 32; NS = 5
        def rd(ks):
            b = FB + 8 * (ks % NS)
            g(f"ds_read_b128 {vr(b,4)}, v136 offset:{ks*16}")
            g(f"ds_read_b64_tr_b16 {vr(b+4,2)}, v137 offset:{ks*256}")
            g(f"ds_read_b64_tr_b16 {vr(b+6,2)}, v137 offset:{ks*256+128}")
        for ks in range(4): rd(ks)
        for ks in range(16):
            b = FB + 8 * (ks % NS)
            g(f"s_waitcnt lgkmcnt({min(9, 3*(15-ks))})")
            c = "0" if ks == 0 else vr(ACC, 4)
            if isK: g(f"v_mfma_f32_16x16x32_bf16 {vr(ACC,4)}, {vr(b+4,4)}, {vr(b,4)}, {c}")
            else:   g(f"v_mfma_f32_16x16x32_bf16 {vr(ACC,4)}, {vr(b,4)}, {vr(b+4,4)}, {c}")
            if ks + 4 < 16: rd(ks + 4)
    g(f"""s_cmp_lg_u32 s{sCB}, 0
    s_cbranch_scc1 L_V""")
    kv_chain(True)
    g("""s_nop 1
    s_branch L_KVS
    L_V:""")
    kv_chain(False)
    g(f"""s_mov_b64 exec, 0xf
    buffer_store_dwordx2 v[140:141], v139, {srd(S_WS)}, s{sKVO} offen offset:512 sc1
    s_mov_b64 exec, -1
    L_KVS:
    s_nop 5
    v_cvt_pk_bf16_f32 v132, v128, v129
    v_cvt_pk_bf16_f32 v133, v130, v131
    buffer_store_dwordx2 v[132:133], v138, {srd(S_WS)}, s{sKVO} offen sc1""")
    g.load_nonce()
    g.arrive(C_KVDONE)
    g.stamp(11)
    g(f"""s_lshl_b32 s{sT1}, s{sRB}, 8
    s_lshl_b32 s{sT2}, s{sCB}, 5
    s_add_u32 s{sT1}, s{sT1}, s{sT2}
    s_add_u32 s{sT1}, s{sT1}, {WS_KVF}
    s_waitcnt vmcnt(0)
    s_mov_b64 exec, 1
    ds_add_rtn_u32 v{vT}, v{vC}, v{vONE} offset:{C_KVST}
    s_mov_b64 exec, -1""")
    g.get_nonce()
    g(f"""s_waitcnt lgkmcnt(0)
    v_readfirstlane_b32 s{sT0}, v{vT}
    s_nop 3
    s_cmp_lg_u32 s{sT0}, 3
    s_cbranch_scc1 L_G_NF""")
    g.publish(sT1, 13)
    g.arrive(C_PUB)
    g("L_G_NF:")
    g.stamp(10)
    g.wait_cnt(C_PUB, 1)
    for s_ in range(3): g.fill(s_, S_W1)
    g(f"""L_G_NP:
    s_setprio 2""")
    g.load_nonce()
    g.wait_cnt(C_XN, 8)
    def probe(k):
        if O("probe", 0):
            g(f"""s_memrealtime s[60:61]
            s_waitcnt lgkmcnt(0)
            v_writelane_b32 v31, s60, {k}""")
    def reset_o():
        g(f"""v_mov_b64 v[120:121], -1
        v_mov_b64 v[122:123], -1
        s_lshl_b32 s{sT0}, s{sCB}, 13
        s_lshr_b32 s60, s{sJ}, 1
        s_lshl_b32 s60, s60, 12
        s_add_u32 s{sT0}, s{sT0}, s60
        s_and_b32 s60, s{sJ}, 1
        s_lshl_b32 s60, s60, 10
        s_add_u32 s{sT0}, s{sT0}, s60
        s_add_u32 s{sT0}, s{sT0}, s{sHO}
        s_add_u32 s{sT0}, s{sT0}, {112*2048}
        buffer_store_dwordx4 v[120:123], v{vL16}, {srd(S_WS)}, s{sT0} offen sc1
        buffer_store_dwordx4 v[120:123], v{vL16}, {srd(S_WS)}, s{sT0} offen offset:2048 sc1""")
    def gemm1(n, rd, mfs, nrd, kq):
        order = [("w", 0)] * 2 + [("w", 1)] * 2 + [("w", 2)] * 2 + [("n", 0)]
        def wait_for(k):
            last = max(i for i, t in enumerate(order) if t == ("w", k))
            g(f"s_waitcnt vmcnt({len(order) - 1 - last})")
        for k in range(2):
            wait_for(k)
            for r in rd(k): r()
        g(f"s_waitcnt lgkmcnt({nrd})")
        for k in range(n):
            m = [(lambda f=f: (g("s_setprio 0"), f(), g("s_setprio 2"))) for f in mfs(k)]
            m[0]()
            if k == kq:
                g.wait_cnt(C_H1, 4, sleep=1)
                g(f"s_mov_b32 s{sIT}, s{sSO}")
                g.kv_dma(1, sJ)
                g(f"s_mov_b32 s{sSO}, s{sIT}")
                reset_o()
                order.extend([("q", 0)] * 10)
            if k + 3 < n:
                g.fill(k % 3, S_W1); order.extend([("w", k + 3)] * 2)
            m[1]()
            if k + 2 < n:
                wait_for(k + 2)
                if k + 2 == kq + 3: g.arrive(C_H1C)
                r = rd(k + 2)
                r[0]()
            m[2]()
            if k + 2 < n: r[1]()
            m[3]()
            if k + 1 < n:
                g(f"s_waitcnt lgkmcnt({nrd if k + 2 < n else 0})")
                probe(k)
            if k + 2 == n:
                g.arrive(C_G1)
                g(f"""s_lshl_b32 s{sIT}, s{sJ}, 10
                s_add_u32 s{sIT}, s{sIT}, {WS_KVF + 4096}""")
                g.poll_issue(8, sIT, 8192)
    def h_cvt(mt):
        for nt in range(2):
            a = ACC + 32*mt + 16*nt; o = 64 + 8 * (2*mt + nt)
            for i in range(8):
                g(f"v_cvt_pk_bf16_f32 v{o+i}, v{a+2*i}, v{a+2*i+1}")
            for i in range(8):
                g(f"v_pk_max_i16 v{o+i}, v{o+i}, 0")
    def h_store(mt, sM_):
        for nt in range(2):
            o = 64 + 8 * (2*mt + nt)
            g(f"buffer_store_dwordx4 {vr(o,4)}, v{vL16}, {srd(S_WS)}, s{sM_} offen offset:{nt*1024} sc1")
            g(f"buffer_store_dwordx4 {vr(o+4,4)}, v{vL16}, {srd(S_WS)}, s{sM_} offen offset:{2048+nt*1024} sc1")
    g(f"""
    v_and_b32 v25, 31, v{vLANE}
    v_mul_u32_u24 v{vXF}, {XP}, v25
    v_lshl_add_u32 v{vXF}, v{vHB}, 4, v{vXF}
    v_add_u32 v{vXF}, {R2}, v{vXF}
    s_cmp_eq_u32 s{sPR}, 0
    s_cbranch_scc1 L_G1_N
    v_lshl_add_u32 v{vWF}, v{vHB}, 10, v{vTR}
    v_add_u32 v{vWF}, s{sRG}, v{vWF}
    """)
    FS = [32, 48, 64]
    def rd_w(ks):
        b = FS[ks % 3]; va = vWF; sl = (ks % 3) * 2048
        def r0():
            g(f"ds_read_b128 {vr(b,4)}, v{vXF} offset:{ks*32}")
            g(f"ds_read_b128 {vr(b+4,4)}, v{vXF} offset:{32*XP+ks*32}")
        def r1():
            for mt in range(2):
                for i in range(2):
                    g(f"ds_read_b64_tr_b16 {vr(b+8+4*mt+2*i,2)}, v{va} offset:{sl+mt*256+i*512}")
        return [r0, r1]
    def mf_w(ks):
        b = FS[ks % 3]
        return [(lambda mt=mt, nt=nt: g.mf(ACC + 32*mt + 16*nt, b + 8 + 4*mt, b + 4*nt, ks == 0)) for mt in range(2) for nt in range(2)]
    gemm1(32, rd_w, mf_w, 6, O("kq", 13))
    if O("probe", 0):
        g(f"""s_lshl_b32 s{sT0}, s2, 2
        s_add_u32 s{sT0}, s{sT0}, s{sJ}
        s_lshl_b32 s{sT0}, s{sT0}, 8
        s_add_u32 s{sT0}, s{sT0}, {WS_DBG + 0x80000}
        v_lshlrev_b32 v30, 2, v{vLANE}
        buffer_store_dword v31, v30, {srd(S_WS)}, s{sT0} offen""")
    g.nop(10)
    h_cvt(0); h_cvt(1)
    g(f"""s_branch L_G1_DONE
    L_G1_N:
    v_lshl_add_u32 v{vWF}, v{vHB}, 9, v{vTR}
    v_add_u32 v{vWF}, s{sRG}, v{vWF}""")
    FN = [32, 56, 80]
    def rd_n(sl_):
        b = FN[sl_ % 3]; va = vWF; so = (sl_ % 3) * 2048
        def half(sub):
            ks = 2 * sl_ + sub; bb = b + 12 * sub
            g(f"ds_read_b128 {vr(bb,4)}, v{vXF} offset:{ks*32}")
            g(f"ds_read_b128 {vr(bb+4,4)}, v{vXF} offset:{32*XP+ks*32}")
            for i in range(2):
                g(f"ds_read_b64_tr_b16 {vr(bb+8+2*i,2)}, v{va} offset:{so+sub*1024+i*256}")
        return [lambda: half(0), lambda: (g("s_waitcnt lgkmcnt(10)"), half(1))]
    def mf_n(sl_):
        b = FN[sl_ % 3]
        return [(lambda sub=sub, nt=nt: g.mf(ACC + 16*nt, b + 12*sub + 8, b + 12*sub + 4*nt, sl_ == 0 and sub == 0)) for sub in range(2) for nt in range(2)]
    gemm1(16, rd_n, mf_n, 8, O("kqn", 8))
    g.nop(12)
    h_cvt(0)
    g("L_G1_DONE:")
    g.stamp(6)
    NK2 = 28
    g(f"""v_lshl_add_u32 v{vDA}, v{vROW}, 10, v{vCOL}
    v_add_u32 v{vDB}, {8*1024-1024}, v{vDA}
    s_mov_b32 s{sSTEP}, 16384
    v_lshl_add_u32 v{vWF}, v{vHB}, 9, v{vTR}
    v_add_u32 v{vWF}, s{sRG}, v{vWF}""")
    g.get_nonce()
    g.poll_flags(8, sIT, 8192, sleep=4, issued=True)
    g.arrive(C_G1)
    g.wait_cnt(C_QD, 4, sleep=2)
    g.wait_cnt(C_G1, 8, sleep=1)
    g.kv_dma(2, sJ); g.kv_dma(3, sJ)
    g(f"""s_lshl_b32 s{sT0}, s{sMT}, 12
    s_add_u32 s{sT1}, s{sT0}, s{sHO}
    s_add_u32 s{sT2}, s{sT1}, 4096
    s_waitcnt vmcnt(0)""")
    g.arrive(C_H2)
    g.stamp(5)
    h_store(0, sT1)
    g(f"""s_cmp_eq_u32 s{sPR}, 0
    s_cbranch_scc1 L_HS1""")
    h_store(1, sT2)
    g(f"""L_HS1:
    v_lshrrev_b32 v100, 2, v{vLANE}
    v_and_b32 v{vT}, 3, v{vLANE}
    v_lshlrev_b32 v{vT}, 7, v{vT}
    v_and_b32 v101, 3, v100
    v_lshl_add_u32 v100, v100, 10, v{vT}
    v_lshl_add_u32 v101, v101, 10, v{vT}
    s_lshr_b32 s60, s{sCB}, 2
    s_lshl_b32 s60, s60, 9
    s_mul_i32 s{sT0}, s{sIDX}, {56*1024}
    s_lshl_b32 s{sT2}, s{sJ}, 14
    s_add_u32 s{sT0}, s{sT0}, s{sT2}
    s_add_u32 s{sT0}, s{sT0}, s60
    v_add_u32 v100, s{sT0}, v100
    s_lshl_b32 s{sT0}, s{sIDX}, 14
    s_lshl_b32 s{sT2}, s{sJ}, 12
    s_add_u32 s{sT0}, s{sT0}, s{sT2}
    s_add_u32 s{sT0}, s{sT0}, s60
    v_add_u32 v101, s{sT0}, v101
    s_lshl_b32 s{sT1}, s{sCB}, 9
    s_lshl_b32 s{sT2}, s{sJ}, 7
    s_add_u32 s{sT1}, s{sT1}, s{sT2}
    s_add_u32 s{sT1}, s{sT1}, s{sFL}""")
    g("s_waitcnt vmcnt(0)")
    g.publish(sT1, 12)
    g.arrive(C_RST)
    if O("pf2", 1):
        g(f"""buffer_load_dword v{vDUM}, v100, {srd(S_W2)}, 0 offen
        buffer_load_dword v{vDUM}, v101, {srd(S_WO)}, 0 offen""")
    ND = O("nd", 6)
    NT = NK2 + 8
    def fill2(t):
        if t == 0:
            g(f"""s_lshl_b32 s{sSO}, s{sJ}, 17
            s_lshl_b32 s{sT0}, s{sCB}, 7
            s_add_u32 s{sSO}, s{sSO}, s{sT0}""")
        if t == 8:
            g(f"""s_mul_i32 s{sSO}, s{sJ}, {NK2*16384}
            s_lshl_b32 s{sT0}, s{sCB}, 7
            s_add_u32 s{sSO}, s{sSO}, s{sT0}""")
        g.fill(t % 3, S_WO if t < 8 else S_W2)
    NH = O("nh", 7)
    HB = [120 - 8*i for i in range(NH)]
    WB = [32, 40]
    WO = 192
    sHS = sIT
    def ldh(ks):
        b = HB[ks % NH]
        g(f"buffer_load_dwordx4 {vr(b,4)}, v{vL16}, {srd(S_WS)}, s{sHS} offen sc1")
        g(f"buffer_load_dwordx4 {vr(b+4,4)}, v{vL16}, {srd(S_WS)}, s{sHS} offen offset:1024 sc1")
        g(f"s_add_u32 s{sHS}, s{sHS}, 2048")
    def rd2(t):
        b = WO + 8 * t if t < 8 else WB[t % 2]; sl = (t % 3) * 2048
        for mt in range(2):
            for i in range(2):
                g(f"ds_read_b64_tr_b16 {vr(b+4*mt+2*i,2)}, v{vWF} offset:{sl+mt*256+i*1024}")
    order = []
    def issued(tag, n): order.extend([tag] * n)
    def wait_for(tag):
        last = max(i for i, t in enumerate(order) if t == tag)
        g(f"s_waitcnt vmcnt({len(order) - 1 - last})")
    for t in range(3):
        fill2(t); issued(("w", t), 2)
    g.stamp(7)
    if O("gidle", 0): g("s_branch L_G_SKIP")
    wait_for(("w", 0))
    rd2(0)
    g("s_waitcnt lgkmcnt(0)")
    fill2(3); issued(("w", 3), 2)
    for t in range(NT):
        ks = t - 8
        if t == 7:
            g(f"""s_and_b32 s{sT0}, s{sJ}, 2
            s_add_u32 s{sT0}, s{sT0}, s{sJ}
            s_lshl_b32 s{sT0}, s{sT0}, 9
            s_add_u32 s{sT1}, s{sFL}, s{sT0}""")
            g.poll_flags(12, sT1, 4096, sleep=8)
            g.stamp(8)
            g(f"""s_setprio {O('gprio2', 0)}
            s_mul_i32 s{sHS}, s{sJ}, {NK2*2048}
            s_add_u32 s{sHS}, s{sHS}, s{sHO}""")
            for k in range(NH - 1):
                ldh(k); issued(("h", k), 2)
            if O("tp", 45): g.wait_cnt(C_PRG, 4 * (O("tp", 45) // 16) + 1, sleep=8)
        if ND and ks == NK2 - ND:
            g(f"buffer_load_dwordx4 {vr(vXR,4)}, v{vXO}, {srd(S_X)}, 0 offen"); issued(("x", 0), 1)
            g.stamp(9)
            g(f"""s_lshl_b32 s{sT1}, s{sJ}, 2
            v_add_u32 v25, s{sT1}, v{vC}""")
            g.wait_cnt(C_AD0, 1, sleep=2, v=25)
            g("s_setprio 3")
        if t + 1 < NT:
            wait_for(("w", t + 1))
            rd2(t + 1)
        if ks >= 0:
            if ks + NH - 1 < NK2:
                ldh(ks + NH - 1); issued(("h", ks + NH - 1), 2)
            wait_for(("h", ks))
            b = WB[t % 2]; hb_ = HB[ks % NH]
        def refill2():
            if t + 1 < NT:
                g("s_waitcnt lgkmcnt(0)")
                if t + 4 < NT:
                    fill2(t + 4); issued(("w", t + 4), 2)
        if ks >= 0:
            for mt in range(2):
                for nt in range(2):
                    g.mf(ACC + 32*mt + 16*nt, b + 4*mt, hb_ + 4*nt, ks == 0)
        refill2()
    if not ND:
        g(f"buffer_load_dwordx4 {vr(vXR,4)}, v{vXO}, {srd(S_X)}, 0 offen")
        g.stamp(9)
    g(f"""L_G_SKIP:
    s_lshl_b32 s{sT2}, s{sJ}, 14
    s_add_u32 s{sT2}, s{sT2}, s{sHO}
    s_add_u32 s{sT1}, s{sT2}, {112*2048}
    s_add_u32 s{sT2}, s{sT1}, 4096
    s_add_u32 s60, s{sT1}, 8192
    s_add_u32 s61, s{sT1}, 12288
    v_and_b32 v25, 31, v{vLANE}
    v_mul_u32_u24 v25, {PP}, v25
    v_lshl_add_u32 v25, v{vHB}, 4, v25
    s_mul_i32 s{sT0}, s{sJ}, {PIMG}
    v_add_u32 v25, s{sT0}, v25""")
    g.wait_cnt(C_ADONE, 4, sleep=2)
    g("s_setprio 3")
    g.stamp(12)
    OF = 32
    NST = O("nst", 4); KP = 8 // NST
    def o_issue(st):
        for i in range(KP * st, KP * st + KP):
            so = [sT1, sT2, 60, 61][i // 2]
            for nt in range(2):
                g(f"buffer_load_dwordx4 {vr(OF+8*i+4*nt,4)}, v{vL16}, {srd(S_WS)}, s{so} offen offset:{(i%2)*2048+nt*1024} sc1")
    def o_check(st):
        r = list(range(OF + 8 * KP * st, OF + 8 * KP * (st + 1)))
        acc = [vT, vT1]
        g(f"v_max3_u32 v{vT}, v{r[0]}, v{r[1]}, v{r[2]}")
        g(f"v_max3_u32 v{vT1}, v{r[3]}, v{r[4]}, v{r[5]}")
        for n_, k in enumerate(range(6, len(r), 2)):
            g(f"v_max3_u32 v{acc[n_%2]}, v{acc[n_%2]}, v{r[k]}, v{r[k+1]}")
        g(f"""v_max_u32 v{vT}, v{vT}, v{vT1}
        v_cmp_eq_u32 vcc, -1, v{vT}
        s_cmp_lg_u64 vcc, 0""")
    g(f"s_mov_b32 s{sSPIN}, {SPIN}")
    for st in range(NST): o_issue(st)
    for st in range(NST):
        g(f"""L_OW{st}:
        s_waitcnt vmcnt({2 * KP * (NST - 1 - st)})""")
        o_check(st)
        g(f"""s_cbranch_scc1 L_OR{st}
        L_OM{st}:""")
        for i in range(KP * st, KP * st + KP):
            for mt in range(2):
                for nt in range(2):
                    g.mf(ACC + 32*mt + 16*nt, WO + 8*i + 4*mt, OF + 8*i + 4*nt)
        def retry(st=st):
            g(f"""L_OR{st}:
            s_sub_u32 s{sSPIN}, s{sSPIN}, 1
            s_cselect_b32 s{sSPIN}, 0, s{sSPIN}
            s_cbranch_scc1 L_OM{st}
            s_waitcnt vmcnt(0)""")
            for t_ in range(st, NST): o_issue(t_)
            g(f"s_branch L_OW{st}")
        g.out_of_line(retry)
    g.stamp(13)
    g.nop(9)
    for mt in range(2):
        for nt in range(2):
            for q in range(4):
                a = ACC + 32*mt + 16*nt + 4*q
                g(f"ds_write_b128 v25, {vr(a,4)} offset:{nt*32*PP + mt*128 + q*32}")
    g("s_waitcnt lgkmcnt(0)")


def final(g, O, debug):
    g(f"""L_FINAL:
    v_lshrrev_b32 v{vT}, 3, v0
    v_and_b32 v{vT1}, 7, v0
    v_mul_u32_u24 v{vT}, {PP}, v{vT}
    v_lshl_add_u32 v{vT}, v{vT1}, 5, v{vT}
    s_waitcnt vmcnt(0)""")
    for d in range(4):
        g(f"v_lshlrev_b32 v{64+2*d}, 16, v{vXR+d}")
        g(f"v_and_b32 v{65+2*d}, 0xffff0000, v{vXR+d}")
    g("s_barrier")
    for j in range(4):
        g(f"ds_read_b128 {vr(32+8*j,4)}, v{vT} offset:{j*PIMG}")
        g(f"ds_read_b128 {vr(36+8*j,4)}, v{vT} offset:{j*PIMG+16}")
    for j in range(4):
        g(f"s_waitcnt lgkmcnt({6-2*j})")
        for d in range(4):
            g(f"v_pk_add_f32 {vr(64+2*d,2)}, {vr(64+2*d,2)}, {vr(32+8*j+2*d,2)}")
    for d in range(4):
        g(f"v_cvt_pk_bf16_f32 v{72+d}, v{64+2*d}, v{65+2*d}")
    g(f"buffer_store_dwordx4 v[72:75], v{vXO}, {srd(S_OUT)}, 0 offen{['', ' sc1', ' nt', ' sc0 sc1'][O('outsc', 1)]}")
    if debug:
        g.stamp(14)
        g("s_waitcnt vmcnt(0)")
        g.stamp(15)
        g(f"""s_waitcnt lgkmcnt(0)
        s_lshl_b32 s{sT0}, s2, 3
        s_add_u32 s{sT0}, s{sT0}, s{sW}
        s_lshl_b32 s{sT0}, s{sT0}, 7
        s_add_u32 s{sT0}, s{sT0}, {WS_DBG}
        v_mov_b32 v{vT}, 0""")
        for i in range(16):
            g(f"v_writelane_b32 v{vT}, s{sSTAMP+2*i}, {i}")
        g(f"v_writelane_b32 v{vT}, s{sRETRY}, 16")
        g(f"v_writelane_b32 v{vT}, s{sRB}, 17")
        g(f"v_writelane_b32 v{vT}, s{sCB}, 18")
        g(f"""v_lshlrev_b32 v{vT1}, 2, v{vLANE}
        s_mov_b32 exec_hi, 0
        buffer_store_dword v{vT}, v{vT1}, {srd(S_WS)}, s{sT0} offen""")
        if O("dbgmax", 0):
            g(f"""s_load_dwordx2 s[{S_DBG}:{S_DBG+1}], s[0:1], 72
            s_mov_b32 s{S_DBG+2}, 256
            s_mov_b32 s{S_DBG+3}, 0x20000
            v_subrev_u32 v{vT}, s{sN}, v{vT}
            s_waitcnt lgkmcnt(0)
            s_cmp_lg_u32 s{sW}, {O("dbgmax", 0) - 1}
            s_cbranch_scc1 L_END
            s_mov_b64 exec, 0xfffe
            buffer_atomic_smax v{vT}, v{vT1}, {srd(S_DBG)}, 0 offen""")
    if O("amp", 0):
        st = O("amp", 0) % 100; role = O("amp", 0) // 100
        if st == 50:
            g(f"""s_sub_u32 s62, s{sSTAMP+26}, s{sSTAMP+24}
            s_lshr_b32 s62, s62, 4""")
        elif st == 51:
            g(f"s_sub_u32 s62, s{sSTAMP+16}, s{sSTAMP+14}")
        else:
            g(f"s_sub_u32 s62, s{sSTAMP+2*st}, s{sN}")
        g(f"""s_lshl_b32 s62, s62, 2
        s_cmp_{'lt' if role == 1 else 'ge'}_u32 s{sW}, 4
        s_cselect_b32 s62, s62, 0
        s_max_i32 s62, s62, 0
        s_add_u32 s62, s62, 4000
        L_PAD:
        s_memrealtime s[60:61]
        s_waitcnt lgkmcnt(0)
        s_sub_u32 s60, s60, s{sN}
        s_cmp_lt_u32 s60, s62
        s_cbranch_scc1 L_PAD""")
    g("""L_END:
    s_endpgm""")


def a_role(g, O, debug):
    FOFF = float(O('foff', 100))
    g(f"""L_A_PRE:
    s_cmp_eq_u32 s{sPR}, 0
    s_cbranch_scc1 L_WQP
    s_setprio 2
    L_WQP:""")
    g.stamp(4)
    wq_dma(g)
    pf_w1(g); NPF = 2
    QACC = 144
    g(f"""
    v_and_b32 v25, 31, v{vLANE}
    s_and_b32 s{sT0}, s{sW}, 1
    s_mul_i32 s{sT0}, s{sT0}, {32*XP}
    s_add_u32 s{sT0}, s{sT0}, {R2}
    v_mul_u32_u24 v{vXF}, {XP}, v25
    v_lshl_add_u32 v{vXF}, v{vHB}, 4, v{vXF}
    v_add_u32 v{vXF}, s{sT0}, v{vXF}
    s_lshr_b32 s{sT0}, s{sW}, 1
    s_lshl_b32 s{sT0}, s{sT0}, 8
    v_lshl_add_u32 v{vWF}, v{vHB}, 10, v{vTR}
    v_add_u32 v{vWF}, s{sT0}, v{vWF}
    """)
    xq = lambda ks: (32 + 4 * ks) if ks < 28 else (160 + 4 * (ks - 28))
    g.wait_cnt(C_XN, 8, sleep=1)
    g(f"""s_cmp_lg_u32 s{sPR}, 0
    s_cbranch_scc1 L_XQ""")
    g.wait_cnt(C_KVDONE, 4, sleep=1)
    g("L_XQ:")
    for ks in range(32):
        g(f"ds_read_b128 {vr(xq(ks),4)}, v{vXF} offset:{ks*32}")
        if ks % 8 == 7 and ks < 31: g("s_waitcnt lgkmcnt(4)")
    g(f"""s_waitcnt vmcnt({8 + NPF})
    s_setprio 2""")
    g.arrive(C_WQ)
    g.wait_cnt(C_WQ, 4)
    g.stamp(10)
    FB = 176; NS = 8
    def rdq(ks):
        b = FB + 4 * (ks % NS)
        o = R1 + ks * 2048
        g(f"ds_read_b64_tr_b16 {vr(b,2)}, v{vWF} offset:{o}")
        g(f"ds_read_b64_tr_b16 {vr(b+2,2)}, v{vWF} offset:{o+512}")
    for ks in range(7): rdq(ks)
    for ks in range(32):
        b = FB + 4 * (ks % NS)
        g(f"s_waitcnt lgkmcnt({min(12, 2*(31-ks))})")
        g.mf(QACC, b, xq(ks), ks == 0)
        if ks + 7 == 16:
            g(f"s_waitcnt vmcnt({NPF})")
            g.arrive(C_WQ2)
            g.wait_cnt(C_WQ2, 4)
        if ks + 7 < 32: rdq(ks + 7)
    g.arrive(C_QD)
    g.stamp(5)
    QA, QB = 24, 28
    g.get_nonce()
    g(f"s_mov_b32 s{sIT}, {WS_KVF}")
    g.poll_issue(16, sIT, 8192)
    g(f"s_mov_b32 s{sT0}, {f2u(QSCALE):#x}")
    for i in range(16):
        g(f"v_mul_f32 v{QACC+i}, s{sT0}, v{QACC+i}")
    for i in range(8):
        g(f"v_cvt_pk_bf16_f32 v{QA+i}, v{QACC+2*i}, v{QACC+2*i+1}")
    SA = [32, 48]; SB = [64, 80]; CA, CB_ = 96, 112; OA, OB = 128, 144
    KF = [160, 164]; VF = [168, 176]; vIDX, vKA, vVA = 184, 185, 186
    vAD, vCK, vCV = 187, 188, 189
    def zero_state():
        for i in range(0, 16, 2):
            g(f"v_mov_b64 {vr(OA+i,2)}, 0"); g(f"v_mov_b64 {vr(OB+i,2)}, 0"); g(f"v_mov_b64 {vr(SB[1]+i,2)}, 0")
        for i in range(0, 8, 2):
            g(f"v_mov_b64 {vr(VF[1]+i,2)}, 0")
    g(f"""
    v_mov_b32 v{vIDX}, 0xdddddddd
    v_mov_b32 v{vKA}, v{vL16}
    v_and_b32 v{vT}, 31, v{vLANE}
    v_lshrrev_b32 v{vT1}, 5, v{vLANE}
    v_lshlrev_b32 v{vT1}, 8, v{vT1}
    v_lshl_add_u32 v{vT1}, v{vT}, 4, v{vT1}
    v_mov_b32 v{vT2}, 528
    v_mov_b32 v{vT3}, 512
    v_and_b32 v{vVA}, 0x1b, v{vT}
    v_cmp_eq_u32 vcc, 16, v{vVA}
    s_nop 1
    v_cndmask_b32 v{vT2}, v{vT2}, v{vT3}, vcc
    v_cmp_gt_u32 vcc, 16, v{vT}
    s_nop 1
    v_cndmask_b32 v{vVA}, v{vT2}, v{vT1}, vcc
    v_add_u32 v{vVA}, 1024, v{vVA}
    s_mov_b32 s{sRETRY}, 0
    s_lshl_b32 s{sT0}, s{sCB}, 13
    s_lshr_b32 s{sT1}, s{sW}, 1
    s_lshl_b32 s{sT1}, s{sT1}, 12
    s_add_u32 s{sT0}, s{sT0}, s{sT1}
    s_and_b32 s{sT1}, s{sW}, 1
    s_lshl_b32 s{sT1}, s{sT1}, 10
    s_add_u32 s{sT0}, s{sT0}, s{sT1}
    s_add_u32 s{sT0}, s{sT0}, s{sHO}
    s_add_u32 s{sOO}, s{sT0}, {112*2048}
    s_lshl_b32 s{sT0}, s{sW}, 2
    v_add_u32 v{vAD}, s{sT0}, v{vC}
    v_mov_b32 v{vCK}, v{vC}
    s_mov_b32 s{sSTEP}, 4
    """)
    zero_state()
    g.wait_cnt(C_QD, 4)
    g("s_setprio 0")
    g.poll_flags(16, sIT, 8192, sleep=O("kvsleep", 1), issued=True)
    g("s_setprio 3")
    g.stamp(6)
    NSUB = O("nsub", 2)
    KX = [KF[0], 164, 192, 196, 200, 204, 208]
    for t in range(NSUB):
        if t: g(f"s_mov_b32 s{sT0}, {t*REC}")
        g(f"buffer_load_dwordx4 {vr(KX[t],4)}, v{vL16}, {srd(S_WS)}, {'s%d' % sT0 if t else '0'} offen sc1")
    g.kv_dma(0, sW, 1)
    g(f"s_mov_b32 s{sT1}, {WS_KVF + 2048}")
    g.poll_issue(16, sT1, 8192)
    AB = O("abl", 0)
    def qk(S, K, Q, C): g(f"v_mfma_f32_32x32x16_bf16 {vr(S,16)}, {vr(K,4)}, {vr(Q,4)}, {C}")
    def pv(O_, V, P):
        if AB == 1: return
        if AB == 5: g(f"v_mfma_f32_32x32x16_bf16 {vr(O_,16)}, {vr(V,4)}, {vr(P,4)}, {vr(O_,16)}"); return
        g(f"v_smfmac_f32_32x32x32_bf16 {vr(O_,16)}, {vr(V,4)}, {vr(P,8)}, v{vIDX}")
    def max16(S, d):
        g(f"v_max3_f32 v{d}, v{S}, v{S+1}, v{S+2}")
        for i in range(3, 15, 2):
            g(f"v_max3_f32 v{d}, v{d}, v{S+i}, v{S+i+1}")
        g(f"v_max_f32 v{d}, v{d}, v{S+15}")
    def xhalf_max(d, t):
        g(f"""v_mov_b32 v{t}, v{d}
        s_nop 1
        v_permlane32_swap_b32 v{d}, v{t}
        s_nop 1
        v_max_f32 v{d}, v{d}, v{t}""")
    def accmax(S, d, first):
        if first: return max16(S, d)
        for i in range(0, 16, 2):
            g(f"v_max3_f32 v{d}, v{d}, v{S+i}, v{S+i+1}")
    vMA, vMB = 190, 191
    g.stamp(1)
    g("s_waitcnt vmcnt(4)")
    g.stamp(2)
    SX = [(SA[0], SB[0]), (SA[1], 212)]
    for t in range(NSUB):
        qk(SX[t % 2][0], KX[t], QA, "0"); qk(SX[t % 2][1], KX[t], QB, "0")
        if t:
            accmax(SX[(t-1) % 2][0], vMA, t == 1); accmax(SX[(t-1) % 2][1], vMB, t == 1)
        elif NSUB > 1: g.nop(9)
    if NSUB == 1: g.nop(11)
    accmax(SX[(NSUB-1) % 2][0], vMA, NSUB == 1); accmax(SX[(NSUB-1) % 2][1], vMB, NSUB == 1)
    xhalf_max(vMA, vT2); xhalf_max(vMB, vT2)
    g(f"""v_add_f32 v{vT}, {f2u(FOFF):#x}, v{vMA}
    v_add_f32 v{vT1}, {f2u(FOFF):#x}, v{vMB}
    L_ATT_START:
    v_sub_f32 v{CA}, 0, v{vT}
    v_sub_f32 v{CA+1}, 0, v{vT}
    v_sub_f32 v{CB_}, 0, v{vT1}
    v_sub_f32 v{CB_+1}, 0, v{vT1}""")
    for i in range(2, 16, 2):
        g(f"v_mov_b64 {vr(CA+i,2)}, {vr(CA,2)}")
    g(f"""s_mov_b32 s{sIT}, s{sRETRY}
    s_cmp_lg_u32 s{sRETRY}, 0""")
    qk(SA[0], KF[0], QA, vr(CA, 16))
    for i in range(2, 16, 2):
        g(f"v_mov_b64 {vr(CB_+i,2)}, {vr(CB_,2)}")
    g("s_cbranch_scc1 L_ATT_GO")
    g.stamp(3)
    g("s_waitcnt vmcnt(0)")
    g.stamp(11)
    g.poll_flags(16, sT1, 8192, sleep=1, issued=True)
    g.arrive(C_H1)
    g.kv_dma(0, sW, 2)
    g.wait_cnt(C_H1, 4)
    g(f"""L_ATT_GO:
    s_setprio {O('aprio', 1)}""")
    g.stamp(7); g.stamp(12, True)
    g("""s_nop 1
    .p2align 6
    L_ATT:""")
    UN = 16
    SEP = O("sep", 1)
    def exps(S, lo, hi, first64=False):
        for i in range(lo, hi):
            if SEP:
                g(f"v_exp_f32{'_e64' if (first64 and i == lo) else ''} v{S+16+i}, v{S+i}"); continue
            if AB == 2: g(f"v_mul_f32{'_e64' if (first64 and i == lo) else ''} v{S+i}, 0, v{S+i}"); g(f"v_mul_f32 v{vT}, 0, v{vT}"); g("s_nop 0") if False else None; continue
            if AB == 3: g(f"v_exp_f32{'_e64' if (first64 and i == lo) else ''} v{192+i}, v{S+i}"); continue
            g(f"v_exp_f32{'_e64' if (first64 and i == lo) else ''} v{S+i}, v{S+i}")
    def side(it, fn):
        l = g.lab("SB"); r = g.lab("SR")
        g(f"""s_cmp_eq_u32 s{sIT}, {it}
        s_cbranch_scc1 {l}
        {r}:""")
        def blk():
            g(f"{l}:"); fn(); g(f"s_branch {r}")
        g.out_of_line(blk)
    def spin(v, off, target):
        l = g.lab("SB"); r = g.lab("SR")
        g(f"""s_cmp_lt_u32 s{sT2}, {target}
        s_cbranch_scc1 {l}
        {r}:""")
        def blk():
            g(f"{l}:"); g.wait_cnt(off, target, v=v); g(f"s_branch {r}")
        g.out_of_line(blk)
    CHK = {6: (vC, C_H1B, 4), UN - 2: (vCK, 0, 4)}
    for t in range(UN):
        p = t % 2
        sa, sb, san = (SA[0], SB[0], SA[0]) if SEP else (SA[p], SB[p], SA[1-p])
        pa, pbp = (SA[1], SB[1]) if SEP else (SA[p], SB[1-p])
        qk(sb, KF[p], QB, vr(CB_, 16))
        if AB != 4:
            g(f"ds_read_b128 {vr(KF[1-p],4)}, v{vKA} offset:{(t+1)*REC}")
            g(f"ds_read_b128 {vr(VF[p],4)}, v{vVA} offset:{t*REC}")
            g(f"ds_read_b128 {vr(VF[p]+4,4)}, v{vVA} offset:{t*REC+544}")
        if t in CHK: g(f"ds_read_b32 v{vCV}, v{CHK[t][0]} offset:{CHK[t][1]}")
        exps(sa, 0, 4)
        pv(OB, VF[1-p], pbp)
        exps(sa, 4, 10)
        pv(OB, VF[1-p] + 4, pbp + 8)
        g("s_waitcnt lgkmcnt(0)")
        exps(sa, 10, 16, True)
        qk(san, KF[1-p], QA, vr(CA, 16))
        if t in CHK:
            g(f"v_readfirstlane_b32 s{sT2}, v{vCV}")
            exps(sb, 0, 4, True)
        else:
            exps(sb, 0, 4)
        pv(OA, VF[p], pa)
        if t == 3:
            g(f"""s_waitcnt vmcnt(0)
            s_mov_b64 exec, 1
            ds_add_u32 v{vC}, v{vONE} offset:{C_H1B}
            s_mov_b64 exec, -1
            s_nop 0""")
        if O("tp", 45) and t == O("tp", 45) % 16:
            g(f"""s_mov_b64 exec, 1
            s_nop 0
            ds_add_u32 v{vC}, v{vONE} offset:{C_PRG}
            s_mov_b64 exec, -1
            s_nop 0""")
        if t == UN - 1:
            g(f"v_add_u32_e64 v{vCK}, s{sSTEP}, v{vCK}")
        if t == UN - 1:
            g(f"""v_add_u32 v{vKA}, {UN*REC}, v{vKA}
            v_add_u32 v{vVA}, {UN*REC}, v{vVA}""")
        exps(sb, 4, 10)
        pv(OA, VF[p] + 4, pa + 8)
        if debug and O("itstamp", 0):
            if t == 4: side(0, lambda: g.stamp(3, True))
            if t == 8: side(0, lambda: g.stamp(4, True))
            if t == 0: side(1, lambda: g.stamp(1, True)); side(2, lambda: g.stamp(2, True)); side(3, lambda: g.stamp(11, True))
        if debug and O("clkprobe", 0) and t % 4 == 0:
            g(f"""s_memtime s[60:61]
            s_memrealtime s[62:63]
            s_lshl_b32 s{sT0}, s{sIT}, 2
            s_add_u32 s{sT0}, s{sT0}, {t // 4}
            s_mov_b32 m0, s{sT0}
            s_waitcnt lgkmcnt(0)
            v_writelane_b32 v192, s60, m0
            v_writelane_b32 v193, s62, m0""")
        if t in CHK: spin(*CHK[t])
        if t == UN - 1:
            g(f"""s_add_u32 s{sIT}, s{sIT}, 1
            s_bitcmp0_b32 s{sIT}, 2""")
        exps(sb, 10, 16)
    g("s_cbranch_scc1 L_ATT")
    pv(OB, VF[1], SB[1]); pv(OB, VF[1] + 4, SB[1] + 8)
    g.stamp(8); g.stamp(13, True)
    g("s_setprio 3")
    g.arrive(C_AD0, v=vAD)
    def finish(O_, d, off, ok):
        g(f"v_fma_f32 v{vT}, v{O_}, 0, v{O_+8}")
        for i in range(1, 8):
            g(f"v_fma_f32 v{vT}, v{O_+i}, 0, v{vT}")
        g(f"""v_rcp_f32 v{vT3}, v{O_+8}
        v_cmp_nlt_f32 vcc, v{vT}, v{vT2}""")
        for i in range(8):
            g(f"v_mul_f32 v{O_+i}, v{O_+i}, v{vT3}")
        g(f"""s_cmp_lg_u64 vcc, 0
        {'s_nop 0' if AB else 's_cbranch_scc1 L_FB_' + ok}
        L_OK_{ok}:""")
        for i in range(4):
            g(f"v_cvt_pk_bf16_f32 v{d+i}, v{O_+2*i}, v{O_+2*i+1}")
        for i in range(4):
            g(f"v_min_u32 v{d+i}, -2, v{d+i}")
        g(f"buffer_store_dwordx4 {vr(d,4)}, v{vL16}, {srd(S_WS)}, s{sOO} offen offset:{off} sc1")
    g(f"""s_setreg_imm32_b32 hwreg(HW_REG_MODE, 4, 2), 3
    v_mov_b32 v{vT2}, {f2u(2.0**110):#x}""")
    finish(OA, 32, 0, "A")
    finish(OB, 36, 2048, "B")
    def fallback():
        g(f"""L_FB_A:
        s_cmp_lg_u32 s{sRETRY}, 0
        s_cbranch_scc1 L_OK_A
        s_branch L_FALLBACK
        L_FB_B:
        s_cmp_lg_u32 s{sRETRY}, 0
        s_cbranch_scc1 L_OK_B
        s_waitcnt vmcnt(0)
        L_FALLBACK:
        s_mov_b32 s{sRETRY}, 16
        v_mov_b32 v{vCK}, v{vC}
        s_mov_b32 s{sSTEP}, 0
        v_subrev_u32 v{vKA}, {64*REC}, v{vKA}
        v_subrev_u32 v{vVA}, {64*REC}, v{vVA}
        v_mov_b32 v{vT3}, v{vKA}
        v_mov_b32 v{vT}, 0xff800000
        v_mov_b32 v{vT1}, 0xff800000
        s_mov_b32 s{sIT}, 0
        L_MAXP:
        ds_read_b128 {vr(KF[0],4)}, v{vT3}
        v_add_u32 v{vT3}, {REC}, v{vT3}
        s_waitcnt lgkmcnt(0)""")
        qk(SA[0], KF[0], QA, "0"); qk(SB[0], KF[0], QB, "0")
        g.nop(12)
        for i in range(0, 16, 2):
            g(f"v_max3_f32 v{vT}, v{vT}, v{SA[0]+i}, v{SA[0]+i+1}")
        for i in range(0, 16, 2):
            g(f"v_max3_f32 v{vT1}, v{vT1}, v{SB[0]+i}, v{SB[0]+i+1}")
        g(f"""s_add_u32 s{sIT}, s{sIT}, 1
        s_cmp_lt_u32 s{sIT}, 64
        s_cbranch_scc1 L_MAXP
        ds_read_b128 {vr(KF[0],4)}, v{vKA}""")
        xhalf_max(vT, vT2); xhalf_max(vT1, vT2)
        zero_state()
        g(f"""s_waitcnt lgkmcnt(0)
        s_branch L_ATT_START""")
    g.out_of_line(fallback)
    g.arrive(C_ADONE)
    if debug and O("clkprobe", 0):
        g(f"""s_lshl_b32 s{sT0}, s2, 2
        s_add_u32 s{sT0}, s{sT0}, s{sW}
        s_lshl_b32 s{sT0}, s{sT0}, 9
        s_add_u32 s{sT0}, s{sT0}, {WS_DBG + 0x100000}
        v_lshlrev_b32 v30, 3, v{vLANE}
        buffer_store_dwordx2 v[192:193], v30, {srd(S_WS)}, s{sT0} offen""")
    g(f"buffer_load_dwordx4 {vr(vXR,4)}, v{vXO}, {srd(S_X)}, 0 offen")
    g.stamp(9)
    g("s_branch L_FINAL")


def gen(debug=False, opt=None):
    opt = opt or {}
    O = lambda k, d: opt.get(k, d)
    g = G(debug)
    prologue(g, O)
    layernorm(g, O)
    g_role(g, O)
    final(g, O, debug)
    a_role(g, O, debug)
    g.L += g.tail
    g("L_CODE_END:")
    ref = open(f"cdna_kernels/{NAME}.s.ref").read().split("\n")
    hdr = [l for l in ref if l.startswith(";") and "@launch" not in l]
    out = hdr + [f"; @launch grid=(256,1,1) block=(512,1,1) lds={LDS_BYTES}",
                 '.amdgcn_target "amdgcn-amd-amdhsa--gfx950"', ".text", f".globl {NAME}_kernel", ".p2align 8",
                 f".type {NAME}_kernel,@function", f"{NAME}_kernel:"] + g.L + [
        '.section .rodata,"a"', ".p2align 6", f".amdhsa_kernel {NAME}_kernel",
        "  .amdhsa_next_free_vgpr 256", "  .amdhsa_next_free_sgpr 102", "  .amdhsa_accum_offset 256",
        "  .amdhsa_group_segment_fixed_size 0", "  .amdhsa_kernarg_size 88", "  .amdhsa_user_sgpr_count 2",
        "  .amdhsa_user_sgpr_kernarg_segment_ptr 1", "  .amdhsa_system_sgpr_workgroup_id_x 1", ".end_amdhsa_kernel", ""]
    return "\n".join(out)


if __name__ == "__main__":
    ap = argparse.ArgumentParser()
    ap.add_argument("-o", default=f"cdna_kernels/{NAME}.s")
    ap.add_argument("--debug", action="store_true")
    ap.add_argument("opts", nargs="*")
    a = ap.parse_args()
    opt = {k: int(v) for k, v in (o.split("=") for o in a.opts)}
    open(a.o, "w").write(gen(a.debug, opt))
```

```python
import sys, argparse, struct

NAME = "parallel_sum__grouped_kv_mqa__dense_activation_relu__prompt"

REC = 2112
HALF = 32 * REC
R1, R2, R3 = 0, HALF, 2 * HALF
RING = 6144
CNT = R3 + 4 * RING
(C_H1C, C_H2, C_RST, C_H1B, C_KVDONE, C_KVST, C_QD, C_H1, C_G1, C_WQ, C_ADONE, C_PUB, C_XN, C_WQ2,
 C_PRG, C_AD0) = range(0, 64, 4)
LDS_BYTES = 163840
XP = 1040
PP = 272
PIMG = 64 * PP
WS_KV = 0
WS_KVF = 0x40000
WS_HO = 0x80000
HO_RB = 144 * 2048
WS_DBG = 0xA00000
WS_HF = 0xC00000
WS_BYTES = 0x1000000
QSCALE = 0.25 * 1.4426950408889634
SPIN = 1 << 15
NREP = 16

DOC = """;
;"""

def f2u(x): return struct.unpack("<I", struct.pack("<f", x))[0]

S_X, S_OUT, S_WS, S_WO, S_W2, S_WQ, S_WKV, S_W1, S_DBG = 4, 8, 12, 16, 20, 24, 28, 32, 36
POLL = 24
sKVO = 3
sW, sRB, sCB = 40, 41, 42
sT0, sT1, sT2, sRG = 43, 44, 45, 46
sSPIN, sSO, sSTEP, sIT, sHO, sFL, sRETRY = 47, 48, 49, 50, 51, 52, 53
sM = 54
sJ, sMT = 56, 57
sOO = 59
sSTAMP = 64
sIDX, sPR = 96, 97
sTM = 98
sN = 100

vLANE, vC, vONE, vT, vT1, vT2, vT3 = 1, 2, 3, 4, 5, 6, 7
vL16 = 8
vDA, vDB = 9, 10
vXF, vWF = 11, 12
vXO = 13
vN, vZ = 14, 15
vXR = 16
vROW, vCOL, vC16, vTR, vHB = 20, 21, 22, 23, 24
vDUM = 210

def srd(b): return f"s[{b}:{b+3}]"
def vr(b, n=1): return f"v{b}" if n == 1 else f"v[{b}:{b+n-1}]"


class G:
    def __init__(self, debug):
        self.L = []
        self.tail = []
        self.debug = debug
        self.nlab = 0

    def __call__(self, s):
        for line in s.split("\n"):
            line = line.strip()
            if line:
                self.L.append(line if line.endswith(":") else "    " + line)

    def lab(self, p="L"):
        self.nlab += 1
        return f"{p}_{self.nlab}"

    def stamp(self, i, cyc=False):
        if self.debug:
            self(f"{'s_memtime' if cyc else 's_memrealtime'} s[{sSTAMP+2*i}:{sSTAMP+2*i+1}]")

    def nop(self, n):
        while n > 0:
            k = min(n, 16)
            self(f"s_nop {k-1}")
            n -= k

    def out_of_line(self, fn):
        main = self.L; self.L = self.tail
        fn()
        self.L = main

    def arrive(self, c, v=vC):
        self(f"""s_mov_b64 exec, 1
        ds_add_u32 v{v}, v{vONE} offset:{c}
        s_mov_b64 exec, -1""")

    def wait_cnt(self, c, target, sleep=0, v=vC):
        l = self.lab("WC"); d = self.lab("WD")
        self(f"""s_mov_b32 s{sSPIN}, {SPIN}
        {l}:
        ds_read_b32 v{vT}, v{v} offset:{c}
        s_waitcnt lgkmcnt(0)
        v_readfirstlane_b32 s{sT0}, v{vT}
        s_sub_u32 s{sSPIN}, s{sSPIN}, 1
        s_cbranch_scc1 {d}
        s_cmp_ge_u32 s{sT0}, {target}
        s_cbranch_scc1 {d}""")
        if sleep: self(f"s_sleep {sleep}")
        self(f"""s_branch {l}
        {d}:""")

    def poll_issue(self, n, soff, stride):
        for i in range(n):
            self(f"s_buffer_load_dword s{POLL+i}, {srd(S_WS)}, s{soff} offset:{128*i}")
        self(f"s_add_u32 s{soff}, s{soff}, {stride}")

    def poll_flags(self, n, soff, stride, sleep=1, issued=False):
        l = self.lab("PF"); d = self.lab("PD"); v = self.lab("PV"); c = self.lab("PC")
        self(f"s_mov_b32 s{sSPIN}, {NREP-2}")
        if issued: self(f"s_branch {c}")
        self(f"{l}:")
        self.poll_issue(n, soff, stride)
        self(f"""{c}:
        s_waitcnt lgkmcnt(0)
        s_xor_b64 s[{sM}:{sM+1}], s[{POLL}:{POLL+1}], s[{sN}:{sN+1}]""")
        for p in range(POLL + 2, POLL + n, 2):
            self(f"""s_xor_b64 s[{p}:{p+1}], s[{p}:{p+1}], s[{sN}:{sN+1}]
            s_or_b64 s[{sM}:{sM+1}], s[{sM}:{sM+1}], s[{p}:{p+1}]""")
        self(f"s_cbranch_scc0 {d}")
        if sleep: self(f"s_sleep {sleep}")
        self(f"""s_sub_u32 s{sSPIN}, s{sSPIN}, 1
        s_cbranch_scc0 {l}
        v_min_u32 v{vT1}, {n-1}, v{vLANE}
        v_lshlrev_b32 v{vT1}, 7, v{vT1}
        s_mov_b32 s{sSPIN}, {SPIN}
        {v}:
        buffer_load_dword v{vT}, v{vT1}, {srd(S_WS)}, s{soff} offen sc1
        s_waitcnt vmcnt(0)
        v_cmp_eq_u32 vcc, s{sN}, v{vT}
        s_sub_u32 s{sSPIN}, s{sSPIN}, 1
        s_cbranch_scc1 {d}
        s_cmp_eq_u64 vcc, -1
        s_cbranch_scc1 {d}
        s_sleep 4
        s_branch {v}
        {d}:""")

    def publish(self, soff, shift):
        self(f"""v_lshlrev_b32 v{vT}, {shift}, v{vLANE}
        s_mov_b64 exec, {(1 << NREP) - 1}
        buffer_store_dword v{vN}, v{vT}, {srd(S_WS)}, s{soff} offen sc1
        s_mov_b64 exec, -1""")

    def load_nonce(self):
        self(f"buffer_load_dword v{vN}, v{vZ}, {srd(S_DBG)}, 0 offen sc1")

    def get_nonce(self):
        l = self.lab("GN"); d = self.lab("GD")
        self(f"""s_mov_b32 s{sSPIN}, {SPIN}
        {l}:
        v_readfirstlane_b32 s{sN}, v{vN}
        s_sub_u32 s{sSPIN}, s{sSPIN}, 1
        s_cbranch_scc1 {d}
        s_cmp_lg_u32 s{sN}, 0
        s_cbranch_scc1 {d}""")
        self.load_nonce()
        self(f"""s_waitcnt vmcnt(0)
        s_branch {l}
        {d}:
        s_mov_b32 s{sN+1}, s{sN}""")

    def fill(self, slot, sb):
        self(f"""s_add_u32 m0, s{sRG}, {slot*2048}
        s_nop 0
        buffer_load_dwordx4 v{vDA}, {srd(sb)}, s{sSO} offen lds
        buffer_load_dwordx4 v{vDB}, {srd(sb)}, s{sSO} offen offset:1024 lds
        s_add_u32 s{sSO}, s{sSO}, s{sSTEP}""")

    def kv_dma(self, q, sidx, part=3):
        base = q * 16 * REC + (16384 if part == 2 else 0)
        self(f"""s_lshl_b32 s{sT0}, s{sidx}, 12
        s_add_u32 s{sSO}, s{sT0}, {WS_KV + base}
        s_add_u32 m0, s{sT0}, {base}""")
        for gi in range(2 if part == 3 else 1):
            self("s_nop 0")
            for i in range(4):
                self(f"buffer_load_dwordx4 v{vL16}, {srd(S_WS)}, s{sSO} offen offset:{i*1024} sc1 lds")
            if part == 1: return
            self(f"""s_add_u32 s{sSO}, s{sSO}, 16384
            s_add_u32 m0, m0, 16384""")
        l = self.lab("KD")
        self(f"""s_cmp_lg_u32 s{sidx}, 0
        s_cbranch_scc1 {l}
        buffer_load_dwordx4 v{vL16}, {srd(S_WS)}, s{sSO} offen sc1 lds
        {l}:""")

    def mf(self, D, A, B, first=False):
        self(f"v_mfma_f32_32x32x16_bf16 {vr(D,16)}, {vr(A,4)}, {vr(B,4)}, {'0' if first else vr(D,16)}")


XR = 32
def prologue(g, O):
    g(f"""
    s_cmp_ge_u32 s2, 256
    s_cbranch_scc1 L_END
    s_load_dwordx2 s[{S_X}:{S_X+1}], s[0:1], 0
    s_load_dwordx2 s[{S_WQ}:{S_WQ+1}], s[0:1], 8
    s_load_dwordx4 s[60:63], s[0:1], 16
    s_load_dwordx2 s[{S_WO}:{S_WO+1}], s[0:1], 32
    s_load_dwordx2 s[{S_W1}:{S_W1+1}], s[0:1], 48
    s_load_dwordx2 s[{S_W2}:{S_W2+1}], s[0:1], 56
    s_load_dwordx2 s[{S_OUT}:{S_OUT+1}], s[0:1], 64
    s_load_dwordx2 s[{S_DBG}:{S_DBG+1}], s[0:1], 72
    s_load_dwordx2 s[{S_WS}:{S_WS+1}], s[0:1], 80
    s_memrealtime s[{sTM}:{sTM+1}]
    """)
    g.stamp(0)
    g(f"""
    v_lshrrev_b32 v{vT}, 6, v0
    v_and_b32 v{vLANE}, 63, v0
    s_lshr_b32 s{sIDX}, s2, 3
    v_readfirstlane_b32 s{sW}, v{vT}
    """)
    g(f"""
    s_lshr_b32 s{sPR}, s{sIDX}, 3
    s_and_b32 s{sT0}, s2, 1
    s_lshl_b32 s{sT0}, s{sT0}, 2
    s_add_u32 s{sCB}, s{sT0}, s{sPR}
    s_and_b32 s{sT0}, s2, 6
    s_lshl_b32 s{sT0}, s{sT0}, 2
    s_and_b32 s{sRB}, s{sIDX}, 7
    s_add_u32 s{sRB}, s{sRB}, s{sT0}
    s_mov_b32 s{S_X+2}, 2097152
    s_mov_b32 s{S_X+3}, 0x20000
    v_lshrrev_b32 v{vT}, 3, v{vLANE}
    v_and_b32 v{vT1}, 7, v{vLANE}
    v_lshlrev_b32 v{vT2}, 10, v{vT}
    v_lshl_or_b32 v{vT2}, v{vT1}, 4, v{vT2}
    s_and_b32 s{sT2}, s{sPR}, 1
    s_lshl_b32 s{sT2}, s{sT2}, 2
    s_xor_b32 s{sSTEP}, s{sW}, s{sT2}
    s_lshl_b32 s{sT0}, s{sRB}, 16
    s_lshl_b32 s{sT1}, s{sSTEP}, 13
    s_add_u32 s{sT1}, s{sT0}, s{sT1}
    s_mov_b32 s{S_DBG+2}, 256
    s_mov_b32 s{S_DBG+3}, 0x20000
    v_mov_b32 v{vZ}, 0
    v_lshlrev_b32 v{vL16}, 4, v{vLANE}
    s_sub_u32 s{sJ}, s{sW}, 4
    s_mov_b32 s{S_WKV+2}, 16384
    s_mov_b32 s{S_WKV+3}, 0x20000
    v_lshlrev_b32 v28, 7, v{vLANE}
    v_mov_b32 v{vC}, {CNT}
    v_mov_b32 v{vONE}, 1
    v_lshl_add_u32 v29, v{vLANE}, 2, v{vC}
    ds_write_b32 v29, v{vZ}
    s_cmp_lt_u32 s{sCB}, 4
    s_waitcnt lgkmcnt(0)
    s_barrier
    s_cselect_b32 s{S_WKV}, s60, s62
    s_cselect_b32 s{S_WKV+1}, s61, s63
    s_cmp_lg_u32 s{sPR}, 1
    s_cbranch_scc1 L_PFE
    s_cmp_lg_u32 s{sW}, 0
    s_cbranch_scc1 L_PFE
    s_and_b32 s{sT2}, s{sIDX}, 7
    s_lshl_b32 s{sT2}, s{sT2}, 11
    s_mov_b64 exec, 0xffff
    buffer_load_dword v{vDUM}, v28, {srd(S_WKV)}, s{sT2} offen
    s_mov_b64 exec, -1
    L_PFE:
    s_or_b32 s{sT0}, s2, s{sW}
    s_cmp_lg_u32 s{sT0}, 0
    s_cbranch_scc1 L_NN
    s_or_b32 s{sT0}, s{sTM}, 1
    v_mov_b32 v{vN}, s{sT0}
    s_mov_b64 exec, 1
    buffer_store_dword v{vN}, v{vZ}, {srd(S_DBG)}, 0 offen sc1
    s_mov_b64 exec, -1
    L_NN:""")
    for i in range(8):
        g(f"buffer_load_dwordx4 {vr(XR+4*i,4)}, v{vT2}, {srd(S_X)}, s{sT1} offen offset:{i*128}")
    g.stamp(1)
    g(f"""
    s_cmp_lt_u32 s{sW}, 4
    s_cbranch_scc1 L_NKV
    s_cmp_lg_u32 s{sPR}, 0
    s_cbranch_scc1 L_NKV
    s_mul_i32 s{sT1}, s{sJ}, 4224
    s_add_u32 m0, s{sT1}, {R3}
    s_lshl_b32 s{sT0}, s{sJ}, 12""")
    for i in range(4):
        g(f"buffer_load_dwordx4 v{vL16}, {srd(S_WKV)}, s{sT0} offen offset:{i*1024} lds")
    g(f"""
    L_NKV:
    s_mov_b32 s{S_WQ+2}, 524288
    s_mov_b32 s{S_WQ+3}, 0x20000
    s_mov_b32 s{S_WO+2}, 524288
    s_mov_b32 s{S_WO+3}, 0x20000
    s_mov_b32 s{S_W1+2}, 1835008
    s_mov_b32 s{S_W1+3}, 0x20000
    s_mov_b32 s{S_W2+2}, 1835008
    s_mov_b32 s{S_W2+3}, 0x20000
    s_mov_b32 s{S_OUT+2}, 2097152
    s_mov_b32 s{S_OUT+3}, 0x20000
    s_mov_b32 s{S_WS+2}, {WS_BYTES}
    s_mov_b32 s{S_WS+3}, 0x20000
    v_lshrrev_b32 v{vHB}, 5, v{vLANE}
    v_bfe_u32 v{vTR}, v{vLANE}, 2, 2
    v_lshl_add_u32 v{vROW}, v{vHB}, 2, v{vTR}
    v_bfe_u32 v25, v{vLANE}, 4, 1
    v_and_b32 v26, 3, v{vLANE}
    v_lshlrev_b32 v{vC16}, 4, v26
    v_lshl_add_u32 v{vCOL}, v25, 6, v{vC16}
    s_mul_i32 s{sT1}, s{sSTEP}, {8*XP}
    s_add_u32 s{sT1}, s{sT1}, {R2}
    v_mul_u32_u24 v{vT3}, {XP}, v{vT}
    v_lshl_add_u32 v{vT3}, v{vT1}, 4, v{vT3}
    v_add_u32 v{vT3}, s{sT1}, v{vT3}
    s_mul_i32 s{sHO}, s{sRB}, {HO_RB}
    s_add_u32 s{sHO}, s{sHO}, {WS_HO}
    s_lshl_b32 s{sFL}, s{sRB}, 16
    s_add_u32 s{sFL}, s{sFL}, {WS_HF}
    v_lshrrev_b32 v{vXO}, 3, v0
    v_lshlrev_b32 v{vXO}, 10, v{vXO}
    v_lshl_or_b32 v{vXO}, v{vT1}, 4, v{vXO}
    s_lshl_b32 s{sT1}, s{sRB}, 16
    s_lshl_b32 s{sT2}, s{sCB}, 7
    s_add_u32 s{sT1}, s{sT1}, s{sT2}
    v_add_u32 v{vXO}, s{sT1}, v{vXO}
    v_lshlrev_b32 v{vTR}, 6, v{vTR}
    v_lshl_add_u32 v{vTR}, v25, 5, v{vTR}
    v_lshl_add_u32 v{vTR}, v26, 3, v{vTR}
    v_mov_b32 v138, 0
    v_mov_b32 v139, 0
    v_lshrrev_b32 v27, 4, v{vLANE}
    v_and_b32 v28, 15, v{vLANE}
    v_min_u32 v28, 13, v28
    v_lshlrev_b32 v28, 7, v28
    s_mov_b32 s{sT1}, 3584
    v_mad_u32_u24 v27, v27, s{sT1}, v28
    s_sub_u32 s{sT0}, s{sIDX}, 8
    s_lshl_b32 s{sT0}, s{sT0}, 2
    s_and_b32 s{sT2}, s{sW}, 3
    s_add_u32 s{sT0}, s{sT0}, s{sT2}
    s_mul_i32 s{sT0}, s{sT0}, {4*3584}
    s_lshr_b32 s{sT1}, s{sCB}, 2
    s_mul_i32 s{sT1}, s{sT1}, 1792
    s_add_u32 s{sT0}, s{sT0}, s{sT1}
    v_add_u32 v27, s{sT0}, v27
    s_cmp_ge_u32 s{sW}, 4
    s_cbranch_scc1 L_G_ADDR
    v_lshl_add_u32 v{vDA}, v{vROW}, 10, v{vCOL}
    v_add_u32 v{vDB}, {8*1024-1024}, v{vDA}
    s_lshl_b32 s{sSO}, s{sW}, 16
    s_lshl_b32 s{sT0}, s{sCB}, 7
    s_add_u32 s{sSO}, s{sSO}, s{sT0}
    s_branch L_LN
    L_G_ADDR:
    s_lshr_b32 s{sT1}, s{sCB}, 2
    s_mul_i32 s{sMT}, s{sT1}, 28
    s_lshl_b32 s{sT0}, s{sPR}, 2
    s_add_u32 s{sT0}, s{sT0}, s{sJ}
    s_lshl_b32 s{sT0}, s{sT0}, 1
    s_sub_u32 s{sT0}, s{sT0}, 4
    s_cmp_eq_u32 s{sPR}, 0
    s_cselect_b32 s{sT0}, s{sJ}, s{sT0}
    s_add_u32 s{sMT}, s{sMT}, s{sT0}
    s_lshl_b32 s{sSO}, s{sMT}, 6
    s_mov_b32 s{sT1}, 3584
    v_mad_u32_u24 v{vDA}, v{vROW}, s{sT1}, v{vCOL}
    v_add_u32 v{vDB}, {8*3584-1024}, v{vDA}
    s_mov_b32 s{sSTEP}, {16*3584}
    s_mul_i32 s{sRG}, s{sJ}, {RING}
    s_add_u32 s{sRG}, s{sRG}, {R3}
    s_cmp_lg_u32 s{sPR}, 0
    s_cbranch_scc1 L_G_EARLY
    v_lshrrev_b32 v28, 2, v{vLANE}
    v_mad_u32_u24 v{vDA}, v28, s{sT1}, v{vC16}
    v_add_u32 v{vDB}, {16*3584-1024}, v{vDA}
    s_mov_b32 s{sSTEP}, {32*3584}
    v_and_b32 v142, 15, v{vLANE}
    v_lshrrev_b32 v143, 4, v{vLANE}
    s_mul_i32 s{sT0}, s{sJ}, {16*XP}
    s_add_u32 s{sT0}, s{sT0}, {R2}
    v_mul_u32_u24 v136, {XP}, v142
    v_lshl_add_u32 v136, v143, 8, v136
    v_add_u32 v136, s{sT0}, v136
    v_mul_u32_u24 v137, 4224, v143
    v_lshl_add_u32 v137, v142, 3, v137
    v_add_u32 v137, {R3}, v137
    ; K: ((g&1)*32 + 16*(j&1) + (l&15))*16 + (g>>1)*8 ; V: 1024 + (j&1)*544 + (g>>1)*256 + d*16 + (g&1)*8
    v_and_b32 v140, 1, v143
    v_lshrrev_b32 v141, 1, v143
    v_lshlrev_b32 v142, 4, v142
    v_lshl_add_u32 v138, v140, 9, v142
    v_lshl_add_u32 v138, v141, 3, v138
    v_lshl_add_u32 v139, v141, 8, v142
    v_lshl_add_u32 v139, v140, 3, v139
    s_lshl_b32 s{sT0}, s{sRB}, 1
    s_lshr_b32 s{sT1}, s{sJ}, 1
    s_add_u32 s{sT0}, s{sT0}, s{sT1}
    s_mul_i32 s{sKVO}, s{sT0}, {REC}
    s_and_b32 s{sT1}, s{sJ}, 1
    s_lshl_b32 s{sT0}, s{sT1}, 8
    s_mul_i32 s{sT1}, s{sT1}, 544
    s_add_u32 s{sT1}, s{sT1}, 1024
    s_cmp_eq_u32 s{sCB}, 0
    s_cselect_b32 s{sT0}, s{sT0}, s{sT1}
    s_cselect_b64 vcc, -1, 0
    s_add_u32 s{sKVO}, s{sKVO}, s{sT0}
    v_cndmask_b32 v138, v139, v138, vcc
    v_lshlrev_b32 v139, 3, v{vLANE}
    v_mov_b32 v140, 0x3f803f80
    v_cmp_gt_u32 vcc, 2, v{vLANE}
    s_nop 1
    v_cndmask_b32 v140, 0, v140, vcc
    v_mov_b32 v141, v140
    """)


def pf_w1(g):
    g(f"""s_mov_b32 s{sT0}, {384*3584}
    buffer_load_dword v{vDUM}, v27, {srd(S_W1)}, 0 offen
    buffer_load_dword v{vDUM}, v27, {srd(S_W1)}, s{sT0} offen""")


def wq_dma(g):
    g(f"""s_lshl_b32 s{sT0}, s{sW}, 13
    s_add_u32 m0, s{sT0}, {R1}""")
    for i in range(8):
        g(f"""s_nop 0
        buffer_load_dwordx4 v{vDA}, {srd(S_WQ)}, s{sSO} offen lds
        buffer_load_dwordx4 v{vDB}, {srd(S_WQ)}, s{sSO} offen offset:1024 lds""")
        if i < 7:
            k = 13 if i == 3 else 1
            g(f"s_add_u32 s{sSO}, s{sSO}, {16384*k}")
            g(f"s_add_u32 m0, m0, {2048*k}")


def layernorm(g, O):
    F = 64
    def stats(after, nonce):
        for i in range(8):
            g(f"s_waitcnt vmcnt({after + 7 - i})")
            if i == 7:
                g.stamp(2)
                if nonce:
                    g(f"""s_cmp_ge_u32 s{sW}, 4
                    s_cbranch_scc1 L_NNL""")
                    g.load_nonce()
                    g("L_NNL:")
            for d in range(4):
                r = XR + 4 * i + d; f = F + 8 * i + 2 * d
                g(f"v_lshlrev_b32 v{f}, 16, v{r}")
                g(f"v_and_b32 v{f+1}, 0xffff0000, v{r}")
            for d in range(4):
                f = F + 8 * i + 2 * d
                a = 128 + 2 * (d % 2); q = 132 + 2 * (d % 2)
                if i == 0 and d < 2:
                    g(f"v_pk_mul_f32 {vr(q,2)}, {vr(f,2)}, {vr(f,2)}")
                    g(f"v_mov_b64 {vr(a,2)}, {vr(f,2)}")
                else:
                    g(f"v_pk_add_f32 {vr(a,2)}, {vr(a,2)}, {vr(f,2)}")
                    g(f"v_pk_fma_f32 {vr(q,2)}, {vr(f,2)}, {vr(f,2)}, {vr(q,2)}")
    def early():
        g("L_G_EARLY:")
        for s_ in range(3): g.fill(s_, S_W1)
        stats(6, False)
        g("s_branch L_LN2")
    g.out_of_line(early)
    g("L_LN:")
    stats(0, True)
    g(f"""L_LN2:
    v_pk_add_f32 v[128:129], v[128:129], v[130:131]
    v_pk_add_f32 v[132:133], v[132:133], v[134:135]
    v_add_f32 v128, v128, v129
    v_add_f32 v132, v132, v133
    s_nop 1
    v_add_f32_dpp v128, v128, v128 quad_perm:[1,0,3,2] row_mask:0xf bank_mask:0xf
    v_add_f32_dpp v132, v132, v132 quad_perm:[1,0,3,2] row_mask:0xf bank_mask:0xf
    s_nop 1
    v_add_f32_dpp v128, v128, v128 quad_perm:[2,3,0,1] row_mask:0xf bank_mask:0xf
    v_add_f32_dpp v132, v132, v132 quad_perm:[2,3,0,1] row_mask:0xf bank_mask:0xf
    s_nop 1
    v_add_f32_dpp v128, v128, v128 row_half_mirror row_mask:0xf bank_mask:0xf
    v_add_f32_dpp v132, v132, v132 row_half_mirror row_mask:0xf bank_mask:0xf
    v_mul_f32 v128, {f2u(1.0/512):#x}, v128      ; mean
    v_mul_f32 v132, {f2u(1.0/512):#x}, v132      ; E[x^2]
    v_fma_f32 v132, -v128, v128, v132            ; var
    v_max_f32 v132, 0, v132
    v_add_f32 v132, {f2u(1e-5):#x}, v132
    v_rsq_f32 v132, v132
    s_nop 0
    v_mul_f32_e64 v128, -v128, v132              ; -mean*rstd
    """)
    for i in range(8):
        for d in range(4):
            f = F + 8 * i + 2 * d
            g(f"v_pk_fma_f32 {vr(f,2)}, {vr(f,2)}, v[132:133], v[128:129] op_sel_hi:[1,0,0]")
        for d in range(4):
            f = F + 8 * i + 2 * d
            g(f"v_cvt_pk_bf16_f32 v{XR+4*i+d}, v{f}, v{f+1}")
        g(f"ds_write_b128 v{vT3}, {vr(XR+4*i,4)} offset:{i*128}")
    g("s_waitcnt lgkmcnt(0)")
    g.arrive(C_XN)
    g.stamp(3)


ACC = 128
def g_role(g, O):
    g(f"""s_cmp_lt_u32 s{sW}, 4
    s_cbranch_scc1 L_A_PRE
    s_cmp_lg_u32 s{sPR}, 0
    s_cbranch_scc1 L_G_NP
    s_setprio 3""")
    g.wait_cnt(C_XN, 8)
    g.stamp(4)
    def kv_chain(isK):
        FB = 32; NS = 5
        def rd(ks):
            b = FB + 8 * (ks % NS)
            g(f"ds_read_b128 {vr(b,4)}, v136 offset:{ks*16}")
            g(f"ds_read_b64_tr_b16 {vr(b+4,2)}, v137 offset:{ks*256}")
            g(f"ds_read_b64_tr_b16 {vr(b+6,2)}, v137 offset:{ks*256+128}")
        for ks in range(4): rd(ks)
        for ks in range(16):
            b = FB + 8 * (ks % NS)
            g(f"s_waitcnt lgkmcnt({min(9, 3*(15-ks))})")
            c = "0" if ks == 0 else vr(ACC, 4)
            if isK: g(f"v_mfma_f32_16x16x32_bf16 {vr(ACC,4)}, {vr(b+4,4)}, {vr(b,4)}, {c}")
            else:   g(f"v_mfma_f32_16x16x32_bf16 {vr(ACC,4)}, {vr(b,4)}, {vr(b+4,4)}, {c}")
            if ks + 4 < 16: rd(ks + 4)
    g(f"""s_cmp_lg_u32 s{sCB}, 0
    s_cbranch_scc1 L_V""")
    kv_chain(True)
    g("""s_nop 1
    s_branch L_KVS
    L_V:""")
    kv_chain(False)
    g(f"""s_mov_b64 exec, 0xf
    buffer_store_dwordx2 v[140:141], v139, {srd(S_WS)}, s{sKVO} offen offset:512 sc1
    s_mov_b64 exec, -1
    L_KVS:
    s_nop 5
    v_cvt_pk_bf16_f32 v132, v128, v129
    v_cvt_pk_bf16_f32 v133, v130, v131
    buffer_store_dwordx2 v[132:133], v138, {srd(S_WS)}, s{sKVO} offen sc1""")
    g.load_nonce()
    g.arrive(C_KVDONE)
    g.stamp(11)
    g(f"""s_lshl_b32 s{sT1}, s{sRB}, 8
    s_lshl_b32 s{sT2}, s{sCB}, 5
    s_add_u32 s{sT1}, s{sT1}, s{sT2}
    s_add_u32 s{sT1}, s{sT1}, {WS_KVF}
    s_waitcnt vmcnt(0)
    s_mov_b64 exec, 1
    ds_add_rtn_u32 v{vT}, v{vC}, v{vONE} offset:{C_KVST}
    s_mov_b64 exec, -1""")
    g.get_nonce()
    g(f"""s_waitcnt lgkmcnt(0)
    v_readfirstlane_b32 s{sT0}, v{vT}
    s_nop 3
    s_cmp_lg_u32 s{sT0}, 3
    s_cbranch_scc1 L_G_NF""")
    g.publish(sT1, 13)
    g.arrive(C_PUB)
    g("L_G_NF:")
    g.stamp(10)
    g.wait_cnt(C_PUB, 1)
    for s_ in range(3): g.fill(s_, S_W1)
    g(f"""L_G_NP:
    s_setprio 2""")
    g.load_nonce()
    g.wait_cnt(C_XN, 8)
    def probe(k):
        if O("probe", 0):
            g(f"""s_memrealtime s[60:61]
            s_waitcnt lgkmcnt(0)
            v_writelane_b32 v31, s60, {k}""")
    def reset_o():
        g(f"""v_mov_b64 v[120:121], -1
        v_mov_b64 v[122:123], -1
        s_lshl_b32 s{sT0}, s{sCB}, 13
        s_lshr_b32 s60, s{sJ}, 1
        s_lshl_b32 s60, s60, 12
        s_add_u32 s{sT0}, s{sT0}, s60
        s_and_b32 s60, s{sJ}, 1
        s_lshl_b32 s60, s60, 10
        s_add_u32 s{sT0}, s{sT0}, s60
        s_add_u32 s{sT0}, s{sT0}, s{sHO}
        s_add_u32 s{sT0}, s{sT0}, {112*2048}
        buffer_store_dwordx4 v[120:123], v{vL16}, {srd(S_WS)}, s{sT0} offen sc1
        buffer_store_dwordx4 v[120:123], v{vL16}, {srd(S_WS)}, s{sT0} offen offset:2048 sc1""")
    def gemm1(n, rd, mfs, nrd, kq):
        order = [("w", 0)] * 2 + [("w", 1)] * 2 + [("w", 2)] * 2 + [("n", 0)]
        def wait_for(k):
            last = max(i for i, t in enumerate(order) if t == ("w", k))
            g(f"s_waitcnt vmcnt({len(order) - 1 - last})")
        for k in range(2):
            wait_for(k)
            for r in rd(k): r()
        g(f"s_waitcnt lgkmcnt({nrd})")
        for k in range(n):
            m = [(lambda f=f: (g("s_setprio 0"), f(), g("s_setprio 2"))) for f in mfs(k)]
            m[0]()
            if k == kq:
                g.wait_cnt(C_H1, 4, sleep=1)
                g(f"s_mov_b32 s{sIT}, s{sSO}")
                g.kv_dma(1, sJ)
                g(f"s_mov_b32 s{sSO}, s{sIT}")
                reset_o()
                order.extend([("q", 0)] * 10)
            if k + 3 < n:
                g.fill(k % 3, S_W1); order.extend([("w", k + 3)] * 2)
            m[1]()
            if k + 2 < n:
                wait_for(k + 2)
                if k + 2 == kq + 3: g.arrive(C_H1C)
                r = rd(k + 2)
                r[0]()
            m[2]()
            if k + 2 < n: r[1]()
            m[3]()
            if k + 1 < n:
                g(f"s_waitcnt lgkmcnt({nrd if k + 2 < n else 0})")
                probe(k)
            if k + 2 == n:
                g.arrive(C_G1)
                g(f"""s_lshl_b32 s{sIT}, s{sJ}, 10
                s_add_u32 s{sIT}, s{sIT}, {WS_KVF + 4096}""")
                g.poll_issue(8, sIT, 8192)
    def h_cvt(mt):
        for nt in range(2):
            a = ACC + 32*mt + 16*nt; o = 64 + 8 * (2*mt + nt)
            for i in range(8):
                g(f"v_cvt_pk_bf16_f32 v{o+i}, v{a+2*i}, v{a+2*i+1}")
            for i in range(8):
                g(f"v_pk_max_i16 v{o+i}, v{o+i}, 0")
    def h_store(mt, sM_):
        for nt in range(2):
            o = 64 + 8 * (2*mt + nt)
            g(f"buffer_store_dwordx4 {vr(o,4)}, v{vL16}, {srd(S_WS)}, s{sM_} offen offset:{nt*1024} sc1")
            g(f"buffer_store_dwordx4 {vr(o+4,4)}, v{vL16}, {srd(S_WS)}, s{sM_} offen offset:{2048+nt*1024} sc1")
    g(f"""
    v_and_b32 v25, 31, v{vLANE}
    v_mul_u32_u24 v{vXF}, {XP}, v25
    v_lshl_add_u32 v{vXF}, v{vHB}, 4, v{vXF}
    v_add_u32 v{vXF}, {R2}, v{vXF}
    s_cmp_eq_u32 s{sPR}, 0
    s_cbranch_scc1 L_G1_N
    v_lshl_add_u32 v{vWF}, v{vHB}, 10, v{vTR}
    v_add_u32 v{vWF}, s{sRG}, v{vWF}
    """)
    FS = [32, 48, 64]
    def rd_w(ks):
        b = FS[ks % 3]; va = vWF; sl = (ks % 3) * 2048
        def r0():
            g(f"ds_read_b128 {vr(b,4)}, v{vXF} offset:{ks*32}")
            g(f"ds_read_b128 {vr(b+4,4)}, v{vXF} offset:{32*XP+ks*32}")
        def r1():
            for mt in range(2):
                for i in range(2):
                    g(f"ds_read_b64_tr_b16 {vr(b+8+4*mt+2*i,2)}, v{va} offset:{sl+mt*256+i*512}")
        return [r0, r1]
    def mf_w(ks):
        b = FS[ks % 3]
        return [(lambda mt=mt, nt=nt: g.mf(ACC + 32*mt + 16*nt, b + 8 + 4*mt, b + 4*nt, ks == 0)) for mt in range(2) for nt in range(2)]
    gemm1(32, rd_w, mf_w, 6, O("kq", 13))
    if O("probe", 0):
        g(f"""s_lshl_b32 s{sT0}, s2, 2
        s_add_u32 s{sT0}, s{sT0}, s{sJ}
        s_lshl_b32 s{sT0}, s{sT0}, 8
        s_add_u32 s{sT0}, s{sT0}, {WS_DBG + 0x80000}
        v_lshlrev_b32 v30, 2, v{vLANE}
        buffer_store_dword v31, v30, {srd(S_WS)}, s{sT0} offen""")
    g.nop(10)
    h_cvt(0); h_cvt(1)
    g(f"""s_branch L_G1_DONE
    L_G1_N:
    v_lshl_add_u32 v{vWF}, v{vHB}, 9, v{vTR}
    v_add_u32 v{vWF}, s{sRG}, v{vWF}""")
    FN = [32, 56, 80]
    def rd_n(sl_):
        b = FN[sl_ % 3]; va = vWF; so = (sl_ % 3) * 2048
        def half(sub):
            ks = 2 * sl_ + sub; bb = b + 12 * sub
            g(f"ds_read_b128 {vr(bb,4)}, v{vXF} offset:{ks*32}")
            g(f"ds_read_b128 {vr(bb+4,4)}, v{vXF} offset:{32*XP+ks*32}")
            for i in range(2):
                g(f"ds_read_b64_tr_b16 {vr(bb+8+2*i,2)}, v{va} offset:{so+sub*1024+i*256}")
        return [lambda: half(0), lambda: (g("s_waitcnt lgkmcnt(10)"), half(1))]
    def mf_n(sl_):
        b = FN[sl_ % 3]
        return [(lambda sub=sub, nt=nt: g.mf(ACC + 16*nt, b + 12*sub + 8, b + 12*sub + 4*nt, sl_ == 0 and sub == 0)) for sub in range(2) for nt in range(2)]
    gemm1(16, rd_n, mf_n, 8, O("kqn", 8))
    g.nop(12)
    h_cvt(0)
    g("L_G1_DONE:")
    g.stamp(6)
    NK2 = 28
    g(f"""v_lshl_add_u32 v{vDA}, v{vROW}, 10, v{vCOL}
    v_add_u32 v{vDB}, {8*1024-1024}, v{vDA}
    s_mov_b32 s{sSTEP}, 16384
    v_lshl_add_u32 v{vWF}, v{vHB}, 9, v{vTR}
    v_add_u32 v{vWF}, s{sRG}, v{vWF}""")
    g.get_nonce()
    g.poll_flags(8, sIT, 8192, sleep=4, issued=True)
    g.arrive(C_G1)
    g.wait_cnt(C_QD, 4, sleep=2)
    g.wait_cnt(C_G1, 8, sleep=1)
    g.kv_dma(2, sJ); g.kv_dma(3, sJ)
    g(f"""s_lshl_b32 s{sT0}, s{sMT}, 12
    s_add_u32 s{sT1}, s{sT0}, s{sHO}
    s_add_u32 s{sT2}, s{sT1}, 4096
    s_waitcnt vmcnt(0)""")
    g.arrive(C_H2)
    g.stamp(5)
    h_store(0, sT1)
    g(f"""s_cmp_eq_u32 s{sPR}, 0
    s_cbranch_scc1 L_HS1""")
    h_store(1, sT2)
    g(f"""L_HS1:
    v_lshrrev_b32 v100, 2, v{vLANE}
    v_and_b32 v{vT}, 3, v{vLANE}
    v_lshlrev_b32 v{vT}, 7, v{vT}
    v_and_b32 v101, 3, v100
    v_lshl_add_u32 v100, v100, 10, v{vT}
    v_lshl_add_u32 v101, v101, 10, v{vT}
    s_lshr_b32 s60, s{sCB}, 2
    s_lshl_b32 s60, s60, 9
    s_mul_i32 s{sT0}, s{sIDX}, {56*1024}
    s_lshl_b32 s{sT2}, s{sJ}, 14
    s_add_u32 s{sT0}, s{sT0}, s{sT2}
    s_add_u32 s{sT0}, s{sT0}, s60
    v_add_u32 v100, s{sT0}, v100
    s_lshl_b32 s{sT0}, s{sIDX}, 14
    s_lshl_b32 s{sT2}, s{sJ}, 12
    s_add_u32 s{sT0}, s{sT0}, s{sT2}
    s_add_u32 s{sT0}, s{sT0}, s60
    v_add_u32 v101, s{sT0}, v101
    s_lshl_b32 s{sT1}, s{sCB}, 9
    s_lshl_b32 s{sT2}, s{sJ}, 7
    s_add_u32 s{sT1}, s{sT1}, s{sT2}
    s_add_u32 s{sT1}, s{sT1}, s{sFL}""")
    g("s_waitcnt vmcnt(0)")
    g.publish(sT1, 12)
    g.arrive(C_RST)
    if O("pf2", 1):
        g(f"""buffer_load_dword v{vDUM}, v100, {srd(S_W2)}, 0 offen
        buffer_load_dword v{vDUM}, v101, {srd(S_WO)}, 0 offen""")
    ND = O("nd", 6)
    NT = NK2 + 8
    def fill2(t):
        if t == 0:
            g(f"""s_lshl_b32 s{sSO}, s{sJ}, 17
            s_lshl_b32 s{sT0}, s{sCB}, 7
            s_add_u32 s{sSO}, s{sSO}, s{sT0}""")
        if t == 8:
            g(f"""s_mul_i32 s{sSO}, s{sJ}, {NK2*16384}
            s_lshl_b32 s{sT0}, s{sCB}, 7
            s_add_u32 s{sSO}, s{sSO}, s{sT0}""")
        g.fill(t % 3, S_WO if t < 8 else S_W2)
    NH = O("nh", 7)
    HB = [120 - 8*i for i in range(NH)]
    OFR = [32 + 8 * i for i in range(8)]
    def o_load(i):
        for nt in range(2):
            g(f"buffer_load_dwordx4 {vr(OFR[i]+4*nt,4)}, v{vL16}, {srd(S_WS)}, s{60 + i // 2} offen offset:{(i%2)*2048+nt*1024} sc1")
    def o_addr():
        g(f"""s_lshl_b32 s60, s{sJ}, 14
        s_add_u32 s60, s60, s{sHO}
        s_add_u32 s60, s60, {112*2048}
        s_add_u32 s61, s60, 4096
        s_add_u32 s62, s60, 8192
        s_add_u32 s63, s60, 12288""")
    WB = [32, 40]
    WO = 192
    sHS = sIT
    def ldh(ks):
        b = HB[ks % NH]
        g(f"buffer_load_dwordx4 {vr(b,4)}, v{vL16}, {srd(S_WS)}, s{sHS} offen sc1")
        g(f"buffer_load_dwordx4 {vr(b+4,4)}, v{vL16}, {srd(S_WS)}, s{sHS} offen offset:1024 sc1")
        g(f"s_add_u32 s{sHS}, s{sHS}, 2048")
    def rd2(t):
        b = WO + 8 * t if t < 8 else WB[t % 2]; sl = (t % 3) * 2048
        for mt in range(2):
            for i in range(2):
                g(f"ds_read_b64_tr_b16 {vr(b+4*mt+2*i,2)}, v{vWF} offset:{sl+mt*256+i*1024}")
    order = []
    def issued(tag, n): order.extend([tag] * n)
    def wait_for(tag):
        last = max(i for i, t in enumerate(order) if t == tag)
        g(f"s_waitcnt vmcnt({len(order) - 1 - last})")
    for t in range(3):
        fill2(t); issued(("w", t), 2)
    g.stamp(7)
    if O("gidle", 0): g("s_branch L_G_SKIP")
    wait_for(("w", 0))
    rd2(0)
    g("s_waitcnt lgkmcnt(0)")
    fill2(3); issued(("w", 3), 2)
    for t in range(NT):
        ks = t - 8
        if t == 7:
            g(f"""s_and_b32 s{sT0}, s{sJ}, 2
            s_add_u32 s{sT0}, s{sT0}, s{sJ}
            s_lshl_b32 s{sT0}, s{sT0}, 9
            s_add_u32 s{sT1}, s{sFL}, s{sT0}""")
            g.poll_flags(12, sT1, 4096, sleep=8)
            g.stamp(8)
            g(f"""s_setprio {O('gprio2', 0)}
            s_mul_i32 s{sHS}, s{sJ}, {NK2*2048}
            s_add_u32 s{sHS}, s{sHS}, s{sHO}""")
            for k in range(NH - 1):
                ldh(k); issued(("h", k), 2)
            if O("tp", 45): g.wait_cnt(C_PRG, 4 * (O("tp", 45) // 16) + 1, sleep=8)
        if ND and ks == NK2 - ND:
            g(f"buffer_load_dwordx4 {vr(vXR,4)}, v{vXO}, {srd(S_X)}, 0 offen"); issued(("x", 0), 1)
            g.stamp(9)
            o_addr()
            g(f"""s_lshl_b32 s{sT1}, s{sJ}, 2
            v_add_u32 v25, s{sT1}, v{vC}""")
            g.wait_cnt(C_AD0, 1, sleep=2, v=25)
            g("s_setprio 3")
        if t + 1 < NT:
            wait_for(("w", t + 1))
            rd2(t + 1)
        if ks >= 0:
            if ks + NH - 1 < NK2:
                ldh(ks + NH - 1); issued(("h", ks + NH - 1), 2)
            wait_for(("h", ks))
            b = WB[t % 2]; hb_ = HB[ks % NH]
        def refill2():
            if t + 1 < NT:
                g("s_waitcnt lgkmcnt(0)")
                if t + 4 < NT:
                    fill2(t + 4); issued(("w", t + 4), 2)
        if ks >= 0:
            for mt in range(2):
                for nt in range(2):
                    g.mf(ACC + 32*mt + 16*nt, b + 4*mt, hb_ + 4*nt, ks == 0)
        refill2()
    if not ND:
        g(f"buffer_load_dwordx4 {vr(vXR,4)}, v{vXO}, {srd(S_X)}, 0 offen")
        g.stamp(9)
    g("L_G_SKIP:")
    if O("gidle", 0) or not ND: o_addr()
    g(f"""v_and_b32 v25, 31, v{vLANE}
    v_mul_u32_u24 v25, {PP}, v25
    v_lshl_add_u32 v25, v{vHB}, 4, v25
    s_mul_i32 s{sT0}, s{sJ}, {PIMG}
    v_add_u32 v25, s{sT0}, v25""")
    g.wait_cnt(C_ADONE, 4, sleep=1)
    g("s_setprio 3")
    g.stamp(12)
    NST = O("nst", 4); KP = 8 // NST
    def o_issue(st):
        for i in range(KP * st, KP * st + KP): o_load(i)
    def o_check(st):
        r = [OFR[i] + k for i in range(KP * st, KP * st + KP) for k in range(8)]
        acc = [vT, vT1]
        g(f"v_max3_u32 v{vT}, v{r[0]}, v{r[1]}, v{r[2]}")
        g(f"v_max3_u32 v{vT1}, v{r[3]}, v{r[4]}, v{r[5]}")
        for n_, k in enumerate(range(6, len(r), 2)):
            g(f"v_max3_u32 v{acc[n_%2]}, v{acc[n_%2]}, v{r[k]}, v{r[k+1]}")
        g(f"""v_max_u32 v{vT}, v{vT}, v{vT1}
        v_cmp_eq_u32 vcc, -1, v{vT}
        s_cmp_lg_u64 vcc, 0""")
    g(f"s_mov_b32 s{sSPIN}, {SPIN}")
    for i in range(8): o_load(i)
    for st in range(NST):
        g(f"""L_OW{st}:
        s_waitcnt vmcnt({2 * KP * (NST - 1 - st)})""")
        o_check(st)
        g(f"""s_cbranch_scc1 L_OR{st}
        L_OM{st}:""")
        for i in range(KP * st, KP * st + KP):
            for mt in range(2):
                for nt in range(2):
                    g.mf(ACC + 32*mt + 16*nt, WO + 8*i + 4*mt, OFR[i] + 4*nt)
        def retry(st=st):
            g(f"""L_OR{st}:
            s_sub_u32 s{sSPIN}, s{sSPIN}, 1
            s_cselect_b32 s{sSPIN}, 0, s{sSPIN}
            s_cbranch_scc1 L_OM{st}""")
            g("s_waitcnt vmcnt(0)")
            for t_ in range(st, NST): o_issue(t_)
            g(f"s_branch L_OW{st}")
        g.out_of_line(retry)
    g.stamp(13)
    g.nop(9)
    for mt in range(2):
        for nt in range(2):
            for q in range(4):
                a = ACC + 32*mt + 16*nt + 4*q
                g(f"ds_write_b128 v25, {vr(a,4)} offset:{nt*32*PP + mt*128 + q*32}")
    g("s_waitcnt lgkmcnt(0)")


def final(g, O, debug):
    g(f"""L_FINAL:
    v_lshrrev_b32 v{vT}, 3, v0
    v_and_b32 v{vT1}, 7, v0
    v_mul_u32_u24 v{vT}, {PP}, v{vT}
    v_lshl_add_u32 v{vT}, v{vT1}, 5, v{vT}
    s_waitcnt vmcnt(0)""")
    for d in range(4):
        g(f"v_lshlrev_b32 v{64+2*d}, 16, v{vXR+d}")
        g(f"v_and_b32 v{65+2*d}, 0xffff0000, v{vXR+d}")
    g("s_barrier")
    for j in range(4):
        g(f"ds_read_b128 {vr(32+8*j,4)}, v{vT} offset:{j*PIMG}")
        g(f"ds_read_b128 {vr(36+8*j,4)}, v{vT} offset:{j*PIMG+16}")
    for j in range(4):
        g(f"s_waitcnt lgkmcnt({6-2*j})")
        for d in range(4):
            g(f"v_pk_add_f32 {vr(64+2*d,2)}, {vr(64+2*d,2)}, {vr(32+8*j+2*d,2)}")
    for d in range(4):
        g(f"v_cvt_pk_bf16_f32 v{72+d}, v{64+2*d}, v{65+2*d}")
    g(f"buffer_store_dwordx4 v[72:75], v{vXO}, {srd(S_OUT)}, 0 offen{['', ' sc1', ' nt', ' sc0 sc1'][O('outsc', 1)]}")
    if debug:
        g.stamp(14)
        g("s_waitcnt vmcnt(0)")
        g.stamp(15)
        g(f"""s_waitcnt lgkmcnt(0)
        s_lshl_b32 s{sT0}, s2, 3
        s_add_u32 s{sT0}, s{sT0}, s{sW}
        s_lshl_b32 s{sT0}, s{sT0}, 7
        s_add_u32 s{sT0}, s{sT0}, {WS_DBG}
        v_mov_b32 v{vT}, 0""")
        for i in range(16):
            g(f"v_writelane_b32 v{vT}, s{sSTAMP+2*i}, {i}")
        g(f"v_writelane_b32 v{vT}, s{sRETRY}, 16")
        g(f"v_writelane_b32 v{vT}, s{sRB}, 17")
        g(f"v_writelane_b32 v{vT}, s{sCB}, 18")
        g(f"""v_lshlrev_b32 v{vT1}, 2, v{vLANE}
        s_mov_b32 exec_hi, 0
        buffer_store_dword v{vT}, v{vT1}, {srd(S_WS)}, s{sT0} offen""")
        if O("dbgmax", 0):
            g(f"""s_load_dwordx2 s[{S_DBG}:{S_DBG+1}], s[0:1], 72
            s_mov_b32 s{S_DBG+2}, 256
            s_mov_b32 s{S_DBG+3}, 0x20000
            v_subrev_u32 v{vT}, s{sN}, v{vT}
            s_waitcnt lgkmcnt(0)
            s_cmp_lg_u32 s{sW}, {O("dbgmax", 0) - 1}
            s_cbranch_scc1 L_END
            s_mov_b64 exec, 0xfffe
            buffer_atomic_smax v{vT}, v{vT1}, {srd(S_DBG)}, 0 offen""")
    if O("amp", 0):
        st = O("amp", 0) % 100; role = O("amp", 0) // 100
        if st == 50:
            g(f"""s_sub_u32 s62, s{sSTAMP+26}, s{sSTAMP+24}
            s_lshr_b32 s62, s62, 4""")
        elif st == 51:
            g(f"s_sub_u32 s62, s{sSTAMP+16}, s{sSTAMP+14}")
        else:
            g(f"s_sub_u32 s62, s{sSTAMP+2*st}, s{sN}")
        g(f"""s_lshl_b32 s62, s62, 2
        s_cmp_{'lt' if role == 1 else 'ge'}_u32 s{sW}, 4
        s_cselect_b32 s62, s62, 0
        s_max_i32 s62, s62, 0
        s_add_u32 s62, s62, 4000
        L_PAD:
        s_memrealtime s[60:61]
        s_waitcnt lgkmcnt(0)
        s_sub_u32 s60, s60, s{sN}
        s_cmp_lt_u32 s60, s62
        s_cbranch_scc1 L_PAD""")
    g("""L_END:
    s_endpgm""")


def a_role(g, O, debug):
    FOFF = float(O('foff', 100))
    g(f"""L_A_PRE:
    s_cmp_eq_u32 s{sPR}, 0
    s_cbranch_scc1 L_WQP
    s_setprio 2
    L_WQP:""")
    g.stamp(4)
    wq_dma(g)
    pf_w1(g); NPF = 2
    QACC = 144
    g(f"""
    v_and_b32 v25, 31, v{vLANE}
    s_and_b32 s{sT0}, s{sW}, 1
    s_mul_i32 s{sT0}, s{sT0}, {32*XP}
    s_add_u32 s{sT0}, s{sT0}, {R2}
    v_mul_u32_u24 v{vXF}, {XP}, v25
    v_lshl_add_u32 v{vXF}, v{vHB}, 4, v{vXF}
    v_add_u32 v{vXF}, s{sT0}, v{vXF}
    s_lshr_b32 s{sT0}, s{sW}, 1
    s_lshl_b32 s{sT0}, s{sT0}, 8
    v_lshl_add_u32 v{vWF}, v{vHB}, 10, v{vTR}
    v_add_u32 v{vWF}, s{sT0}, v{vWF}
    """)
    xq = lambda ks: (32 + 4 * ks) if ks < 28 else (160 + 4 * (ks - 28))
    g.wait_cnt(C_XN, 8, sleep=1)
    g(f"""s_cmp_lg_u32 s{sPR}, 0
    s_cbranch_scc1 L_XQ""")
    g.wait_cnt(C_KVDONE, 4, sleep=1)
    g("L_XQ:")
    for ks in range(32):
        g(f"ds_read_b128 {vr(xq(ks),4)}, v{vXF} offset:{ks*32}")
        if ks % 8 == 7 and ks < 31: g("s_waitcnt lgkmcnt(4)")
    g(f"""s_waitcnt vmcnt({8 + NPF})
    s_setprio 2""")
    g.arrive(C_WQ)
    g.wait_cnt(C_WQ, 4)
    g.stamp(10)
    FB = 176; NS = 8
    def rdq(ks):
        b = FB + 4 * (ks % NS)
        o = R1 + ks * 2048
        g(f"ds_read_b64_tr_b16 {vr(b,2)}, v{vWF} offset:{o}")
        g(f"ds_read_b64_tr_b16 {vr(b+2,2)}, v{vWF} offset:{o+512}")
    for ks in range(7): rdq(ks)
    for ks in range(32):
        b = FB + 4 * (ks % NS)
        g(f"s_waitcnt lgkmcnt({min(12, 2*(31-ks))})")
        g.mf(QACC, b, xq(ks), ks == 0)
        if ks + 7 == 16:
            g(f"s_waitcnt vmcnt({NPF})")
            g.arrive(C_WQ2)
            g.wait_cnt(C_WQ2, 4)
        if ks + 7 < 32: rdq(ks + 7)
    g.arrive(C_QD)
    g.stamp(5)
    QA, QB = 24, 28
    g.get_nonce()
    g(f"s_mov_b32 s{sIT}, {WS_KVF}")
    g.poll_issue(16, sIT, 8192)
    g(f"s_mov_b32 s{sT0}, {f2u(QSCALE):#x}")
    for i in range(16):
        g(f"v_mul_f32 v{QACC+i}, s{sT0}, v{QACC+i}")
    for i in range(8):
        g(f"v_cvt_pk_bf16_f32 v{QA+i}, v{QACC+2*i}, v{QACC+2*i+1}")
    SA = [32, 48]; SB = [64, 80]; CA, CB_ = 96, 112; OA, OB = 128, 144
    KF = [160, 164]; VF = [168, 176]; vIDX, vKA, vVA = 184, 185, 186
    vAD, vCK, vCV = 187, 188, 189
    def zero_state():
        for i in range(0, 16, 2):
            g(f"v_mov_b64 {vr(OA+i,2)}, 0"); g(f"v_mov_b64 {vr(OB+i,2)}, 0"); g(f"v_mov_b64 {vr(SB[1]+i,2)}, 0")
        for i in range(0, 8, 2):
            g(f"v_mov_b64 {vr(VF[1]+i,2)}, 0")
    g(f"""
    v_mov_b32 v{vIDX}, 0xdddddddd
    v_mov_b32 v{vKA}, v{vL16}
    v_and_b32 v{vT}, 31, v{vLANE}
    v_lshrrev_b32 v{vT1}, 5, v{vLANE}
    v_lshlrev_b32 v{vT1}, 8, v{vT1}
    v_lshl_add_u32 v{vT1}, v{vT}, 4, v{vT1}
    v_mov_b32 v{vT2}, 528
    v_mov_b32 v{vT3}, 512
    v_and_b32 v{vVA}, 0x1b, v{vT}
    v_cmp_eq_u32 vcc, 16, v{vVA}
    s_nop 1
    v_cndmask_b32 v{vT2}, v{vT2}, v{vT3}, vcc
    v_cmp_gt_u32 vcc, 16, v{vT}
    s_nop 1
    v_cndmask_b32 v{vVA}, v{vT2}, v{vT1}, vcc
    v_add_u32 v{vVA}, 1024, v{vVA}
    s_mov_b32 s{sRETRY}, 0
    s_lshl_b32 s{sT0}, s{sCB}, 13
    s_lshr_b32 s{sT1}, s{sW}, 1
    s_lshl_b32 s{sT1}, s{sT1}, 12
    s_add_u32 s{sT0}, s{sT0}, s{sT1}
    s_and_b32 s{sT1}, s{sW}, 1
    s_lshl_b32 s{sT1}, s{sT1}, 10
    s_add_u32 s{sT0}, s{sT0}, s{sT1}
    s_add_u32 s{sT0}, s{sT0}, s{sHO}
    s_add_u32 s{sOO}, s{sT0}, {112*2048}
    s_lshl_b32 s{sT0}, s{sW}, 2
    v_add_u32 v{vAD}, s{sT0}, v{vC}
    v_mov_b32 v{vCK}, v{vC}
    s_mov_b32 s{sSTEP}, 4
    """)
    zero_state()
    g.wait_cnt(C_QD, 4)
    g("s_setprio 0")
    g.poll_flags(16, sIT, 8192, sleep=O("kvsleep", 1), issued=True)
    g("s_setprio 3")
    g.stamp(6)
    NSUB = O("nsub", 2)
    KX = [KF[0], 164, 192, 196, 200, 204, 208]
    for t in range(NSUB):
        if t: g(f"s_mov_b32 s{sT0}, {t*REC}")
        g(f"buffer_load_dwordx4 {vr(KX[t],4)}, v{vL16}, {srd(S_WS)}, {'s%d' % sT0 if t else '0'} offen sc1")
    g.kv_dma(0, sW, 1)
    g(f"s_mov_b32 s{sT1}, {WS_KVF + 2048}")
    g.poll_issue(16, sT1, 8192)
    AB = O("abl", 0)
    def qk(S, K, Q, C): g(f"v_mfma_f32_32x32x16_bf16 {vr(S,16)}, {vr(K,4)}, {vr(Q,4)}, {C}")
    def pv(O_, V, P):
        if AB == 1: return
        if AB == 5: g(f"v_mfma_f32_32x32x16_bf16 {vr(O_,16)}, {vr(V,4)}, {vr(P,4)}, {vr(O_,16)}"); return
        g(f"v_smfmac_f32_32x32x32_bf16 {vr(O_,16)}, {vr(V,4)}, {vr(P,8)}, v{vIDX}")
    def max16(S, d):
        g(f"v_max3_f32 v{d}, v{S}, v{S+1}, v{S+2}")
        for i in range(3, 15, 2):
            g(f"v_max3_f32 v{d}, v{d}, v{S+i}, v{S+i+1}")
        g(f"v_max_f32 v{d}, v{d}, v{S+15}")
    def xhalf_max(d, t):
        g(f"""v_mov_b32 v{t}, v{d}
        s_nop 1
        v_permlane32_swap_b32 v{d}, v{t}
        s_nop 1
        v_max_f32 v{d}, v{d}, v{t}""")
    def accmax(S, d, first):
        if first: return max16(S, d)
        for i in range(0, 16, 2):
            g(f"v_max3_f32 v{d}, v{d}, v{S+i}, v{S+i+1}")
    vMA, vMB = 190, 191
    g.stamp(1)
    g("s_waitcnt vmcnt(4)")
    g.stamp(2)
    SX = [(SA[0], SB[0]), (SA[1], 212)]
    for t in range(NSUB):
        qk(SX[t % 2][0], KX[t], QA, "0"); qk(SX[t % 2][1], KX[t], QB, "0")
        if t:
            accmax(SX[(t-1) % 2][0], vMA, t == 1); accmax(SX[(t-1) % 2][1], vMB, t == 1)
        elif NSUB > 1: g.nop(9)
    if NSUB == 1: g.nop(11)
    accmax(SX[(NSUB-1) % 2][0], vMA, NSUB == 1); accmax(SX[(NSUB-1) % 2][1], vMB, NSUB == 1)
    xhalf_max(vMA, vT2); xhalf_max(vMB, vT2)
    g(f"""v_add_f32 v{vT}, {f2u(FOFF):#x}, v{vMA}
    v_add_f32 v{vT1}, {f2u(FOFF):#x}, v{vMB}
    L_ATT_START:
    v_sub_f32 v{CA}, 0, v{vT}
    v_sub_f32 v{CA+1}, 0, v{vT}
    v_sub_f32 v{CB_}, 0, v{vT1}
    v_sub_f32 v{CB_+1}, 0, v{vT1}""")
    for i in range(2, 16, 2):
        g(f"v_mov_b64 {vr(CA+i,2)}, {vr(CA,2)}")
    g(f"""s_mov_b32 s{sIT}, s{sRETRY}
    s_cmp_lg_u32 s{sRETRY}, 0""")
    qk(SA[0], KF[0], QA, vr(CA, 16))
    for i in range(2, 16, 2):
        g(f"v_mov_b64 {vr(CB_+i,2)}, {vr(CB_,2)}")
    g("s_cbranch_scc1 L_ATT_GO")
    g.stamp(3)
    g("s_waitcnt vmcnt(0)")
    g.stamp(11)
    g.poll_flags(16, sT1, 8192, sleep=1, issued=True)
    g.arrive(C_H1)
    g.kv_dma(0, sW, 2)
    g.wait_cnt(C_H1, 4)
    g(f"""L_ATT_GO:
    s_setprio {O('aprio', 1)}""")
    g.stamp(7); g.stamp(12, True)
    g("""s_nop 1
    .p2align 6
    L_ATT:""")
    UN = 16
    SEP = O("sep", 1)
    def exps(S, lo, hi, first64=False):
        for i in range(lo, hi):
            if SEP:
                g(f"v_exp_f32{'_e64' if (first64 and i == lo) else ''} v{S+16+i}, v{S+i}"); continue
            if AB == 2: g(f"v_mul_f32{'_e64' if (first64 and i == lo) else ''} v{S+i}, 0, v{S+i}"); g(f"v_mul_f32 v{vT}, 0, v{vT}"); g("s_nop 0") if False else None; continue
            if AB == 3: g(f"v_exp_f32{'_e64' if (first64 and i == lo) else ''} v{192+i}, v{S+i}"); continue
            g(f"v_exp_f32{'_e64' if (first64 and i == lo) else ''} v{S+i}, v{S+i}")
    def side(it, fn):
        l = g.lab("SB"); r = g.lab("SR")
        g(f"""s_cmp_eq_u32 s{sIT}, {it}
        s_cbranch_scc1 {l}
        {r}:""")
        def blk():
            g(f"{l}:"); fn(); g(f"s_branch {r}")
        g.out_of_line(blk)
    def spin(v, off, target):
        l = g.lab("SB"); r = g.lab("SR")
        g(f"""s_cmp_lt_u32 s{sT2}, {target}
        s_cbranch_scc1 {l}
        {r}:""")
        def blk():
            g(f"{l}:"); g.wait_cnt(off, target, v=v); g(f"s_branch {r}")
        g.out_of_line(blk)
    CHK = {6: (vC, C_H1B, 4), UN - 2: (vCK, 0, 4)}
    for t in range(UN):
        p = t % 2
        sa, sb, san = (SA[0], SB[0], SA[0]) if SEP else (SA[p], SB[p], SA[1-p])
        pa, pbp = (SA[1], SB[1]) if SEP else (SA[p], SB[1-p])
        qk(sb, KF[p], QB, vr(CB_, 16))
        if AB != 4:
            g(f"ds_read_b128 {vr(KF[1-p],4)}, v{vKA} offset:{(t+1)*REC}")
            g(f"ds_read_b128 {vr(VF[p],4)}, v{vVA} offset:{t*REC}")
            g(f"ds_read_b128 {vr(VF[p]+4,4)}, v{vVA} offset:{t*REC+544}")
        if t in CHK: g(f"ds_read_b32 v{vCV}, v{CHK[t][0]} offset:{CHK[t][1]}")
        exps(sa, 0, 4)
        pv(OB, VF[1-p], pbp)
        exps(sa, 4, 10)
        pv(OB, VF[1-p] + 4, pbp + 8)
        g("s_waitcnt lgkmcnt(0)")
        exps(sa, 10, 16, True)
        qk(san, KF[1-p], QA, vr(CA, 16))
        if t in CHK:
            g(f"v_readfirstlane_b32 s{sT2}, v{vCV}")
            exps(sb, 0, 4, True)
        else:
            exps(sb, 0, 4)
        pv(OA, VF[p], pa)
        if t == 3:
            g(f"""s_waitcnt vmcnt(0)
            s_mov_b64 exec, 1
            ds_add_u32 v{vC}, v{vONE} offset:{C_H1B}
            s_mov_b64 exec, -1
            s_nop 0""")
        if O("tp", 45) and t == O("tp", 45) % 16:
            g(f"""s_mov_b64 exec, 1
            s_nop 0
            ds_add_u32 v{vC}, v{vONE} offset:{C_PRG}
            s_mov_b64 exec, -1
            s_nop 0""")
        if t == UN - 1:
            g(f"v_add_u32_e64 v{vCK}, s{sSTEP}, v{vCK}")
        if t == UN - 1:
            g(f"""v_add_u32 v{vKA}, {UN*REC}, v{vKA}
            v_add_u32 v{vVA}, {UN*REC}, v{vVA}""")
        exps(sb, 4, 10)
        pv(OA, VF[p] + 4, pa + 8)
        if debug and O("itstamp", 0):
            if t == 4: side(0, lambda: g.stamp(3, True))
            if t == 8: side(0, lambda: g.stamp(4, True))
            if t == 0: side(1, lambda: g.stamp(1, True)); side(2, lambda: g.stamp(2, True)); side(3, lambda: g.stamp(11, True))
        if debug and O("clkprobe", 0) and t % 4 == 0:
            g(f"""s_memtime s[60:61]
            s_memrealtime s[62:63]
            s_lshl_b32 s{sT0}, s{sIT}, 2
            s_add_u32 s{sT0}, s{sT0}, {t // 4}
            s_mov_b32 m0, s{sT0}
            s_waitcnt lgkmcnt(0)
            v_writelane_b32 v192, s60, m0
            v_writelane_b32 v193, s62, m0""")
        if t in CHK: spin(*CHK[t])
        if t == UN - 1:
            g(f"""s_add_u32 s{sIT}, s{sIT}, 1
            s_bitcmp0_b32 s{sIT}, 2""")
        exps(sb, 10, 16)
    g("s_cbranch_scc1 L_ATT")
    pv(OB, VF[1], SB[1]); pv(OB, VF[1] + 4, SB[1] + 8)
    g.stamp(8); g.stamp(13, True)
    g("s_setprio 3")
    g.arrive(C_AD0, v=vAD)
    def check(O_, t, r, m):
        g(f"v_fma_f32 v{t}, v{O_}, 0, v{O_+8}")
        for i in range(1, 8):
            g(f"v_fma_f32 v{t}, v{O_+i}, 0, v{t}")
        g(f"""v_rcp_f32 v{r}, v{O_+8}
        v_cmp_nlt_f32 {m}, v{t}, v{vT2}""")
    def scale(O_, r, d):
        for i in range(8):
            g(f"v_mul_f32 v{O_+i}, v{O_+i}, v{r}")
        for i in range(4):
            g(f"v_cvt_pk_bf16_f32 v{d+i}, v{O_+2*i}, v{O_+2*i+1}")
        for i in range(4):
            g(f"v_min_u32 v{d+i}, -2, v{d+i}")
    g(f"""s_setreg_imm32_b32 hwreg(HW_REG_MODE, 4, 2), 3
    v_mov_b32 v{vT2}, {f2u(2.0**110):#x}""")
    check(OA, vT, vT3, f"s[{sM}:{sM+1}]")
    check(OB, vT, vT1, "vcc")
    scale(OA, vT3, 32)
    g(f"""s_or_b64 vcc, vcc, s[{sM}:{sM+1}]
    {'s_nop 0' if AB else 's_cbranch_scc1 L_FALLBACK'}
    L_ATT_OK:
    buffer_store_dwordx4 v[32:35], v{vL16}, {srd(S_WS)}, s{sOO} offen sc1""")
    scale(OB, vT1, 36)
    g(f"buffer_store_dwordx4 v[36:39], v{vL16}, {srd(S_WS)}, s{sOO} offen offset:2048 sc1")
    def fallback():
        g(f"""L_FALLBACK:
        s_cmp_lg_u32 s{sRETRY}, 0
        s_cbranch_scc1 L_ATT_OK
        s_mov_b32 s{sRETRY}, 16
        v_mov_b32 v{vCK}, v{vC}
        s_mov_b32 s{sSTEP}, 0
        v_subrev_u32 v{vKA}, {64*REC}, v{vKA}
        v_subrev_u32 v{vVA}, {64*REC}, v{vVA}
        v_mov_b32 v{vT3}, v{vKA}
        v_mov_b32 v{vT}, 0xff800000
        v_mov_b32 v{vT1}, 0xff800000
        s_mov_b32 s{sIT}, 0
        L_MAXP:
        ds_read_b128 {vr(KF[0],4)}, v{vT3}
        v_add_u32 v{vT3}, {REC}, v{vT3}
        s_waitcnt lgkmcnt(0)""")
        qk(SA[0], KF[0], QA, "0"); qk(SB[0], KF[0], QB, "0")
        g.nop(12)
        for i in range(0, 16, 2):
            g(f"v_max3_f32 v{vT}, v{vT}, v{SA[0]+i}, v{SA[0]+i+1}")
        for i in range(0, 16, 2):
            g(f"v_max3_f32 v{vT1}, v{vT1}, v{SB[0]+i}, v{SB[0]+i+1}")
        g(f"""s_add_u32 s{sIT}, s{sIT}, 1
        s_cmp_lt_u32 s{sIT}, 64
        s_cbranch_scc1 L_MAXP
        ds_read_b128 {vr(KF[0],4)}, v{vKA}""")
        xhalf_max(vT, vT2); xhalf_max(vT1, vT2)
        zero_state()
        g(f"""s_waitcnt lgkmcnt(0)
        s_branch L_ATT_START""")
    g.out_of_line(fallback)
    g.arrive(C_ADONE)
    if debug and O("clkprobe", 0):
        g(f"""s_lshl_b32 s{sT0}, s2, 2
        s_add_u32 s{sT0}, s{sT0}, s{sW}
        s_lshl_b32 s{sT0}, s{sT0}, 9
        s_add_u32 s{sT0}, s{sT0}, {WS_DBG + 0x100000}
        v_lshlrev_b32 v30, 3, v{vLANE}
        buffer_store_dwordx2 v[192:193], v30, {srd(S_WS)}, s{sT0} offen""")
    g(f"buffer_load_dwordx4 {vr(vXR,4)}, v{vXO}, {srd(S_X)}, 0 offen")
    g.stamp(9)
    g("s_branch L_FINAL")


def gen(debug=False, opt=None):
    opt = opt or {}
    O = lambda k, d: opt.get(k, d)
    g = G(debug)
    g("; ======== prologue: arguments, x loads, addresses ========"); prologue(g, O)
    g("; ======== LayerNorm -> xn in LDS ========"); layernorm(g, O)
    g("; ======== G waves ========"); g_role(g, O)
    g("; ======== final reduction, residual, store ========"); final(g, O, debug)
    g("; ======== A waves ========"); a_role(g, O, debug)
    g.L += g.tail
    g("L_CODE_END:")
    ref = open(f"cdna_kernels/{NAME}.s.ref").read().split("\n")
    hdr = [l for l in ref if l.startswith(";") and "@launch" not in l]
    out = hdr + [f"; @launch grid=(256,1,1) block=(512,1,1) lds={LDS_BYTES}", DOC,
                 '.amdgcn_target "amdgcn-amd-amdhsa--gfx950"', ".text", f".globl {NAME}_kernel", ".p2align 8",
                 f".type {NAME}_kernel,@function", f"{NAME}_kernel:"] + g.L + [
        '.section .rodata,"a"', ".p2align 6", f".amdhsa_kernel {NAME}_kernel",
        "  .amdhsa_next_free_vgpr 256", "  .amdhsa_next_free_sgpr 102", "  .amdhsa_accum_offset 256",
        "  .amdhsa_group_segment_fixed_size 0", "  .amdhsa_kernarg_size 88", "  .amdhsa_user_sgpr_count 2",
        "  .amdhsa_user_sgpr_kernarg_segment_ptr 1", "  .amdhsa_system_sgpr_workgroup_id_x 1", ".end_amdhsa_kernel", ""]
    return "\n".join(out)


if __name__ == "__main__":
    ap = argparse.ArgumentParser()
    ap.add_argument("-o", default=f"cdna_kernels/{NAME}.s")
    ap.add_argument("--debug", action="store_true")
    ap.add_argument("opts", nargs="*")
    a = ap.parse_args()
    opt = {k: int(v) for k, v in (o.split("=") for o in a.opts)}
    open(a.o, "w").write(gen(a.debug, opt))
```

```python
import sys, argparse, struct

NAME = "parallel_sum__grouped_kv_mqa__dense_activation_relu__prompt"

REC = 2112
HALF = 32 * REC
R1, R2, R3 = 0, HALF, 2 * HALF
RING = 6144
CNT = R3 + 4 * RING
(C_H1C, C_H2, C_RST, C_H1B, C_KVDONE, C_KVST, C_QD, C_H1, C_G1, C_WQ, C_ADONE, C_PUB, C_XN, C_WQ2,
 C_PRG, C_AD0) = range(0, 64, 4)
LDS_BYTES = 163840
XP = 1040
PP = 272
PIMG = 64 * PP
WS_KV = 0
WS_KVF = 0x40000
WS_HO = 0x80000
HO_RB = 144 * 2048
WS_DBG = 0xA00000
WS_HF = 0xC00000
WS_BYTES = 0x1000000
QSCALE = 0.25 * 1.4426950408889634
SPIN = 1 << 15
NREP = 16

DOC = """;
;"""

def f2u(x): return struct.unpack("<I", struct.pack("<f", x))[0]

S_X, S_OUT, S_WS, S_WO, S_W2, S_WQ, S_WKV, S_W1, S_DBG = 4, 8, 12, 16, 20, 24, 28, 32, 36
POLL = 24
sKVO = 3
sW, sRB, sCB = 40, 41, 42
sT0, sT1, sT2, sRG = 43, 44, 45, 46
sSPIN, sSO, sSTEP, sIT, sHO, sFL, sRETRY = 47, 48, 49, 50, 51, 52, 53
sM = 54
sJ, sMT = 56, 57
sOO = 59
sSTAMP = 64
sIDX, sPR = 96, 97
sTM = 98
sN = 100

vLANE, vC, vONE, vT, vT1, vT2, vT3 = 1, 2, 3, 4, 5, 6, 7
vL16 = 8
vDA, vDB = 9, 10
vXF, vWF = 11, 12
vXO = 13
vN, vZ = 14, 15
vXR = 16
vROW, vCOL, vC16, vTR, vHB = 20, 21, 22, 23, 24
vDUM = 210

def srd(b): return f"s[{b}:{b+3}]"
def vr(b, n=1): return f"v{b}" if n == 1 else f"v[{b}:{b+n-1}]"


class G:
    def __init__(self, debug):
        self.L = []
        self.tail = []
        self.debug = debug
        self.nlab = 0

    def __call__(self, s):
        for line in s.split("\n"):
            line = line.strip()
            if line:
                self.L.append(line if line.endswith(":") else "    " + line)

    def lab(self, p="L"):
        self.nlab += 1
        return f"{p}_{self.nlab}"

    def stamp(self, i, cyc=False):
        if self.debug:
            self(f"{'s_memtime' if cyc else 's_memrealtime'} s[{sSTAMP+2*i}:{sSTAMP+2*i+1}]")

    def nop(self, n):
        while n > 0:
            k = min(n, 16)
            self(f"s_nop {k-1}")
            n -= k

    def out_of_line(self, fn):
        main = self.L; self.L = self.tail
        fn()
        self.L = main

    def arrive(self, c, v=vC):
        self(f"""s_mov_b64 exec, 1
        ds_add_u32 v{v}, v{vONE} offset:{c}
        s_mov_b64 exec, -1""")

    def wait_cnt(self, c, target, sleep=0, v=vC):
        l = self.lab("WC"); d = self.lab("WD")
        self(f"""s_mov_b32 s{sSPIN}, {SPIN}
        {l}:
        ds_read_b32 v{vT}, v{v} offset:{c}
        s_waitcnt lgkmcnt(0)
        v_readfirstlane_b32 s{sT0}, v{vT}
        s_sub_u32 s{sSPIN}, s{sSPIN}, 1
        s_cbranch_scc1 {d}
        s_cmp_ge_u32 s{sT0}, {target}
        s_cbranch_scc1 {d}""")
        if sleep: self(f"s_sleep {sleep}")
        self(f"""s_branch {l}
        {d}:""")

    def poll_issue(self, n, soff, stride):
        for i in range(n):
            self(f"s_buffer_load_dword s{POLL+i}, {srd(S_WS)}, s{soff} offset:{128*i}")
        self(f"s_add_u32 s{soff}, s{soff}, {stride}")

    def poll_flags(self, n, soff, stride, sleep=1, issued=False):
        l = self.lab("PF"); d = self.lab("PD"); v = self.lab("PV"); c = self.lab("PC")
        self(f"s_mov_b32 s{sSPIN}, {NREP-2}")
        if issued: self(f"s_branch {c}")
        self(f"{l}:")
        self.poll_issue(n, soff, stride)
        self(f"""{c}:
        s_waitcnt lgkmcnt(0)
        s_xor_b64 s[{sM}:{sM+1}], s[{POLL}:{POLL+1}], s[{sN}:{sN+1}]""")
        for p in range(POLL + 2, POLL + n, 2):
            self(f"""s_xor_b64 s[{p}:{p+1}], s[{p}:{p+1}], s[{sN}:{sN+1}]
            s_or_b64 s[{sM}:{sM+1}], s[{sM}:{sM+1}], s[{p}:{p+1}]""")
        self(f"s_cbranch_scc0 {d}")
        if sleep: self(f"s_sleep {sleep}")
        self(f"""s_sub_u32 s{sSPIN}, s{sSPIN}, 1
        s_cbranch_scc0 {l}
        v_min_u32 v{vT1}, {n-1}, v{vLANE}
        v_lshlrev_b32 v{vT1}, 7, v{vT1}
        s_mov_b32 s{sSPIN}, {SPIN}
        {v}:
        buffer_load_dword v{vT}, v{vT1}, {srd(S_WS)}, s{soff} offen sc1
        s_waitcnt vmcnt(0)
        v_cmp_eq_u32 vcc, s{sN}, v{vT}
        s_sub_u32 s{sSPIN}, s{sSPIN}, 1
        s_cbranch_scc1 {d}
        s_cmp_eq_u64 vcc, -1
        s_cbranch_scc1 {d}
        s_sleep 4
        s_branch {v}
        {d}:""")

    def publish(self, soff, shift):
        self(f"""v_lshlrev_b32 v{vT}, {shift}, v{vLANE}
        s_mov_b64 exec, {(1 << NREP) - 1}
        buffer_store_dword v{vN}, v{vT}, {srd(S_WS)}, s{soff} offen sc1
        s_mov_b64 exec, -1""")

    def load_nonce(self):
        self(f"buffer_load_dword v{vN}, v{vZ}, {srd(S_DBG)}, 0 offen sc1")

    def get_nonce(self):
        l = self.lab("GN"); d = self.lab("GD")
        self(f"""s_mov_b32 s{sSPIN}, {SPIN}
        {l}:
        v_readfirstlane_b32 s{sN}, v{vN}
        s_sub_u32 s{sSPIN}, s{sSPIN}, 1
        s_cbranch_scc1 {d}
        s_cmp_lg_u32 s{sN}, 0
        s_cbranch_scc1 {d}""")
        self.load_nonce()
        self(f"""s_waitcnt vmcnt(0)
        s_branch {l}
        {d}:
        s_mov_b32 s{sN+1}, s{sN}""")

    def fill(self, slot, sb):
        self(f"""s_add_u32 m0, s{sRG}, {slot*2048}
        s_nop 0
        buffer_load_dwordx4 v{vDA}, {srd(sb)}, s{sSO} offen lds
        buffer_load_dwordx4 v{vDB}, {srd(sb)}, s{sSO} offen offset:1024 lds
        s_add_u32 s{sSO}, s{sSO}, s{sSTEP}""")

    def kv_dma(self, q, sidx, part=3):
        base = q * 16 * REC + (16384 if part == 2 else 0)
        self(f"""s_lshl_b32 s{sT0}, s{sidx}, 12
        s_add_u32 s{sSO}, s{sT0}, {WS_KV + base}
        s_add_u32 m0, s{sT0}, {base}""")
        for gi in range(2 if part == 3 else 1):
            self("s_nop 0")
            for i in range(4):
                self(f"buffer_load_dwordx4 v{vL16}, {srd(S_WS)}, s{sSO} offen offset:{i*1024} sc1 lds")
            if part == 1: return
            self(f"""s_add_u32 s{sSO}, s{sSO}, 16384
            s_add_u32 m0, m0, 16384""")
        l = self.lab("KD")
        self(f"""s_cmp_lg_u32 s{sidx}, 0
        s_cbranch_scc1 {l}
        buffer_load_dwordx4 v{vL16}, {srd(S_WS)}, s{sSO} offen sc1 lds
        {l}:""")

    def mf(self, D, A, B, first=False):
        self(f"v_mfma_f32_32x32x16_bf16 {vr(D,16)}, {vr(A,4)}, {vr(B,4)}, {'0' if first else vr(D,16)}")


XR = 32
def prologue(g, O):
    g(f"""
    s_cmp_ge_u32 s2, 256
    s_cbranch_scc1 L_END
    s_load_dwordx2 s[{S_X}:{S_X+1}], s[0:1], 0
    s_load_dwordx2 s[{S_WQ}:{S_WQ+1}], s[0:1], 8
    s_load_dwordx4 s[60:63], s[0:1], 16
    s_load_dwordx2 s[{S_WO}:{S_WO+1}], s[0:1], 32
    s_load_dwordx2 s[{S_W1}:{S_W1+1}], s[0:1], 48
    s_load_dwordx2 s[{S_W2}:{S_W2+1}], s[0:1], 56
    s_load_dwordx2 s[{S_OUT}:{S_OUT+1}], s[0:1], 64
    s_load_dwordx2 s[{S_DBG}:{S_DBG+1}], s[0:1], 72
    s_load_dwordx2 s[{S_WS}:{S_WS+1}], s[0:1], 80
    s_memrealtime s[{sTM}:{sTM+1}]
    """)
    g.stamp(0)
    g(f"""
    v_lshrrev_b32 v{vT}, 6, v0
    v_and_b32 v{vLANE}, 63, v0
    s_lshr_b32 s{sIDX}, s2, 3
    v_readfirstlane_b32 s{sW}, v{vT}
    """)
    g(f"""
    s_lshr_b32 s{sPR}, s{sIDX}, 3
    s_and_b32 s{sT0}, s2, 1
    s_lshl_b32 s{sT0}, s{sT0}, 2
    s_add_u32 s{sCB}, s{sT0}, s{sPR}
    s_and_b32 s{sT0}, s2, 6
    s_lshl_b32 s{sT0}, s{sT0}, 2
    s_and_b32 s{sRB}, s{sIDX}, 7
    s_add_u32 s{sRB}, s{sRB}, s{sT0}
    s_mov_b32 s{S_X+2}, 2097152
    s_mov_b32 s{S_X+3}, 0x20000
    v_lshrrev_b32 v{vT}, 3, v{vLANE}
    v_and_b32 v{vT1}, 7, v{vLANE}
    v_lshlrev_b32 v{vT2}, 10, v{vT}
    v_lshl_or_b32 v{vT2}, v{vT1}, 4, v{vT2}
    s_and_b32 s{sT2}, s{sPR}, 1
    s_lshl_b32 s{sT2}, s{sT2}, 2
    s_xor_b32 s{sSTEP}, s{sW}, s{sT2}
    s_lshl_b32 s{sT0}, s{sRB}, 16
    s_lshl_b32 s{sT1}, s{sSTEP}, 13
    s_add_u32 s{sT1}, s{sT0}, s{sT1}
    s_mov_b32 s{S_DBG+2}, 256
    s_mov_b32 s{S_DBG+3}, 0x20000
    v_mov_b32 v{vZ}, 0
    v_lshlrev_b32 v{vL16}, 4, v{vLANE}
    s_sub_u32 s{sJ}, s{sW}, 4
    s_mov_b32 s{S_WKV+2}, 16384
    s_mov_b32 s{S_WKV+3}, 0x20000
    v_lshlrev_b32 v28, 7, v{vLANE}
    v_mov_b32 v{vC}, {CNT}
    v_mov_b32 v{vONE}, 1
    v_lshl_add_u32 v29, v{vLANE}, 2, v{vC}
    ds_write_b32 v29, v{vZ}
    s_cmp_lt_u32 s{sCB}, 4
    s_waitcnt lgkmcnt(0)
    s_barrier
    s_cselect_b32 s{S_WKV}, s60, s62
    s_cselect_b32 s{S_WKV+1}, s61, s63
    s_cmp_lg_u32 s{sPR}, 1
    s_cbranch_scc1 L_PFE
    s_cmp_lg_u32 s{sW}, 0
    s_cbranch_scc1 L_PFE
    s_and_b32 s{sT2}, s{sIDX}, 7
    s_lshl_b32 s{sT2}, s{sT2}, 11
    s_mov_b64 exec, 0xffff
    buffer_load_dword v{vDUM}, v28, {srd(S_WKV)}, s{sT2} offen
    s_mov_b64 exec, -1
    L_PFE:
    s_or_b32 s{sT0}, s2, s{sW}
    s_cmp_lg_u32 s{sT0}, 0
    s_cbranch_scc1 L_NN
    s_or_b32 s{sT0}, s{sTM}, 1
    v_mov_b32 v{vN}, s{sT0}
    s_mov_b64 exec, 1
    buffer_store_dword v{vN}, v{vZ}, {srd(S_DBG)}, 0 offen sc1
    s_mov_b64 exec, -1
    L_NN:""")
    for i in range(8):
        g(f"buffer_load_dwordx4 {vr(XR+4*i,4)}, v{vT2}, {srd(S_X)}, s{sT1} offen offset:{i*128}")
    g.stamp(1)
    g(f"""
    s_cmp_lt_u32 s{sW}, 4
    s_cbranch_scc1 L_NKV
    s_cmp_lg_u32 s{sPR}, 0
    s_cbranch_scc1 L_NKV
    s_mul_i32 s{sT1}, s{sJ}, 4224
    s_add_u32 m0, s{sT1}, {R3}
    s_lshl_b32 s{sT0}, s{sJ}, 12""")
    for i in range(4):
        g(f"buffer_load_dwordx4 v{vL16}, {srd(S_WKV)}, s{sT0} offen offset:{i*1024} lds")
    g(f"""
    L_NKV:
    s_mov_b32 s{S_WQ+2}, 524288
    s_mov_b32 s{S_WQ+3}, 0x20000
    s_mov_b32 s{S_WO+2}, 524288
    s_mov_b32 s{S_WO+3}, 0x20000
    s_mov_b32 s{S_W1+2}, 1835008
    s_mov_b32 s{S_W1+3}, 0x20000
    s_mov_b32 s{S_W2+2}, 1835008
    s_mov_b32 s{S_W2+3}, 0x20000
    s_mov_b32 s{S_OUT+2}, 2097152
    s_mov_b32 s{S_OUT+3}, 0x20000
    s_mov_b32 s{S_WS+2}, {WS_BYTES}
    s_mov_b32 s{S_WS+3}, 0x20000
    v_lshrrev_b32 v{vHB}, 5, v{vLANE}
    v_bfe_u32 v{vTR}, v{vLANE}, 2, 2
    v_lshl_add_u32 v{vROW}, v{vHB}, 2, v{vTR}
    v_bfe_u32 v25, v{vLANE}, 4, 1
    v_and_b32 v26, 3, v{vLANE}
    v_lshlrev_b32 v{vC16}, 4, v26
    v_lshl_add_u32 v{vCOL}, v25, 6, v{vC16}
    s_mul_i32 s{sT1}, s{sSTEP}, {8*XP}
    s_add_u32 s{sT1}, s{sT1}, {R2}
    v_mul_u32_u24 v{vT3}, {XP}, v{vT}
    v_lshl_add_u32 v{vT3}, v{vT1}, 4, v{vT3}
    v_add_u32 v{vT3}, s{sT1}, v{vT3}
    s_mul_i32 s{sHO}, s{sRB}, {HO_RB}
    s_add_u32 s{sHO}, s{sHO}, {WS_HO}
    s_lshl_b32 s{sFL}, s{sRB}, 16
    s_add_u32 s{sFL}, s{sFL}, {WS_HF}
    v_lshrrev_b32 v{vXO}, 3, v0
    v_lshlrev_b32 v{vXO}, 10, v{vXO}
    v_lshl_or_b32 v{vXO}, v{vT1}, 4, v{vXO}
    s_lshl_b32 s{sT1}, s{sRB}, 16
    s_lshl_b32 s{sT2}, s{sCB}, 7
    s_add_u32 s{sT1}, s{sT1}, s{sT2}
    v_add_u32 v{vXO}, s{sT1}, v{vXO}
    v_lshlrev_b32 v{vTR}, 6, v{vTR}
    v_lshl_add_u32 v{vTR}, v25, 5, v{vTR}
    v_lshl_add_u32 v{vTR}, v26, 3, v{vTR}
    v_mov_b32 v138, 0
    v_mov_b32 v139, 0
    v_lshrrev_b32 v27, 4, v{vLANE}
    v_and_b32 v28, 15, v{vLANE}
    v_min_u32 v28, 13, v28
    v_lshlrev_b32 v28, 7, v28
    s_mov_b32 s{sT1}, 3584
    v_mad_u32_u24 v27, v27, s{sT1}, v28
    s_sub_u32 s{sT0}, s{sIDX}, 8
    s_lshl_b32 s{sT0}, s{sT0}, 2
    s_and_b32 s{sT2}, s{sW}, 3
    s_add_u32 s{sT0}, s{sT0}, s{sT2}
    s_mul_i32 s{sT0}, s{sT0}, {4*3584}
    s_lshr_b32 s{sT1}, s{sCB}, 2
    s_mul_i32 s{sT1}, s{sT1}, 1792
    s_add_u32 s{sT0}, s{sT0}, s{sT1}
    v_add_u32 v27, s{sT0}, v27
    s_cmp_ge_u32 s{sW}, 4
    s_cbranch_scc1 L_G_ADDR
    v_lshl_add_u32 v{vDA}, v{vROW}, 10, v{vCOL}
    v_add_u32 v{vDB}, {8*1024-1024}, v{vDA}
    s_lshl_b32 s{sSO}, s{sW}, 16
    s_lshl_b32 s{sT0}, s{sCB}, 7
    s_add_u32 s{sSO}, s{sSO}, s{sT0}
    s_branch L_LN
    L_G_ADDR:
    s_lshr_b32 s{sT1}, s{sCB}, 2
    s_mul_i32 s{sMT}, s{sT1}, 28
    s_lshl_b32 s{sT0}, s{sPR}, 2
    s_add_u32 s{sT0}, s{sT0}, s{sJ}
    s_lshl_b32 s{sT0}, s{sT0}, 1
    s_sub_u32 s{sT0}, s{sT0}, 4
    s_cmp_eq_u32 s{sPR}, 0
    s_cselect_b32 s{sT0}, s{sJ}, s{sT0}
    s_add_u32 s{sMT}, s{sMT}, s{sT0}
    s_lshl_b32 s{sSO}, s{sMT}, 6
    s_mov_b32 s{sT1}, 3584
    v_mad_u32_u24 v{vDA}, v{vROW}, s{sT1}, v{vCOL}
    v_add_u32 v{vDB}, {8*3584-1024}, v{vDA}
    s_mov_b32 s{sSTEP}, {16*3584}
    s_mul_i32 s{sRG}, s{sJ}, {RING}
    s_add_u32 s{sRG}, s{sRG}, {R3}
    s_cmp_lg_u32 s{sPR}, 0
    s_cbranch_scc1 L_G_EARLY
    v_lshrrev_b32 v28, 2, v{vLANE}
    v_mad_u32_u24 v{vDA}, v28, s{sT1}, v{vC16}
    v_add_u32 v{vDB}, {16*3584-1024}, v{vDA}
    s_mov_b32 s{sSTEP}, {32*3584}
    v_and_b32 v142, 15, v{vLANE}
    v_lshrrev_b32 v143, 4, v{vLANE}
    s_mul_i32 s{sT0}, s{sJ}, {16*XP}
    s_add_u32 s{sT0}, s{sT0}, {R2}
    v_mul_u32_u24 v136, {XP}, v142
    v_lshl_add_u32 v136, v143, 8, v136
    v_add_u32 v136, s{sT0}, v136
    v_mul_u32_u24 v137, 4224, v143
    v_lshl_add_u32 v137, v142, 3, v137
    v_add_u32 v137, {R3}, v137
    ; K: ((g&1)*32 + 16*(j&1) + (l&15))*16 + (g>>1)*8 ; V: 1024 + (j&1)*544 + (g>>1)*256 + d*16 + (g&1)*8
    v_and_b32 v140, 1, v143
    v_lshrrev_b32 v141, 1, v143
    v_lshlrev_b32 v142, 4, v142
    v_lshl_add_u32 v138, v140, 9, v142
    v_lshl_add_u32 v138, v141, 3, v138
    v_lshl_add_u32 v139, v141, 8, v142
    v_lshl_add_u32 v139, v140, 3, v139
    s_lshl_b32 s{sT0}, s{sRB}, 1
    s_lshr_b32 s{sT1}, s{sJ}, 1
    s_add_u32 s{sT0}, s{sT0}, s{sT1}
    s_mul_i32 s{sKVO}, s{sT0}, {REC}
    s_and_b32 s{sT1}, s{sJ}, 1
    s_lshl_b32 s{sT0}, s{sT1}, 8
    s_mul_i32 s{sT1}, s{sT1}, 544
    s_add_u32 s{sT1}, s{sT1}, 1024
    s_cmp_eq_u32 s{sCB}, 0
    s_cselect_b32 s{sT0}, s{sT0}, s{sT1}
    s_cselect_b64 vcc, -1, 0
    s_add_u32 s{sKVO}, s{sKVO}, s{sT0}
    v_cndmask_b32 v138, v139, v138, vcc
    v_lshlrev_b32 v139, 3, v{vLANE}
    v_mov_b32 v140, 0x3f803f80
    v_cmp_gt_u32 vcc, 2, v{vLANE}
    s_nop 1
    v_cndmask_b32 v140, 0, v140, vcc
    v_mov_b32 v141, v140
    """)


def pf_w1(g):
    g(f"""s_mov_b32 s{sT0}, {384*3584}
    buffer_load_dword v{vDUM}, v27, {srd(S_W1)}, 0 offen
    buffer_load_dword v{vDUM}, v27, {srd(S_W1)}, s{sT0} offen""")


def wq_dma(g):
    g(f"""s_lshl_b32 s{sT0}, s{sW}, 13
    s_add_u32 m0, s{sT0}, {R1}""")
    for i in range(8):
        g(f"""s_nop 0
        buffer_load_dwordx4 v{vDA}, {srd(S_WQ)}, s{sSO} offen lds
        buffer_load_dwordx4 v{vDB}, {srd(S_WQ)}, s{sSO} offen offset:1024 lds""")
        if i < 7:
            k = 13 if i == 3 else 1
            g(f"s_add_u32 s{sSO}, s{sSO}, {16384*k}")
            g(f"s_add_u32 m0, m0, {2048*k}")


def layernorm(g, O):
    F = 64
    def stats(after, nonce):
        for i in range(8):
            g(f"s_waitcnt vmcnt({after + 7 - i})")
            if i == 7:
                g.stamp(2)
                if nonce:
                    g(f"""s_cmp_ge_u32 s{sW}, 4
                    s_cbranch_scc1 L_NNL""")
                    g.load_nonce()
                    g("L_NNL:")
            for d in range(4):
                r = XR + 4 * i + d; f = F + 8 * i + 2 * d
                g(f"v_lshlrev_b32 v{f}, 16, v{r}")
                g(f"v_and_b32 v{f+1}, 0xffff0000, v{r}")
            for d in range(4):
                f = F + 8 * i + 2 * d
                a = 128 + 2 * (d % 2); q = 132 + 2 * (d % 2)
                if i == 0 and d < 2:
                    g(f"v_pk_mul_f32 {vr(q,2)}, {vr(f,2)}, {vr(f,2)}")
                    g(f"v_mov_b64 {vr(a,2)}, {vr(f,2)}")
                else:
                    g(f"v_pk_add_f32 {vr(a,2)}, {vr(a,2)}, {vr(f,2)}")
                    g(f"v_pk_fma_f32 {vr(q,2)}, {vr(f,2)}, {vr(f,2)}, {vr(q,2)}")
    def early():
        g("L_G_EARLY:")
        for s_ in range(3): g.fill(s_, S_W1)
        stats(6, False)
        g("s_branch L_LN2")
    g.out_of_line(early)
    g("L_LN:")
    stats(0, True)
    g(f"""L_LN2:
    v_pk_add_f32 v[128:129], v[128:129], v[130:131]
    v_pk_add_f32 v[132:133], v[132:133], v[134:135]
    v_add_f32 v128, v128, v129
    v_add_f32 v132, v132, v133
    s_nop 1
    v_add_f32_dpp v128, v128, v128 quad_perm:[1,0,3,2] row_mask:0xf bank_mask:0xf
    v_add_f32_dpp v132, v132, v132 quad_perm:[1,0,3,2] row_mask:0xf bank_mask:0xf
    s_nop 1
    v_add_f32_dpp v128, v128, v128 quad_perm:[2,3,0,1] row_mask:0xf bank_mask:0xf
    v_add_f32_dpp v132, v132, v132 quad_perm:[2,3,0,1] row_mask:0xf bank_mask:0xf
    s_nop 1
    v_add_f32_dpp v128, v128, v128 row_half_mirror row_mask:0xf bank_mask:0xf
    v_add_f32_dpp v132, v132, v132 row_half_mirror row_mask:0xf bank_mask:0xf
    v_mul_f32 v128, {f2u(1.0/512):#x}, v128      ; mean
    v_mul_f32 v132, {f2u(1.0/512):#x}, v132      ; E[x^2]
    v_fma_f32 v132, -v128, v128, v132            ; var
    v_max_f32 v132, 0, v132
    v_add_f32 v132, {f2u(1e-5):#x}, v132
    v_rsq_f32 v132, v132
    s_nop 0
    v_mul_f32_e64 v128, -v128, v132              ; -mean*rstd
    """)
    for i in range(8):
        for d in range(4):
            f = F + 8 * i + 2 * d
            g(f"v_pk_fma_f32 {vr(f,2)}, {vr(f,2)}, v[132:133], v[128:129] op_sel_hi:[1,0,0]")
        for d in range(4):
            f = F + 8 * i + 2 * d
            g(f"v_cvt_pk_bf16_f32 v{XR+4*i+d}, v{f}, v{f+1}")
        g(f"ds_write_b128 v{vT3}, {vr(XR+4*i,4)} offset:{i*128}")
    g("s_waitcnt lgkmcnt(0)")
    g.arrive(C_XN)
    g.stamp(3)


ACC = 128
def g_role(g, O):
    g(f"""s_cmp_lt_u32 s{sW}, 4
    s_cbranch_scc1 L_A_PRE
    s_cmp_lg_u32 s{sPR}, 0
    s_cbranch_scc1 L_G_NP
    s_setprio 3""")
    g.wait_cnt(C_XN, 8)
    g.stamp(4)
    def kv_chain(isK):
        FB = 32; NS = 5
        def rd(ks):
            b = FB + 8 * (ks % NS)
            g(f"ds_read_b128 {vr(b,4)}, v136 offset:{ks*16}")
            g(f"ds_read_b64_tr_b16 {vr(b+4,2)}, v137 offset:{ks*256}")
            g(f"ds_read_b64_tr_b16 {vr(b+6,2)}, v137 offset:{ks*256+128}")
        for ks in range(4): rd(ks)
        for ks in range(16):
            b = FB + 8 * (ks % NS)
            g(f"s_waitcnt lgkmcnt({min(9, 3*(15-ks))})")
            c = "0" if ks == 0 else vr(ACC, 4)
            if isK: g(f"v_mfma_f32_16x16x32_bf16 {vr(ACC,4)}, {vr(b+4,4)}, {vr(b,4)}, {c}")
            else:   g(f"v_mfma_f32_16x16x32_bf16 {vr(ACC,4)}, {vr(b,4)}, {vr(b+4,4)}, {c}")
            if ks + 4 < 16: rd(ks + 4)
    g(f"""s_cmp_lg_u32 s{sCB}, 0
    s_cbranch_scc1 L_V""")
    kv_chain(True)
    g("""s_nop 1
    s_branch L_KVS
    L_V:""")
    kv_chain(False)
    g(f"""s_mov_b64 exec, 0xf
    buffer_store_dwordx2 v[140:141], v139, {srd(S_WS)}, s{sKVO} offen offset:512 sc1
    s_mov_b64 exec, -1
    L_KVS:
    s_nop 5
    v_cvt_pk_bf16_f32 v132, v128, v129
    v_cvt_pk_bf16_f32 v133, v130, v131
    buffer_store_dwordx2 v[132:133], v138, {srd(S_WS)}, s{sKVO} offen sc1""")
    g.load_nonce()
    g.arrive(C_KVDONE)
    g.stamp(11)
    g(f"""s_lshl_b32 s{sT1}, s{sRB}, 8
    s_lshl_b32 s{sT2}, s{sCB}, 5
    s_add_u32 s{sT1}, s{sT1}, s{sT2}
    s_add_u32 s{sT1}, s{sT1}, {WS_KVF}
    s_waitcnt vmcnt(0)
    s_mov_b64 exec, 1
    ds_add_rtn_u32 v{vT}, v{vC}, v{vONE} offset:{C_KVST}
    s_mov_b64 exec, -1""")
    g.get_nonce()
    g(f"""s_waitcnt lgkmcnt(0)
    v_readfirstlane_b32 s{sT0}, v{vT}
    s_nop 3
    s_cmp_lg_u32 s{sT0}, 3
    s_cbranch_scc1 L_G_NF""")
    g.publish(sT1, 13)
    g.arrive(C_PUB)
    g("L_G_NF:")
    g.stamp(10)
    g.wait_cnt(C_PUB, 1)
    for s_ in range(3): g.fill(s_, S_W1)
    g(f"""L_G_NP:
    s_setprio 2""")
    g.load_nonce()
    g.wait_cnt(C_XN, 8)
    def probe(k):
        if O("probe", 0):
            g(f"""s_memrealtime s[60:61]
            s_waitcnt lgkmcnt(0)
            v_writelane_b32 v31, s60, {k}""")
    def reset_o():
        g(f"""v_mov_b64 v[120:121], -1
        v_mov_b64 v[122:123], -1
        s_lshl_b32 s{sT0}, s{sCB}, 13
        s_lshr_b32 s60, s{sJ}, 1
        s_lshl_b32 s60, s60, 12
        s_add_u32 s{sT0}, s{sT0}, s60
        s_and_b32 s60, s{sJ}, 1
        s_lshl_b32 s60, s60, 10
        s_add_u32 s{sT0}, s{sT0}, s60
        s_add_u32 s{sT0}, s{sT0}, s{sHO}
        s_add_u32 s{sT0}, s{sT0}, {112*2048}
        buffer_store_dwordx4 v[120:123], v{vL16}, {srd(S_WS)}, s{sT0} offen sc1
        buffer_store_dwordx4 v[120:123], v{vL16}, {srd(S_WS)}, s{sT0} offen offset:2048 sc1""")
    def gemm1(n, rd, mfs, nrd, kq):
        order = [("w", 0)] * 2 + [("w", 1)] * 2 + [("w", 2)] * 2 + [("n", 0)]
        def wait_for(k):
            last = max(i for i, t in enumerate(order) if t == ("w", k))
            g(f"s_waitcnt vmcnt({len(order) - 1 - last})")
        for k in range(2):
            wait_for(k)
            for r in rd(k): r()
        g(f"s_waitcnt lgkmcnt({nrd})")
        for k in range(n):
            m = [(lambda f=f: (g("s_setprio 0"), f(), g("s_setprio 2"))) for f in mfs(k)]
            m[0]()
            if k == kq:
                g.wait_cnt(C_H1, 4, sleep=1)
                g(f"s_mov_b32 s{sIT}, s{sSO}")
                g.kv_dma(1, sJ)
                g(f"s_mov_b32 s{sSO}, s{sIT}")
                reset_o()
                order.extend([("q", 0)] * 10)
            if k + 3 < n:
                g.fill(k % 3, S_W1); order.extend([("w", k + 3)] * 2)
            m[1]()
            if k + 2 < n:
                wait_for(k + 2)
                if k + 2 == kq + 3: g.arrive(C_H1C)
                r = rd(k + 2)
                r[0]()
            m[2]()
            if k + 2 < n: r[1]()
            m[3]()
            if k + 1 < n:
                g(f"s_waitcnt lgkmcnt({nrd if k + 2 < n else 0})")
                probe(k)
            if k + 2 == n:
                g.arrive(C_G1)
                g(f"""s_lshl_b32 s{sIT}, s{sJ}, 10
                s_add_u32 s{sIT}, s{sIT}, {WS_KVF + 4096}""")
                g.poll_issue(8, sIT, 8192)
    def h_cvt(mt):
        for nt in range(2):
            a = ACC + 32*mt + 16*nt; o = 64 + 8 * (2*mt + nt)
            for i in range(8):
                g(f"v_cvt_pk_bf16_f32 v{o+i}, v{a+2*i}, v{a+2*i+1}")
            for i in range(8):
                g(f"v_pk_max_i16 v{o+i}, v{o+i}, 0")
    def h_store(mt, sM_):
        for nt in range(2):
            o = 64 + 8 * (2*mt + nt)
            g(f"buffer_store_dwordx4 {vr(o,4)}, v{vL16}, {srd(S_WS)}, s{sM_} offen offset:{nt*1024} sc1")
            g(f"buffer_store_dwordx4 {vr(o+4,4)}, v{vL16}, {srd(S_WS)}, s{sM_} offen offset:{2048+nt*1024} sc1")
    g(f"""
    v_and_b32 v25, 31, v{vLANE}
    v_mul_u32_u24 v{vXF}, {XP}, v25
    v_lshl_add_u32 v{vXF}, v{vHB}, 4, v{vXF}
    v_add_u32 v{vXF}, {R2}, v{vXF}
    s_cmp_eq_u32 s{sPR}, 0
    s_cbranch_scc1 L_G1_N
    v_lshl_add_u32 v{vWF}, v{vHB}, 10, v{vTR}
    v_add_u32 v{vWF}, s{sRG}, v{vWF}
    """)
    FS = [32, 48, 64]
    def rd_w(ks):
        b = FS[ks % 3]; va = vWF; sl = (ks % 3) * 2048
        def r0():
            g(f"ds_read_b128 {vr(b,4)}, v{vXF} offset:{ks*32}")
            g(f"ds_read_b128 {vr(b+4,4)}, v{vXF} offset:{32*XP+ks*32}")
        def r1():
            for mt in range(2):
                for i in range(2):
                    g(f"ds_read_b64_tr_b16 {vr(b+8+4*mt+2*i,2)}, v{va} offset:{sl+mt*256+i*512}")
        return [r0, r1]
    def mf_w(ks):
        b = FS[ks % 3]
        return [(lambda mt=mt, nt=nt: g.mf(ACC + 32*mt + 16*nt, b + 8 + 4*mt, b + 4*nt, ks == 0)) for mt in range(2) for nt in range(2)]
    gemm1(32, rd_w, mf_w, 6, O("kq", 13))
    if O("probe", 0):
        g(f"""s_lshl_b32 s{sT0}, s2, 2
        s_add_u32 s{sT0}, s{sT0}, s{sJ}
        s_lshl_b32 s{sT0}, s{sT0}, 8
        s_add_u32 s{sT0}, s{sT0}, {WS_DBG + 0x80000}
        v_lshlrev_b32 v30, 2, v{vLANE}
        buffer_store_dword v31, v30, {srd(S_WS)}, s{sT0} offen""")
    g.nop(10)
    h_cvt(0); h_cvt(1)
    g(f"""s_branch L_G1_DONE
    L_G1_N:
    v_lshl_add_u32 v{vWF}, v{vHB}, 9, v{vTR}
    v_add_u32 v{vWF}, s{sRG}, v{vWF}""")
    FN = [32, 56, 80]
    def rd_n(sl_):
        b = FN[sl_ % 3]; va = vWF; so = (sl_ % 3) * 2048
        def half(sub):
            ks = 2 * sl_ + sub; bb = b + 12 * sub
            g(f"ds_read_b128 {vr(bb,4)}, v{vXF} offset:{ks*32}")
            g(f"ds_read_b128 {vr(bb+4,4)}, v{vXF} offset:{32*XP+ks*32}")
            for i in range(2):
                g(f"ds_read_b64_tr_b16 {vr(bb+8+2*i,2)}, v{va} offset:{so+sub*1024+i*256}")
        return [lambda: half(0), lambda: (g("s_waitcnt lgkmcnt(10)"), half(1))]
    def mf_n(sl_):
        b = FN[sl_ % 3]
        return [(lambda sub=sub, nt=nt: g.mf(ACC + 16*nt, b + 12*sub + 8, b + 12*sub + 4*nt, sl_ == 0 and sub == 0)) for sub in range(2) for nt in range(2)]
    gemm1(16, rd_n, mf_n, 8, O("kqn", 8))
    g.nop(12)
    h_cvt(0)
    g("L_G1_DONE:")
    g.stamp(6)
    NK2 = 28
    g(f"""v_lshl_add_u32 v{vDA}, v{vROW}, 10, v{vCOL}
    v_add_u32 v{vDB}, {8*1024-1024}, v{vDA}
    s_mov_b32 s{sSTEP}, 16384
    v_lshl_add_u32 v{vWF}, v{vHB}, 9, v{vTR}
    v_add_u32 v{vWF}, s{sRG}, v{vWF}""")
    g.get_nonce()
    g.poll_flags(8, sIT, 8192, sleep=4, issued=True)
    g.arrive(C_G1)
    g.wait_cnt(C_QD, 4, sleep=2)
    g.wait_cnt(C_G1, 8, sleep=1)
    g.kv_dma(2, sJ); g.kv_dma(3, sJ)
    g(f"""s_lshl_b32 s{sT0}, s{sMT}, 12
    s_add_u32 s{sT1}, s{sT0}, s{sHO}
    s_add_u32 s{sT2}, s{sT1}, 4096
    s_waitcnt vmcnt(0)""")
    g.arrive(C_H2)
    g.stamp(5)
    h_store(0, sT1)
    g(f"""s_cmp_eq_u32 s{sPR}, 0
    s_cbranch_scc1 L_HS1""")
    h_store(1, sT2)
    g(f"""L_HS1:
    v_lshrrev_b32 v100, 2, v{vLANE}
    v_and_b32 v{vT}, 3, v{vLANE}
    v_lshlrev_b32 v{vT}, 7, v{vT}
    v_and_b32 v101, 3, v100
    v_lshl_add_u32 v100, v100, 10, v{vT}
    v_lshl_add_u32 v101, v101, 10, v{vT}
    s_lshr_b32 s60, s{sCB}, 2
    s_lshl_b32 s60, s60, 9
    s_mul_i32 s{sT0}, s{sIDX}, {56*1024}
    s_lshl_b32 s{sT2}, s{sJ}, 14
    s_add_u32 s{sT0}, s{sT0}, s{sT2}
    s_add_u32 s{sT0}, s{sT0}, s60
    v_add_u32 v100, s{sT0}, v100
    s_lshl_b32 s{sT0}, s{sIDX}, 14
    s_lshl_b32 s{sT2}, s{sJ}, 12
    s_add_u32 s{sT0}, s{sT0}, s{sT2}
    s_add_u32 s{sT0}, s{sT0}, s60
    v_add_u32 v101, s{sT0}, v101
    s_lshl_b32 s{sT1}, s{sCB}, 9
    s_lshl_b32 s{sT2}, s{sJ}, 7
    s_add_u32 s{sT1}, s{sT1}, s{sT2}
    s_add_u32 s{sT1}, s{sT1}, s{sFL}""")
    g("s_waitcnt vmcnt(0)")
    g.publish(sT1, 12)
    g.arrive(C_RST)
    if O("pf2", 1):
        g(f"""buffer_load_dword v{vDUM}, v100, {srd(S_W2)}, 0 offen
        buffer_load_dword v{vDUM}, v101, {srd(S_WO)}, 0 offen""")
    ND = O("nd", 6)
    NT = NK2 + 8
    def fill2(t):
        if t == 0:
            g(f"""s_lshl_b32 s{sSO}, s{sJ}, 17
            s_lshl_b32 s{sT0}, s{sCB}, 7
            s_add_u32 s{sSO}, s{sSO}, s{sT0}""")
        if t == 8:
            g(f"""s_mul_i32 s{sSO}, s{sJ}, {NK2*16384}
            s_lshl_b32 s{sT0}, s{sCB}, 7
            s_add_u32 s{sSO}, s{sSO}, s{sT0}""")
        g.fill(t % 3, S_WO if t < 8 else S_W2)
    NH = O("nh", 7)
    HB = [120 - 8*i for i in range(NH)]
    OFR = [32 + 8 * i for i in range(8)]
    def o_load(i):
        for nt in range(2):
            g(f"buffer_load_dwordx4 {vr(OFR[i]+4*nt,4)}, v{vL16}, {srd(S_WS)}, s{60 + i // 2} offen offset:{(i%2)*2048+nt*1024} sc1")
    def o_addr():
        g(f"""s_lshl_b32 s60, s{sJ}, 14
        s_add_u32 s60, s60, s{sHO}
        s_add_u32 s60, s60, {112*2048}
        s_add_u32 s61, s60, 4096
        s_add_u32 s62, s60, 8192
        s_add_u32 s63, s60, 12288""")
    WB = [32, 40]
    WO = 192
    sHS = sIT
    def ldh(ks):
        b = HB[ks % NH]
        g(f"buffer_load_dwordx4 {vr(b,4)}, v{vL16}, {srd(S_WS)}, s{sHS} offen sc1")
        g(f"buffer_load_dwordx4 {vr(b+4,4)}, v{vL16}, {srd(S_WS)}, s{sHS} offen offset:1024 sc1")
        g(f"s_add_u32 s{sHS}, s{sHS}, 2048")
    def rd2(t):
        b = WO + 8 * t if t < 8 else WB[t % 2]; sl = (t % 3) * 2048
        for mt in range(2):
            for i in range(2):
                g(f"ds_read_b64_tr_b16 {vr(b+4*mt+2*i,2)}, v{vWF} offset:{sl+mt*256+i*1024}")
    order = []
    def issued(tag, n): order.extend([tag] * n)
    def wait_for(tag):
        last = max(i for i, t in enumerate(order) if t == tag)
        g(f"s_waitcnt vmcnt({len(order) - 1 - last})")
    for t in range(3):
        fill2(t); issued(("w", t), 2)
    g.stamp(7)
    if O("gidle", 0): g("s_branch L_G_SKIP")
    wait_for(("w", 0))
    rd2(0)
    g("s_waitcnt lgkmcnt(0)")
    fill2(3); issued(("w", 3), 2)
    for t in range(NT):
        ks = t - 8
        if t == 7:
            g(f"""s_and_b32 s{sT0}, s{sJ}, 2
            s_add_u32 s{sT0}, s{sT0}, s{sJ}
            s_lshl_b32 s{sT0}, s{sT0}, 9
            s_add_u32 s{sT1}, s{sFL}, s{sT0}""")
            g.poll_flags(12, sT1, 4096, sleep=8)
            g.stamp(8)
            g(f"""s_setprio {O('gprio2', 0)}
            s_mul_i32 s{sHS}, s{sJ}, {NK2*2048}
            s_add_u32 s{sHS}, s{sHS}, s{sHO}""")
            for k in range(NH - 1):
                ldh(k); issued(("h", k), 2)
            if O("tp", 45): g.wait_cnt(C_PRG, 4 * (O("tp", 45) // 16) + 1, sleep=8)
        if ND and ks == NK2 - ND:
            g(f"buffer_load_dwordx4 {vr(vXR,4)}, v{vXO}, {srd(S_X)}, 0 offen"); issued(("x", 0), 1)
            g.stamp(9)
            o_addr()
            g(f"""s_lshl_b32 s{sT1}, s{sJ}, 2
            v_add_u32 v25, s{sT1}, v{vC}""")
            g.wait_cnt(C_AD0, 1, sleep=2, v=25)
            g("s_setprio 3")
        if t + 1 < NT:
            wait_for(("w", t + 1))
            rd2(t + 1)
        if ks >= 0:
            if ks + NH - 1 < NK2:
                ldh(ks + NH - 1); issued(("h", ks + NH - 1), 2)
            wait_for(("h", ks))
            b = WB[t % 2]; hb_ = HB[ks % NH]
        def refill2():
            if t + 1 < NT:
                g("s_waitcnt lgkmcnt(0)")
                if t + 4 < NT:
                    fill2(t + 4); issued(("w", t + 4), 2)
        if ks >= 0:
            for mt in range(2):
                for nt in range(2):
                    g.mf(ACC + 32*mt + 16*nt, b + 4*mt, hb_ + 4*nt, ks == 0)
        refill2()
    if not ND:
        g(f"buffer_load_dwordx4 {vr(vXR,4)}, v{vXO}, {srd(S_X)}, 0 offen")
        g.stamp(9)
    g("L_G_SKIP:")
    if O("gidle", 0) or not ND: o_addr()
    g(f"""v_and_b32 v25, 31, v{vLANE}
    v_mul_u32_u24 v25, {PP}, v25
    v_lshl_add_u32 v25, v{vHB}, 4, v25
    s_mul_i32 s{sT0}, s{sJ}, {PIMG}
    v_add_u32 v25, s{sT0}, v25""")
    g.wait_cnt(C_ADONE, 4, sleep=1)
    g("s_setprio 3")
    g.stamp(12)
    NST = O("nst", 4); KP = 8 // NST
    def o_issue(st):
        for i in range(KP * st, KP * st + KP): o_load(i)
    def o_check(st):
        r = [OFR[i] + k for i in range(KP * st, KP * st + KP) for k in range(8)]
        acc = [vT, vT1]
        g(f"v_max3_u32 v{vT}, v{r[0]}, v{r[1]}, v{r[2]}")
        g(f"v_max3_u32 v{vT1}, v{r[3]}, v{r[4]}, v{r[5]}")
        for n_, k in enumerate(range(6, len(r), 2)):
            g(f"v_max3_u32 v{acc[n_%2]}, v{acc[n_%2]}, v{r[k]}, v{r[k+1]}")
        g(f"""v_max_u32 v{vT}, v{vT}, v{vT1}
        v_cmp_eq_u32 vcc, -1, v{vT}
        s_cmp_lg_u64 vcc, 0""")
    g(f"s_mov_b32 s{sSPIN}, {SPIN}")
    for i in range(8): o_load(i)
    for st in range(NST):
        g(f"""L_OW{st}:
        s_waitcnt vmcnt({2 * KP * (NST - 1 - st)})""")
        o_check(st)
        g(f"""s_cbranch_scc1 L_OR{st}
        L_OM{st}:""")
        for i in range(KP * st, KP * st + KP):
            for mt in range(2):
                for nt in range(2):
                    g.mf(ACC + 32*mt + 16*nt, WO + 8*i + 4*mt, OFR[i] + 4*nt)
        def retry(st=st):
            g(f"""L_OR{st}:
            s_sub_u32 s{sSPIN}, s{sSPIN}, 1
            s_cselect_b32 s{sSPIN}, 0, s{sSPIN}
            s_cbranch_scc1 L_OM{st}""")
            g("s_waitcnt vmcnt(0)")
            for t_ in range(st, NST): o_issue(t_)
            g(f"s_branch L_OW{st}")
        g.out_of_line(retry)
    g.stamp(13)
    g.nop(9)
    for mt in range(2):
        for nt in range(2):
            for q in range(4):
                a = ACC + 32*mt + 16*nt + 4*q
                g(f"ds_write_b128 v25, {vr(a,4)} offset:{nt*32*PP + mt*128 + q*32}")
    g("s_waitcnt lgkmcnt(0)")


def final(g, O, debug):
    g(f"""L_FINAL:
    v_lshrrev_b32 v{vT}, 3, v0
    v_and_b32 v{vT1}, 7, v0
    v_mul_u32_u24 v{vT}, {PP}, v{vT}
    v_lshl_add_u32 v{vT}, v{vT1}, 5, v{vT}
    s_waitcnt vmcnt(0)""")
    for d in range(4):
        g(f"v_lshlrev_b32 v{64+2*d}, 16, v{vXR+d}")
        g(f"v_and_b32 v{65+2*d}, 0xffff0000, v{vXR+d}")
    g("s_barrier")
    for j in range(4):
        g(f"ds_read_b128 {vr(32+8*j,4)}, v{vT} offset:{j*PIMG}")
        g(f"ds_read_b128 {vr(36+8*j,4)}, v{vT} offset:{j*PIMG+16}")
    for j in range(4):
        g(f"s_waitcnt lgkmcnt({6-2*j})")
        for d in range(4):
            g(f"v_pk_add_f32 {vr(64+2*d,2)}, {vr(64+2*d,2)}, {vr(32+8*j+2*d,2)}")
    for d in range(4):
        g(f"v_cvt_pk_bf16_f32 v{72+d}, v{64+2*d}, v{65+2*d}")
    g(f"buffer_store_dwordx4 v[72:75], v{vXO}, {srd(S_OUT)}, 0 offen{['', ' sc1', ' nt', ' sc0 sc1'][O('outsc', 1)]}")
    if debug:
        g.stamp(14)
        g("s_waitcnt vmcnt(0)")
        g.stamp(15)
        g(f"""s_waitcnt lgkmcnt(0)
        s_lshl_b32 s{sT0}, s2, 3
        s_add_u32 s{sT0}, s{sT0}, s{sW}
        s_lshl_b32 s{sT0}, s{sT0}, 7
        s_add_u32 s{sT0}, s{sT0}, {WS_DBG}
        v_mov_b32 v{vT}, 0""")
        for i in range(16):
            g(f"v_writelane_b32 v{vT}, s{sSTAMP+2*i}, {i}")
        g(f"v_writelane_b32 v{vT}, s{sRETRY}, 16")
        g(f"v_writelane_b32 v{vT}, s{sRB}, 17")
        g(f"v_writelane_b32 v{vT}, s{sCB}, 18")
        g(f"""v_lshlrev_b32 v{vT1}, 2, v{vLANE}
        s_mov_b32 exec_hi, 0
        buffer_store_dword v{vT}, v{vT1}, {srd(S_WS)}, s{sT0} offen""")
        if O("dbgmax", 0):
            g(f"""s_load_dwordx2 s[{S_DBG}:{S_DBG+1}], s[0:1], 72
            s_mov_b32 s{S_DBG+2}, 256
            s_mov_b32 s{S_DBG+3}, 0x20000
            v_subrev_u32 v{vT}, s{sN}, v{vT}
            s_waitcnt lgkmcnt(0)
            s_cmp_lg_u32 s{sW}, {O("dbgmax", 0) - 1}
            s_cbranch_scc1 L_END
            s_mov_b64 exec, 0xfffe
            buffer_atomic_smax v{vT}, v{vT1}, {srd(S_DBG)}, 0 offen""")
    if O("amp", 0):
        st = O("amp", 0) % 100; role = O("amp", 0) // 100
        if st == 50:
            g(f"""s_sub_u32 s62, s{sSTAMP+26}, s{sSTAMP+24}
            s_lshr_b32 s62, s62, 4""")
        elif st == 51:
            g(f"s_sub_u32 s62, s{sSTAMP+16}, s{sSTAMP+14}")
        else:
            g(f"s_sub_u32 s62, s{sSTAMP+2*st}, s{sN}")
        g(f"""s_lshl_b32 s62, s62, 2
        s_cmp_{'lt' if role == 1 else 'ge'}_u32 s{sW}, 4
        s_cselect_b32 s62, s62, 0
        s_max_i32 s62, s62, 0
        s_add_u32 s62, s62, 4000
        L_PAD:
        s_memrealtime s[60:61]
        s_waitcnt lgkmcnt(0)
        s_sub_u32 s60, s60, s{sN}
        s_cmp_lt_u32 s60, s62
        s_cbranch_scc1 L_PAD""")
    if O("span", 0):
        g(f"""s_memrealtime s[60:61]
        s_lshl_b32 s62, s2, 3
        s_add_u32 s62, s62, s{sW}
        s_lshl_b32 s62, s62, 3
        s_add_u32 s62, s62, {WS_DBG}
        s_waitcnt lgkmcnt(0)
        v_mov_b32 v40, s{sTM}
        v_mov_b32 v41, s60
        s_mov_b64 exec, 1
        buffer_store_dwordx2 v[40:41], v{vZ}, {srd(S_WS)}, s62 offen""")
    g("""L_END:
    s_endpgm""")


def a_role(g, O, debug):
    FOFF = float(O('foff', 104))
    g(f"""L_A_PRE:
    s_cmp_eq_u32 s{sPR}, 0
    s_cbranch_scc1 L_WQP
    s_setprio 2
    L_WQP:""")
    g.stamp(4)
    wq_dma(g)
    pf_w1(g); NPF = 2
    QACC = 144
    g(f"""
    v_and_b32 v25, 31, v{vLANE}
    s_and_b32 s{sT0}, s{sW}, 1
    s_mul_i32 s{sT0}, s{sT0}, {32*XP}
    s_add_u32 s{sT0}, s{sT0}, {R2}
    v_mul_u32_u24 v{vXF}, {XP}, v25
    v_lshl_add_u32 v{vXF}, v{vHB}, 4, v{vXF}
    v_add_u32 v{vXF}, s{sT0}, v{vXF}
    s_lshr_b32 s{sT0}, s{sW}, 1
    s_lshl_b32 s{sT0}, s{sT0}, 8
    v_lshl_add_u32 v{vWF}, v{vHB}, 10, v{vTR}
    v_add_u32 v{vWF}, s{sT0}, v{vWF}
    """)
    xq = lambda ks: (32 + 4 * ks) if ks < 28 else (160 + 4 * (ks - 28))
    g.wait_cnt(C_XN, 8, sleep=1)
    g(f"""s_cmp_lg_u32 s{sPR}, 0
    s_cbranch_scc1 L_XQ""")
    g.wait_cnt(C_KVDONE, 4, sleep=1)
    g("L_XQ:")
    for ks in range(32):
        g(f"ds_read_b128 {vr(xq(ks),4)}, v{vXF} offset:{ks*32}")
        if ks % 8 == 7 and ks < 31: g("s_waitcnt lgkmcnt(4)")
    g(f"""s_waitcnt vmcnt({8 + NPF})
    s_setprio 2""")
    g.arrive(C_WQ)
    g.wait_cnt(C_WQ, 4)
    g.stamp(10)
    FB = 176; NS = 8
    def rdq(ks):
        b = FB + 4 * (ks % NS)
        o = R1 + ks * 2048
        g(f"ds_read_b64_tr_b16 {vr(b,2)}, v{vWF} offset:{o}")
        g(f"ds_read_b64_tr_b16 {vr(b+2,2)}, v{vWF} offset:{o+512}")
    for ks in range(7): rdq(ks)
    for ks in range(32):
        b = FB + 4 * (ks % NS)
        g(f"s_waitcnt lgkmcnt({min(12, 2*(31-ks))})")
        g.mf(QACC, b, xq(ks), ks == 0)
        if ks + 7 == 16:
            g(f"s_waitcnt vmcnt({NPF})")
            g.arrive(C_WQ2)
            g.wait_cnt(C_WQ2, 4)
        if ks + 7 < 32: rdq(ks + 7)
    g.arrive(C_QD)
    g.stamp(5)
    QA, QB = 24, 28
    g.get_nonce()
    g(f"s_mov_b32 s{sIT}, {WS_KVF}")
    g.poll_issue(16, sIT, 8192)
    g(f"s_mov_b32 s{sT0}, {f2u(QSCALE):#x}")
    for i in range(16):
        g(f"v_mul_f32 v{QACC+i}, s{sT0}, v{QACC+i}")
    for i in range(8):
        g(f"v_cvt_pk_bf16_f32 v{QA+i}, v{QACC+2*i}, v{QACC+2*i+1}")
    SA = [32, 48]; SB = [64, 80]; CA, CB_ = 96, 112; OA, OB = 128, 144
    KF = [160, 164]; VF = [168, 176]; vIDX, vKA, vVA = 184, 185, 186
    vAD, vCK, vCV = 187, 188, 189
    def zero_state():
        for i in range(0, 16, 2):
            g(f"v_mov_b64 {vr(OA+i,2)}, 0"); g(f"v_mov_b64 {vr(OB+i,2)}, 0"); g(f"v_mov_b64 {vr(SB[1]+i,2)}, 0")
        for i in range(0, 8, 2):
            g(f"v_mov_b64 {vr(VF[1]+i,2)}, 0")
    g(f"""
    v_mov_b32 v{vIDX}, 0xdddddddd
    v_mov_b32 v{vKA}, v{vL16}
    v_and_b32 v{vT}, 31, v{vLANE}
    v_lshrrev_b32 v{vT1}, 5, v{vLANE}
    v_lshlrev_b32 v{vT1}, 8, v{vT1}
    v_lshl_add_u32 v{vT1}, v{vT}, 4, v{vT1}
    v_mov_b32 v{vT2}, 528
    v_mov_b32 v{vT3}, 512
    v_and_b32 v{vVA}, 0x1b, v{vT}
    v_cmp_eq_u32 vcc, 16, v{vVA}
    s_nop 1
    v_cndmask_b32 v{vT2}, v{vT2}, v{vT3}, vcc
    v_cmp_gt_u32 vcc, 16, v{vT}
    s_nop 1
    v_cndmask_b32 v{vVA}, v{vT2}, v{vT1}, vcc
    v_add_u32 v{vVA}, 1024, v{vVA}
    s_mov_b32 s{sRETRY}, 0
    s_lshl_b32 s{sT0}, s{sCB}, 13
    s_lshr_b32 s{sT1}, s{sW}, 1
    s_lshl_b32 s{sT1}, s{sT1}, 12
    s_add_u32 s{sT0}, s{sT0}, s{sT1}
    s_and_b32 s{sT1}, s{sW}, 1
    s_lshl_b32 s{sT1}, s{sT1}, 10
    s_add_u32 s{sT0}, s{sT0}, s{sT1}
    s_add_u32 s{sT0}, s{sT0}, s{sHO}
    s_add_u32 s{sOO}, s{sT0}, {112*2048}
    s_lshl_b32 s{sT0}, s{sW}, 2
    v_add_u32 v{vAD}, s{sT0}, v{vC}
    v_mov_b32 v{vCK}, v{vC}
    s_mov_b32 s{sSTEP}, 4
    """)
    zero_state()
    g.wait_cnt(C_QD, 4)
    g("s_setprio 0")
    g.poll_flags(16, sIT, 8192, sleep=O("kvsleep", 1), issued=True)
    g("s_setprio 3")
    g.stamp(6)
    NSUB = O("nsub", 2)
    KX = [KF[0], 164, 192, 196, 200, 204, 208]
    for t in range(NSUB):
        if t: g(f"s_mov_b32 s{sT0}, {t*REC}")
        g(f"buffer_load_dwordx4 {vr(KX[t],4)}, v{vL16}, {srd(S_WS)}, {'s%d' % sT0 if t else '0'} offen sc1")
    g.kv_dma(0, sW, 1)
    g(f"s_mov_b32 s{sT1}, {WS_KVF + 2048}")
    g.poll_issue(16, sT1, 8192)
    AB = O("abl", 0)
    def qk(S, K, Q, C): g(f"v_mfma_f32_32x32x16_bf16 {vr(S,16)}, {vr(K,4)}, {vr(Q,4)}, {C}")
    def pv(O_, V, P):
        if AB == 1: return
        if AB == 5: g(f"v_mfma_f32_32x32x16_bf16 {vr(O_,16)}, {vr(V,4)}, {vr(P,4)}, {vr(O_,16)}"); return
        g(f"v_smfmac_f32_32x32x32_bf16 {vr(O_,16)}, {vr(V,4)}, {vr(P,8)}, v{vIDX}")
    def max16(S, d):
        g(f"v_max3_f32 v{d}, v{S}, v{S+1}, v{S+2}")
        for i in range(3, 15, 2):
            g(f"v_max3_f32 v{d}, v{d}, v{S+i}, v{S+i+1}")
        g(f"v_max_f32 v{d}, v{d}, v{S+15}")
    def xhalf_max(d, t):
        g(f"""v_mov_b32 v{t}, v{d}
        s_nop 1
        v_permlane32_swap_b32 v{d}, v{t}
        s_nop 1
        v_max_f32 v{d}, v{d}, v{t}""")
    def accmax(S, d, first):
        if first: return max16(S, d)
        for i in range(0, 16, 2):
            g(f"v_max3_f32 v{d}, v{d}, v{S+i}, v{S+i+1}")
    vMA, vMB = 190, 191
    g.stamp(1)
    g("s_waitcnt vmcnt(4)")
    g.stamp(2)
    SX = [(SA[0], SB[0]), (SA[1], 212)]
    for t in range(NSUB):
        qk(SX[t % 2][0], KX[t], QA, "0"); qk(SX[t % 2][1], KX[t], QB, "0")
        if t:
            accmax(SX[(t-1) % 2][0], vMA, t == 1); accmax(SX[(t-1) % 2][1], vMB, t == 1)
        elif NSUB > 1: g.nop(9)
    if NSUB == 1: g.nop(11)
    accmax(SX[(NSUB-1) % 2][0], vMA, NSUB == 1); accmax(SX[(NSUB-1) % 2][1], vMB, NSUB == 1)
    xhalf_max(vMA, vT2); xhalf_max(vMB, vT2)
    g(f"""v_add_f32 v{vT}, {f2u(FOFF):#x}, v{vMA}
    v_add_f32 v{vT1}, {f2u(FOFF):#x}, v{vMB}
    L_ATT_START:
    v_sub_f32 v{CA}, 0, v{vT}
    v_sub_f32 v{CA+1}, 0, v{vT}
    v_sub_f32 v{CB_}, 0, v{vT1}
    v_sub_f32 v{CB_+1}, 0, v{vT1}""")
    for i in range(2, 16, 2):
        g(f"v_mov_b64 {vr(CA+i,2)}, {vr(CA,2)}")
    g(f"""s_mov_b32 s{sIT}, s{sRETRY}
    s_cmp_lg_u32 s{sRETRY}, 0""")
    qk(SA[0], KF[0], QA, vr(CA, 16))
    for i in range(2, 16, 2):
        g(f"v_mov_b64 {vr(CB_+i,2)}, {vr(CB_,2)}")
    g("s_cbranch_scc1 L_ATT_GO")
    g.stamp(3)
    g("s_waitcnt vmcnt(0)")
    g.stamp(11)
    g.poll_flags(16, sT1, 8192, sleep=1, issued=True)
    g.arrive(C_H1)
    g.kv_dma(0, sW, 2)
    g.wait_cnt(C_H1, 4)
    g(f"""L_ATT_GO:
    s_setprio {O('aprio', 1)}""")
    g.stamp(7); g.stamp(12, True)
    g("""s_nop 1
    .p2align 6
    L_ATT:""")
    UN = 16
    SEP = O("sep", 1)
    def exps(S, lo, hi, first64=False):
        for i in range(lo, hi):
            if SEP:
                g(f"v_exp_f32{'_e64' if (first64 and i == lo) else ''} v{S+16+i}, v{S+i}"); continue
            if AB == 2: g(f"v_mul_f32{'_e64' if (first64 and i == lo) else ''} v{S+i}, 0, v{S+i}"); g(f"v_mul_f32 v{vT}, 0, v{vT}"); g("s_nop 0") if False else None; continue
            if AB == 3: g(f"v_exp_f32{'_e64' if (first64 and i == lo) else ''} v{192+i}, v{S+i}"); continue
            g(f"v_exp_f32{'_e64' if (first64 and i == lo) else ''} v{S+i}, v{S+i}")
    def side(it, fn):
        l = g.lab("SB"); r = g.lab("SR")
        g(f"""s_cmp_eq_u32 s{sIT}, {it}
        s_cbranch_scc1 {l}
        {r}:""")
        def blk():
            g(f"{l}:"); fn(); g(f"s_branch {r}")
        g.out_of_line(blk)
    def spin(v, off, target):
        l = g.lab("SB"); r = g.lab("SR")
        g(f"""s_cmp_lt_u32 s{sT2}, {target}
        s_cbranch_scc1 {l}
        {r}:""")
        def blk():
            g(f"{l}:"); g.wait_cnt(off, target, v=v); g(f"s_branch {r}")
        g.out_of_line(blk)
    CHK = {6: (vC, C_H1B, 4), UN - 2: (vCK, 0, 4)}
    for t in range(UN):
        p = t % 2
        sa, sb, san = (SA[0], SB[0], SA[0]) if SEP else (SA[p], SB[p], SA[1-p])
        pa, pbp = (SA[1], SB[1]) if SEP else (SA[p], SB[1-p])
        qk(sb, KF[p], QB, vr(CB_, 16))
        if AB != 4:
            g(f"ds_read_b128 {vr(KF[1-p],4)}, v{vKA} offset:{(t+1)*REC}")
            g(f"ds_read_b128 {vr(VF[p],4)}, v{vVA} offset:{t*REC}")
            g(f"ds_read_b128 {vr(VF[p]+4,4)}, v{vVA} offset:{t*REC+544}")
        if t in CHK: g(f"ds_read_b32 v{vCV}, v{CHK[t][0]} offset:{CHK[t][1]}")
        exps(sa, 0, 4)
        pv(OB, VF[1-p], pbp)
        exps(sa, 4, 10)
        pv(OB, VF[1-p] + 4, pbp + 8)
        g("s_waitcnt lgkmcnt(0)")
        exps(sa, 10, 16, True)
        qk(san, KF[1-p], QA, vr(CA, 16))
        if t in CHK:
            g(f"v_readfirstlane_b32 s{sT2}, v{vCV}")
            exps(sb, 0, 4, True)
        else:
            exps(sb, 0, 4)
        pv(OA, VF[p], pa)
        if t == 3:
            g(f"""s_waitcnt vmcnt(0)
            s_mov_b64 exec, 1
            ds_add_u32 v{vC}, v{vONE} offset:{C_H1B}
            s_mov_b64 exec, -1
            s_nop 0""")
        if O("tp", 45) and t == O("tp", 45) % 16:
            g(f"""s_mov_b64 exec, 1
            s_nop 0
            ds_add_u32 v{vC}, v{vONE} offset:{C_PRG}
            s_mov_b64 exec, -1
            s_nop 0""")
        if t == UN - 1:
            g(f"v_add_u32_e64 v{vCK}, s{sSTEP}, v{vCK}")
        if t == UN - 1:
            g(f"""v_add_u32 v{vKA}, {UN*REC}, v{vKA}
            v_add_u32 v{vVA}, {UN*REC}, v{vVA}""")
        exps(sb, 4, 10)
        pv(OA, VF[p] + 4, pa + 8)
        if debug and O("itstamp", 0):
            if t == 4: side(0, lambda: g.stamp(3, True))
            if t == 8: side(0, lambda: g.stamp(4, True))
            if t == 0: side(1, lambda: g.stamp(1, True)); side(2, lambda: g.stamp(2, True)); side(3, lambda: g.stamp(11, True))
        if debug and O("clkprobe", 0) and t % 4 == 0:
            g(f"""s_memtime s[60:61]
            s_memrealtime s[62:63]
            s_lshl_b32 s{sT0}, s{sIT}, 2
            s_add_u32 s{sT0}, s{sT0}, {t // 4}
            s_mov_b32 m0, s{sT0}
            s_waitcnt lgkmcnt(0)
            v_writelane_b32 v192, s60, m0
            v_writelane_b32 v193, s62, m0""")
        if t in CHK: spin(*CHK[t])
        if t == UN - 1:
            g(f"""s_add_u32 s{sIT}, s{sIT}, 1
            s_bitcmp0_b32 s{sIT}, 2""")
        exps(sb, 10, 16)
    g("s_cbranch_scc1 L_ATT")
    pv(OB, VF[1], SB[1]); pv(OB, VF[1] + 4, SB[1] + 8)
    g.stamp(8); g.stamp(13, True)
    g("s_setprio 3")
    g.arrive(C_AD0, v=vAD)
    def check(O_, t, r, m):
        g(f"v_fma_f32 v{t}, v{O_}, 0, v{O_+8}")
        for i in range(1, 8):
            g(f"v_fma_f32 v{t}, v{O_+i}, 0, v{t}")
        g(f"""v_rcp_f32 v{r}, v{O_+8}
        v_cmp_nlt_f32 {m}, v{t}, v{vT2}""")
    def scale(O_, r, d):
        for i in range(8):
            g(f"v_mul_f32 v{O_+i}, v{O_+i}, v{r}")
        for i in range(4):
            g(f"v_cvt_pk_bf16_f32 v{d+i}, v{O_+2*i}, v{O_+2*i+1}")
        for i in range(4):
            g(f"v_min_u32 v{d+i}, -2, v{d+i}")
    g(f"""s_setreg_imm32_b32 hwreg(HW_REG_MODE, 4, 2), 3
    v_mov_b32 v{vT2}, {f2u(2.0**110):#x}""")
    check(OA, vT, vT3, f"s[{sM}:{sM+1}]")
    check(OB, vT, vT1, "vcc")
    scale(OA, vT3, 32)
    g(f"""s_or_b64 vcc, vcc, s[{sM}:{sM+1}]
    {'s_nop 0' if AB else 's_cbranch_scc1 L_FALLBACK'}
    L_ATT_OK:
    buffer_store_dwordx4 v[32:35], v{vL16}, {srd(S_WS)}, s{sOO} offen sc1""")
    scale(OB, vT1, 36)
    g(f"buffer_store_dwordx4 v[36:39], v{vL16}, {srd(S_WS)}, s{sOO} offen offset:2048 sc1")
    def fallback():
        g(f"""L_FALLBACK:
        s_cmp_lg_u32 s{sRETRY}, 0
        s_cbranch_scc1 L_ATT_OK
        s_mov_b32 s{sRETRY}, 16
        v_mov_b32 v{vCK}, v{vC}
        s_mov_b32 s{sSTEP}, 0
        v_subrev_u32 v{vKA}, {64*REC}, v{vKA}
        v_subrev_u32 v{vVA}, {64*REC}, v{vVA}
        v_mov_b32 v{vT3}, v{vKA}
        v_mov_b32 v{vT}, 0xff800000
        v_mov_b32 v{vT1}, 0xff800000
        s_mov_b32 s{sIT}, 0
        L_MAXP:
        ds_read_b128 {vr(KF[0],4)}, v{vT3}
        v_add_u32 v{vT3}, {REC}, v{vT3}
        s_waitcnt lgkmcnt(0)""")
        qk(SA[0], KF[0], QA, "0"); qk(SB[0], KF[0], QB, "0")
        g.nop(12)
        for i in range(0, 16, 2):
            g(f"v_max3_f32 v{vT}, v{vT}, v{SA[0]+i}, v{SA[0]+i+1}")
        for i in range(0, 16, 2):
            g(f"v_max3_f32 v{vT1}, v{vT1}, v{SB[0]+i}, v{SB[0]+i+1}")
        g(f"""s_add_u32 s{sIT}, s{sIT}, 1
        s_cmp_lt_u32 s{sIT}, 64
        s_cbranch_scc1 L_MAXP
        ds_read_b128 {vr(KF[0],4)}, v{vKA}""")
        xhalf_max(vT, vT2); xhalf_max(vT1, vT2)
        zero_state()
        g(f"""s_waitcnt lgkmcnt(0)
        s_branch L_ATT_START""")
    g.out_of_line(fallback)
    g.arrive(C_ADONE)
    if debug and O("clkprobe", 0):
        g(f"""s_lshl_b32 s{sT0}, s2, 2
        s_add_u32 s{sT0}, s{sT0}, s{sW}
        s_lshl_b32 s{sT0}, s{sT0}, 9
        s_add_u32 s{sT0}, s{sT0}, {WS_DBG + 0x100000}
        v_lshlrev_b32 v30, 3, v{vLANE}
        buffer_store_dwordx2 v[192:193], v30, {srd(S_WS)}, s{sT0} offen""")
    g(f"buffer_load_dwordx4 {vr(vXR,4)}, v{vXO}, {srd(S_X)}, 0 offen")
    g.stamp(9)
    g("s_branch L_FINAL")


def gen(debug=False, opt=None):
    opt = opt or {}
    O = lambda k, d: opt.get(k, d)
    g = G(debug)
    g("; ======== prologue: arguments, x loads, addresses ========"); prologue(g, O)
    g("; ======== LayerNorm -> xn in LDS ========"); layernorm(g, O)
    g("; ======== G waves ========"); g_role(g, O)
    g("; ======== final reduction, residual, store ========"); final(g, O, debug)
    g("; ======== A waves ========"); a_role(g, O, debug)
    g.L += g.tail
    g("L_CODE_END:")
    ref = open(f"cdna_kernels/{NAME}.s.ref").read().split("\n")
    hdr = [l for l in ref if l.startswith(";") and "@launch" not in l]
    out = hdr + [f"; @launch grid=(256,1,1) block=(512,1,1) lds={LDS_BYTES}", DOC,
                 '.amdgcn_target "amdgcn-amd-amdhsa--gfx950"', ".text", f".globl {NAME}_kernel", ".p2align 8",
                 f".type {NAME}_kernel,@function", f"{NAME}_kernel:"] + g.L + [
        '.section .rodata,"a"', ".p2align 6", f".amdhsa_kernel {NAME}_kernel",
        "  .amdhsa_next_free_vgpr 256", "  .amdhsa_next_free_sgpr 102", "  .amdhsa_accum_offset 256",
        "  .amdhsa_group_segment_fixed_size 0", "  .amdhsa_kernarg_size 88", "  .amdhsa_user_sgpr_count 2",
        "  .amdhsa_user_sgpr_kernarg_segment_ptr 1", "  .amdhsa_system_sgpr_workgroup_id_x 1", ".end_amdhsa_kernel", ""]
    return "\n".join(out)


if __name__ == "__main__":
    ap = argparse.ArgumentParser()
    ap.add_argument("-o", default=f"cdna_kernels/{NAME}.s")
    ap.add_argument("--debug", action="store_true")
    ap.add_argument("opts", nargs="*")
    a = ap.parse_args()
    opt = {k: int(v) for k, v in (o.split("=") for o in a.opts)}
    open(a.o, "w").write(gen(a.debug, opt))
```

```python
import sys, argparse, struct

NAME = "parallel_sum__grouped_kv_mqa__dense_activation_relu__prompt"

REC = 2112
HALF = 32 * REC
R1, R2, R3 = 0, HALF, 2 * HALF
RING = 6144
CNT = R3 + 4 * RING
(C_H1C, C_H2, C_RST, C_H1B, C_KVDONE, C_KVST, C_QD, C_H1, C_G1, C_WQ, C_ADONE, C_PUB, C_XN, C_WQ2,
 C_PRG, C_AD0) = range(0, 64, 4)
LDS_BYTES = 163840
XP = 1040
PP = 272
PIMG = 64 * PP
WS_KV = 0
WS_KVF = 0x40000
WS_HO = 0x80000
HO_RB = 144 * 2048
WS_DBG = 0xA00000
WS_HF = 0xC00000
WS_BYTES = 0x1000000
QSCALE = 0.25 * 1.4426950408889634
SPIN = 1 << 15
NREP = 16

def f2u(x): return struct.unpack("<I", struct.pack("<f", x))[0]

S_X, S_OUT, S_WS, S_WO, S_W2, S_WQ, S_WKV, S_W1, S_DBG = 4, 8, 12, 16, 20, 24, 28, 32, 36
POLL = 24
sKVO = 3
sW, sRB, sCB = 40, 41, 42
sT0, sT1, sT2, sRG = 43, 44, 45, 46
sSPIN, sSO, sSTEP, sIT, sHO, sFL, sRETRY = 47, 48, 49, 50, 51, 52, 53
sM = 54
sJ, sMT = 56, 57
sOO = 59
sSTAMP = 64
sIDX, sPR = 96, 97
sTM = 98
sN = 100

vLANE, vC, vONE, vT, vT1, vT2, vT3 = 1, 2, 3, 4, 5, 6, 7
vL16 = 8
vDA, vDB = 9, 10
vXF, vWF = 11, 12
vXO = 13
vN, vZ = 14, 15
vXR = 16
vROW, vCOL, vC16, vTR, vHB = 20, 21, 22, 23, 24
vDUM = 210

def srd(b): return f"s[{b}:{b+3}]"
def vr(b, n=1): return f"v{b}" if n == 1 else f"v[{b}:{b+n-1}]"


class G:
    def __init__(self, debug):
        self.L = []
        self.tail = []
        self.debug = debug
        self.nlab = 0

    def __call__(self, s):
        for line in s.split("\n"):
            line = line.strip()
            if line:
                self.L.append(line if line.endswith(":") else "    " + line)

    def lab(self, p="L"):
        self.nlab += 1
        return f"{p}_{self.nlab}"

    def stamp(self, i, cyc=False):
        if self.debug:
            self(f"{'s_memtime' if cyc else 's_memrealtime'} s[{sSTAMP+2*i}:{sSTAMP+2*i+1}]")

    def nop(self, n):
        while n > 0:
            k = min(n, 16)
            self(f"s_nop {k-1}")
            n -= k

    def out_of_line(self, fn):
        main = self.L; self.L = self.tail
        fn()
        self.L = main

    def arrive(self, c, v=vC):
        self(f"""s_mov_b64 exec, 1
        ds_add_u32 v{v}, v{vONE} offset:{c}
        s_mov_b64 exec, -1""")

    def wait_cnt(self, c, target, sleep=0, v=vC):
        l = self.lab("WC"); d = self.lab("WD")
        self(f"""s_mov_b32 s{sSPIN}, {SPIN}
        {l}:
        ds_read_b32 v{vT}, v{v} offset:{c}
        s_waitcnt lgkmcnt(0)
        v_readfirstlane_b32 s{sT0}, v{vT}
        s_sub_u32 s{sSPIN}, s{sSPIN}, 1
        s_cbranch_scc1 {d}
        s_cmp_ge_u32 s{sT0}, {target}
        s_cbranch_scc1 {d}""")
        if sleep: self(f"s_sleep {sleep}")
        self(f"""s_branch {l}
        {d}:""")

    def poll_issue(self, n, soff, stride):
        for i in range(n):
            self(f"s_buffer_load_dword s{POLL+i}, {srd(S_WS)}, s{soff} offset:{128*i}")
        self(f"s_add_u32 s{soff}, s{soff}, {stride}")

    def poll_flags(self, n, soff, stride, sleep=1, issued=False):
        l = self.lab("PF"); d = self.lab("PD"); v = self.lab("PV"); c = self.lab("PC")
        self(f"s_mov_b32 s{sSPIN}, {NREP-2}")
        if issued: self(f"s_branch {c}")
        self(f"{l}:")
        self.poll_issue(n, soff, stride)
        self(f"""{c}:
        s_waitcnt lgkmcnt(0)
        s_xor_b64 s[{sM}:{sM+1}], s[{POLL}:{POLL+1}], s[{sN}:{sN+1}]""")
        for p in range(POLL + 2, POLL + n, 2):
            self(f"""s_xor_b64 s[{p}:{p+1}], s[{p}:{p+1}], s[{sN}:{sN+1}]
            s_or_b64 s[{sM}:{sM+1}], s[{sM}:{sM+1}], s[{p}:{p+1}]""")
        self(f"s_cbranch_scc0 {d}")
        if sleep: self(f"s_sleep {sleep}")
        self(f"""s_sub_u32 s{sSPIN}, s{sSPIN}, 1
        s_cbranch_scc0 {l}
        v_min_u32 v{vT1}, {n-1}, v{vLANE}
        v_lshlrev_b32 v{vT1}, 7, v{vT1}
        s_mov_b32 s{sSPIN}, {SPIN}
        {v}:
        buffer_load_dword v{vT}, v{vT1}, {srd(S_WS)}, s{soff} offen sc1
        s_waitcnt vmcnt(0)
        v_cmp_eq_u32 vcc, s{sN}, v{vT}
        s_sub_u32 s{sSPIN}, s{sSPIN}, 1
        s_cbranch_scc1 {d}
        s_cmp_eq_u64 vcc, -1
        s_cbranch_scc1 {d}
        s_sleep 4
        s_branch {v}
        {d}:""")

    def publish(self, soff, shift):
        self(f"""v_lshlrev_b32 v{vT}, {shift}, v{vLANE}
        s_mov_b64 exec, {(1 << NREP) - 1}
        buffer_store_dword v{vN}, v{vT}, {srd(S_WS)}, s{soff} offen sc1
        s_mov_b64 exec, -1""")

    def load_nonce(self):
        self(f"buffer_load_dword v{vN}, v{vZ}, {srd(S_DBG)}, 0 offen sc1")

    def get_nonce(self):
        l = self.lab("GN"); d = self.lab("GD")
        self(f"""s_mov_b32 s{sSPIN}, {SPIN}
        {l}:
        v_readfirstlane_b32 s{sN}, v{vN}
        s_sub_u32 s{sSPIN}, s{sSPIN}, 1
        s_cbranch_scc1 {d}
        s_cmp_lg_u32 s{sN}, 0
        s_cbranch_scc1 {d}""")
        self.load_nonce()
        self(f"""s_waitcnt vmcnt(0)
        s_branch {l}
        {d}:
        s_mov_b32 s{sN+1}, s{sN}""")

    def fill(self, slot, sb):
        self(f"""s_add_u32 m0, s{sRG}, {slot*2048}
        s_nop 0
        buffer_load_dwordx4 v{vDA}, {srd(sb)}, s{sSO} offen lds
        buffer_load_dwordx4 v{vDB}, {srd(sb)}, s{sSO} offen offset:1024 lds
        s_add_u32 s{sSO}, s{sSO}, s{sSTEP}""")

    def kv_dma(self, q, sidx, part=3):
        base = q * 16 * REC + (16384 if part == 2 else 0)
        self(f"""s_lshl_b32 s{sT0}, s{sidx}, 12
        s_add_u32 s{sSO}, s{sT0}, {WS_KV + base}
        s_add_u32 m0, s{sT0}, {base}""")
        for gi in range(2 if part == 3 else 1):
            self("s_nop 0")
            for i in range(4):
                self(f"buffer_load_dwordx4 v{vL16}, {srd(S_WS)}, s{sSO} offen offset:{i*1024} sc1 lds")
            if part == 1: return
            self(f"""s_add_u32 s{sSO}, s{sSO}, 16384
            s_add_u32 m0, m0, 16384""")
        l = self.lab("KD")
        self(f"""s_cmp_lg_u32 s{sidx}, 0
        s_cbranch_scc1 {l}
        buffer_load_dwordx4 v{vL16}, {srd(S_WS)}, s{sSO} offen sc1 lds
        {l}:""")

    def mf(self, D, A, B, first=False):
        self(f"v_mfma_f32_32x32x16_bf16 {vr(D,16)}, {vr(A,4)}, {vr(B,4)}, {'0' if first else vr(D,16)}")


XR = 32
def prologue(g, O):
    g(f"""
    s_cmp_ge_u32 s2, 256
    s_cbranch_scc1 L_END
    s_load_dwordx2 s[{S_X}:{S_X+1}], s[0:1], 0
    s_load_dwordx2 s[{S_WQ}:{S_WQ+1}], s[0:1], 8
    s_load_dwordx4 s[60:63], s[0:1], 16
    s_load_dwordx2 s[{S_WO}:{S_WO+1}], s[0:1], 32
    s_load_dwordx2 s[{S_W1}:{S_W1+1}], s[0:1], 48
    s_load_dwordx2 s[{S_W2}:{S_W2+1}], s[0:1], 56
    s_load_dwordx2 s[{S_OUT}:{S_OUT+1}], s[0:1], 64
    s_load_dwordx2 s[{S_DBG}:{S_DBG+1}], s[0:1], 72
    s_load_dwordx2 s[{S_WS}:{S_WS+1}], s[0:1], 80
    s_memrealtime s[{sTM}:{sTM+1}]
    """)
    g.stamp(0)
    g(f"""
    v_lshrrev_b32 v{vT}, 6, v0
    v_and_b32 v{vLANE}, 63, v0
    s_lshr_b32 s{sIDX}, s2, 3
    v_readfirstlane_b32 s{sW}, v{vT}
    """)
    g(f"""
    s_lshr_b32 s{sPR}, s{sIDX}, 3
    s_and_b32 s{sT0}, s2, 1
    s_lshl_b32 s{sT0}, s{sT0}, 2
    s_add_u32 s{sCB}, s{sT0}, s{sPR}
    s_and_b32 s{sT0}, s2, 6
    s_lshl_b32 s{sT0}, s{sT0}, 2
    s_and_b32 s{sRB}, s{sIDX}, 7
    s_add_u32 s{sRB}, s{sRB}, s{sT0}
    s_mov_b32 s{S_X+2}, 2097152
    s_mov_b32 s{S_X+3}, 0x20000
    v_lshrrev_b32 v{vT}, 3, v{vLANE}
    v_and_b32 v{vT1}, 7, v{vLANE}
    v_lshlrev_b32 v{vT2}, 10, v{vT}
    v_lshl_or_b32 v{vT2}, v{vT1}, 4, v{vT2}
    s_and_b32 s{sT2}, s{sPR}, 1
    s_lshl_b32 s{sT2}, s{sT2}, 2
    s_xor_b32 s{sSTEP}, s{sW}, s{sT2}
    s_lshl_b32 s{sT0}, s{sRB}, 16
    s_lshl_b32 s{sT1}, s{sSTEP}, 13
    s_add_u32 s{sT1}, s{sT0}, s{sT1}
    s_mov_b32 s{S_DBG+2}, 256
    s_mov_b32 s{S_DBG+3}, 0x20000
    v_mov_b32 v{vZ}, 0
    v_lshlrev_b32 v{vL16}, 4, v{vLANE}
    s_sub_u32 s{sJ}, s{sW}, 4
    s_mov_b32 s{S_WKV+2}, 16384
    s_mov_b32 s{S_WKV+3}, 0x20000
    v_lshlrev_b32 v28, 7, v{vLANE}
    v_mov_b32 v{vC}, {CNT}
    v_mov_b32 v{vONE}, 1
    v_lshl_add_u32 v29, v{vLANE}, 2, v{vC}
    ds_write_b32 v29, v{vZ}
    s_cmp_lt_u32 s{sCB}, 4
    s_waitcnt lgkmcnt(0)
    s_barrier
    s_cselect_b32 s{S_WKV}, s60, s62
    s_cselect_b32 s{S_WKV+1}, s61, s63
    s_cmp_lg_u32 s{sPR}, 1
    s_cbranch_scc1 L_PFE
    s_cmp_lg_u32 s{sW}, 0
    s_cbranch_scc1 L_PFE
    s_and_b32 s{sT2}, s{sIDX}, 7
    s_lshl_b32 s{sT2}, s{sT2}, 11
    s_mov_b64 exec, 0xffff
    buffer_load_dword v{vDUM}, v28, {srd(S_WKV)}, s{sT2} offen
    s_mov_b64 exec, -1
    L_PFE:
    s_or_b32 s{sT0}, s2, s{sW}
    s_cmp_lg_u32 s{sT0}, 0
    s_cbranch_scc1 L_NN
    s_or_b32 s{sT0}, s{sTM}, 1
    v_mov_b32 v{vN}, s{sT0}
    s_mov_b64 exec, 1
    buffer_store_dword v{vN}, v{vZ}, {srd(S_DBG)}, 0 offen sc1
    s_mov_b64 exec, -1
    L_NN:""")
    for i in range(8):
        g(f"buffer_load_dwordx4 {vr(XR+4*i,4)}, v{vT2}, {srd(S_X)}, s{sT1} offen offset:{i*128}")
    g.stamp(1)
    g(f"""
    s_cmp_lt_u32 s{sW}, 4
    s_cbranch_scc1 L_NKV
    s_cmp_lg_u32 s{sPR}, 0
    s_cbranch_scc1 L_NKV
    s_mul_i32 s{sT1}, s{sJ}, 4224
    s_add_u32 m0, s{sT1}, {R3}
    s_lshl_b32 s{sT0}, s{sJ}, 12""")
    for i in range(4):
        g(f"buffer_load_dwordx4 v{vL16}, {srd(S_WKV)}, s{sT0} offen offset:{i*1024} lds")
    g(f"""
    L_NKV:
    s_mov_b32 s{S_WQ+2}, 524288
    s_mov_b32 s{S_WQ+3}, 0x20000
    s_mov_b32 s{S_WO+2}, 524288
    s_mov_b32 s{S_WO+3}, 0x20000
    s_mov_b32 s{S_W1+2}, 1835008
    s_mov_b32 s{S_W1+3}, 0x20000
    s_mov_b32 s{S_W2+2}, 1835008
    s_mov_b32 s{S_W2+3}, 0x20000
    s_mov_b32 s{S_OUT+2}, 2097152
    s_mov_b32 s{S_OUT+3}, 0x20000
    s_mov_b32 s{S_WS+2}, {WS_BYTES}
    s_mov_b32 s{S_WS+3}, 0x20000
    v_lshrrev_b32 v{vHB}, 5, v{vLANE}
    v_bfe_u32 v{vTR}, v{vLANE}, 2, 2
    v_lshl_add_u32 v{vROW}, v{vHB}, 2, v{vTR}
    v_bfe_u32 v25, v{vLANE}, 4, 1
    v_and_b32 v26, 3, v{vLANE}
    v_lshlrev_b32 v{vC16}, 4, v26
    v_lshl_add_u32 v{vCOL}, v25, 6, v{vC16}
    s_mul_i32 s{sT1}, s{sSTEP}, {8*XP}
    s_add_u32 s{sT1}, s{sT1}, {R2}
    v_mul_u32_u24 v{vT3}, {XP}, v{vT}
    v_lshl_add_u32 v{vT3}, v{vT1}, 4, v{vT3}
    v_add_u32 v{vT3}, s{sT1}, v{vT3}
    s_mul_i32 s{sHO}, s{sRB}, {HO_RB}
    s_add_u32 s{sHO}, s{sHO}, {WS_HO}
    s_lshl_b32 s{sFL}, s{sRB}, 16
    s_add_u32 s{sFL}, s{sFL}, {WS_HF}
    v_lshrrev_b32 v{vXO}, 3, v0
    v_lshlrev_b32 v{vXO}, 10, v{vXO}
    v_lshl_or_b32 v{vXO}, v{vT1}, 4, v{vXO}
    s_lshl_b32 s{sT1}, s{sRB}, 16
    s_lshl_b32 s{sT2}, s{sCB}, 7
    s_add_u32 s{sT1}, s{sT1}, s{sT2}
    v_add_u32 v{vXO}, s{sT1}, v{vXO}
    v_lshlrev_b32 v{vTR}, 6, v{vTR}
    v_lshl_add_u32 v{vTR}, v25, 5, v{vTR}
    v_lshl_add_u32 v{vTR}, v26, 3, v{vTR}
    v_mov_b32 v138, 0
    v_mov_b32 v139, 0
    v_lshrrev_b32 v27, 4, v{vLANE}
    v_and_b32 v28, 15, v{vLANE}
    v_min_u32 v28, 13, v28
    v_lshlrev_b32 v28, 7, v28
    s_mov_b32 s{sT1}, 3584
    v_mad_u32_u24 v27, v27, s{sT1}, v28
    s_sub_u32 s{sT0}, s{sIDX}, 8
    s_lshl_b32 s{sT0}, s{sT0}, 2
    s_and_b32 s{sT2}, s{sW}, 3
    s_add_u32 s{sT0}, s{sT0}, s{sT2}
    s_mul_i32 s{sT0}, s{sT0}, {4*3584}
    s_lshr_b32 s{sT1}, s{sCB}, 2
    s_mul_i32 s{sT1}, s{sT1}, 1792
    s_add_u32 s{sT0}, s{sT0}, s{sT1}
    v_add_u32 v27, s{sT0}, v27
    s_cmp_ge_u32 s{sW}, 4
    s_cbranch_scc1 L_G_ADDR
    v_lshl_add_u32 v{vDA}, v{vROW}, 10, v{vCOL}
    v_add_u32 v{vDB}, {8*1024-1024}, v{vDA}
    s_lshl_b32 s{sSO}, s{sW}, 16
    s_lshl_b32 s{sT0}, s{sCB}, 7
    s_add_u32 s{sSO}, s{sSO}, s{sT0}
    s_branch L_LN
    L_G_ADDR:
    s_lshr_b32 s{sT1}, s{sCB}, 2
    s_mul_i32 s{sMT}, s{sT1}, 28
    s_lshl_b32 s{sT0}, s{sPR}, 2
    s_add_u32 s{sT0}, s{sT0}, s{sJ}
    s_lshl_b32 s{sT0}, s{sT0}, 1
    s_sub_u32 s{sT0}, s{sT0}, 4
    s_cmp_eq_u32 s{sPR}, 0
    s_cselect_b32 s{sT0}, s{sJ}, s{sT0}
    s_add_u32 s{sMT}, s{sMT}, s{sT0}
    s_lshl_b32 s{sSO}, s{sMT}, 6
    s_mov_b32 s{sT1}, 3584
    v_mad_u32_u24 v{vDA}, v{vROW}, s{sT1}, v{vCOL}
    v_add_u32 v{vDB}, {8*3584-1024}, v{vDA}
    s_mov_b32 s{sSTEP}, {16*3584}
    s_mul_i32 s{sRG}, s{sJ}, {RING}
    s_add_u32 s{sRG}, s{sRG}, {R3}
    s_cmp_lg_u32 s{sPR}, 0
    s_cbranch_scc1 L_G_EARLY
    v_lshrrev_b32 v28, 2, v{vLANE}
    v_mad_u32_u24 v{vDA}, v28, s{sT1}, v{vC16}
    v_add_u32 v{vDB}, {16*3584-1024}, v{vDA}
    s_mov_b32 s{sSTEP}, {32*3584}
    v_and_b32 v142, 15, v{vLANE}
    v_lshrrev_b32 v143, 4, v{vLANE}
    s_mul_i32 s{sT0}, s{sJ}, {16*XP}
    s_add_u32 s{sT0}, s{sT0}, {R2}
    v_mul_u32_u24 v136, {XP}, v142
    v_lshl_add_u32 v136, v143, 8, v136
    v_add_u32 v136, s{sT0}, v136
    v_mul_u32_u24 v137, 4224, v143
    v_lshl_add_u32 v137, v142, 3, v137
    v_add_u32 v137, {R3}, v137
    ; K: ((g&1)*32 + 16*(j&1) + (l&15))*16 + (g>>1)*8 ; V: 1024 + (j&1)*544 + (g>>1)*256 + d*16 + (g&1)*8
    v_and_b32 v140, 1, v143
    v_lshrrev_b32 v141, 1, v143
    v_lshlrev_b32 v142, 4, v142
    v_lshl_add_u32 v138, v140, 9, v142
    v_lshl_add_u32 v138, v141, 3, v138
    v_lshl_add_u32 v139, v141, 8, v142
    v_lshl_add_u32 v139, v140, 3, v139
    s_lshl_b32 s{sT0}, s{sRB}, 1
    s_lshr_b32 s{sT1}, s{sJ}, 1
    s_add_u32 s{sT0}, s{sT0}, s{sT1}
    s_mul_i32 s{sKVO}, s{sT0}, {REC}
    s_and_b32 s{sT1}, s{sJ}, 1
    s_lshl_b32 s{sT0}, s{sT1}, 8
    s_mul_i32 s{sT1}, s{sT1}, 544
    s_add_u32 s{sT1}, s{sT1}, 1024
    s_cmp_eq_u32 s{sCB}, 0
    s_cselect_b32 s{sT0}, s{sT0}, s{sT1}
    s_cselect_b64 vcc, -1, 0
    s_add_u32 s{sKVO}, s{sKVO}, s{sT0}
    v_cndmask_b32 v138, v139, v138, vcc
    v_lshlrev_b32 v139, 3, v{vLANE}
    v_mov_b32 v140, 0x3f803f80
    v_cmp_gt_u32 vcc, 2, v{vLANE}
    s_nop 1
    v_cndmask_b32 v140, 0, v140, vcc
    v_mov_b32 v141, v140
    """)


def pf_w1(g):
    g(f"""s_mov_b32 s{sT0}, {384*3584}
    buffer_load_dword v{vDUM}, v27, {srd(S_W1)}, 0 offen
    buffer_load_dword v{vDUM}, v27, {srd(S_W1)}, s{sT0} offen""")


def wq_dma(g):
    g(f"""s_lshl_b32 s{sT0}, s{sW}, 13
    s_add_u32 m0, s{sT0}, {R1}""")
    for i in range(8):
        g(f"""s_nop 0
        buffer_load_dwordx4 v{vDA}, {srd(S_WQ)}, s{sSO} offen lds
        buffer_load_dwordx4 v{vDB}, {srd(S_WQ)}, s{sSO} offen offset:1024 lds""")
        if i < 7:
            k = 13 if i == 3 else 1
            g(f"s_add_u32 s{sSO}, s{sSO}, {16384*k}")
            g(f"s_add_u32 m0, m0, {2048*k}")


def layernorm(g, O):
    F = 64
    def stats(after, nonce):
        for i in range(8):
            g(f"s_waitcnt vmcnt({after + 7 - i})")
            if i == 7:
                g.stamp(2)
                if nonce:
                    g(f"""s_cmp_ge_u32 s{sW}, 4
                    s_cbranch_scc1 L_NNL""")
                    g.load_nonce()
                    g("L_NNL:")
            for d in range(4):
                r = XR + 4 * i + d; f = F + 8 * i + 2 * d
                g(f"v_lshlrev_b32 v{f}, 16, v{r}")
                g(f"v_and_b32 v{f+1}, 0xffff0000, v{r}")
            for d in range(4):
                f = F + 8 * i + 2 * d
                a = 128 + 2 * (d % 2); q = 132 + 2 * (d % 2)
                if i == 0 and d < 2:
                    g(f"v_pk_mul_f32 {vr(q,2)}, {vr(f,2)}, {vr(f,2)}")
                    g(f"v_mov_b64 {vr(a,2)}, {vr(f,2)}")
                else:
                    g(f"v_pk_add_f32 {vr(a,2)}, {vr(a,2)}, {vr(f,2)}")
                    g(f"v_pk_fma_f32 {vr(q,2)}, {vr(f,2)}, {vr(f,2)}, {vr(q,2)}")
    def early():
        g("L_G_EARLY:")
        for s_ in range(3): g.fill(s_, S_W1)
        stats(6, False)
        g("s_branch L_LN2")
    g.out_of_line(early)
    g("L_LN:")
    stats(0, True)
    g(f"""L_LN2:
    v_pk_add_f32 v[128:129], v[128:129], v[130:131]
    v_pk_add_f32 v[132:133], v[132:133], v[134:135]
    v_add_f32 v128, v128, v129
    v_add_f32 v132, v132, v133
    s_nop 1
    v_add_f32_dpp v128, v128, v128 quad_perm:[1,0,3,2] row_mask:0xf bank_mask:0xf
    v_add_f32_dpp v132, v132, v132 quad_perm:[1,0,3,2] row_mask:0xf bank_mask:0xf
    s_nop 1
    v_add_f32_dpp v128, v128, v128 quad_perm:[2,3,0,1] row_mask:0xf bank_mask:0xf
    v_add_f32_dpp v132, v132, v132 quad_perm:[2,3,0,1] row_mask:0xf bank_mask:0xf
    s_nop 1
    v_add_f32_dpp v128, v128, v128 row_half_mirror row_mask:0xf bank_mask:0xf
    v_add_f32_dpp v132, v132, v132 row_half_mirror row_mask:0xf bank_mask:0xf
    v_mul_f32 v128, {f2u(1.0/512):#x}, v128      ; mean
    v_mul_f32 v132, {f2u(1.0/512):#x}, v132      ; E[x^2]
    v_fma_f32 v132, -v128, v128, v132            ; var
    v_max_f32 v132, 0, v132
    v_add_f32 v132, {f2u(1e-5):#x}, v132
    v_rsq_f32 v132, v132
    s_nop 0
    v_mul_f32_e64 v128, -v128, v132              ; -mean*rstd
    """)
    for i in range(8):
        for d in range(4):
            f = F + 8 * i + 2 * d
            g(f"v_pk_fma_f32 {vr(f,2)}, {vr(f,2)}, v[132:133], v[128:129] op_sel_hi:[1,0,0]")
        for d in range(4):
            f = F + 8 * i + 2 * d
            g(f"v_cvt_pk_bf16_f32 v{XR+4*i+d}, v{f}, v{f+1}")
        g(f"ds_write_b128 v{vT3}, {vr(XR+4*i,4)} offset:{i*128}")
    g("s_waitcnt lgkmcnt(0)")
    g.arrive(C_XN)
    g.stamp(3)


ACC = 128
def g_role(g, O):
    g(f"""s_cmp_lt_u32 s{sW}, 4
    s_cbranch_scc1 L_A_PRE
    s_cmp_lg_u32 s{sPR}, 0
    s_cbranch_scc1 L_G_NP
    s_setprio 3""")
    g.wait_cnt(C_XN, 8)
    g.stamp(4)
    def kv_chain(isK):
        FB = 32; NS = 5
        def rd(ks):
            b = FB + 8 * (ks % NS)
            g(f"ds_read_b128 {vr(b,4)}, v136 offset:{ks*16}")
            g(f"ds_read_b64_tr_b16 {vr(b+4,2)}, v137 offset:{ks*256}")
            g(f"ds_read_b64_tr_b16 {vr(b+6,2)}, v137 offset:{ks*256+128}")
        for ks in range(4): rd(ks)
        for ks in range(16):
            b = FB + 8 * (ks % NS)
            g(f"s_waitcnt lgkmcnt({min(9, 3*(15-ks))})")
            c = "0" if ks == 0 else vr(ACC, 4)
            if isK: g(f"v_mfma_f32_16x16x32_bf16 {vr(ACC,4)}, {vr(b+4,4)}, {vr(b,4)}, {c}")
            else:   g(f"v_mfma_f32_16x16x32_bf16 {vr(ACC,4)}, {vr(b,4)}, {vr(b+4,4)}, {c}")
            if ks + 4 < 16: rd(ks + 4)
    g(f"""s_cmp_lg_u32 s{sCB}, 0
    s_cbranch_scc1 L_V""")
    kv_chain(True)
    g("""s_nop 1
    s_branch L_KVS
    L_V:""")
    kv_chain(False)
    g(f"""s_mov_b64 exec, 0xf
    buffer_store_dwordx2 v[140:141], v139, {srd(S_WS)}, s{sKVO} offen offset:512 sc1
    s_mov_b64 exec, -1
    L_KVS:
    s_nop 5
    v_cvt_pk_bf16_f32 v132, v128, v129
    v_cvt_pk_bf16_f32 v133, v130, v131
    buffer_store_dwordx2 v[132:133], v138, {srd(S_WS)}, s{sKVO} offen sc1""")
    g.load_nonce()
    g.arrive(C_KVDONE)
    g.stamp(11)
    g(f"""s_lshl_b32 s{sT1}, s{sRB}, 8
    s_lshl_b32 s{sT2}, s{sCB}, 5
    s_add_u32 s{sT1}, s{sT1}, s{sT2}
    s_add_u32 s{sT1}, s{sT1}, {WS_KVF}
    s_waitcnt vmcnt(0)
    s_mov_b64 exec, 1
    ds_add_rtn_u32 v{vT}, v{vC}, v{vONE} offset:{C_KVST}
    s_mov_b64 exec, -1""")
    g.get_nonce()
    g(f"""s_waitcnt lgkmcnt(0)
    v_readfirstlane_b32 s{sT0}, v{vT}
    s_nop 3
    s_cmp_lg_u32 s{sT0}, 3
    s_cbranch_scc1 L_G_NF""")
    g.publish(sT1, 13)
    g.arrive(C_PUB)
    g("L_G_NF:")
    g.stamp(10)
    g.wait_cnt(C_PUB, 1)
    for s_ in range(3): g.fill(s_, S_W1)
    g(f"""L_G_NP:
    s_setprio 2""")
    g.load_nonce()
    g.wait_cnt(C_XN, 8)
    def probe(k):
        if O("probe", 0):
            g(f"""s_memrealtime s[60:61]
            s_waitcnt lgkmcnt(0)
            v_writelane_b32 v31, s60, {k}""")
    def reset_o():
        g(f"""v_mov_b64 v[120:121], -1
        v_mov_b64 v[122:123], -1
        s_lshl_b32 s{sT0}, s{sCB}, 13
        s_lshr_b32 s60, s{sJ}, 1
        s_lshl_b32 s60, s60, 12
        s_add_u32 s{sT0}, s{sT0}, s60
        s_and_b32 s60, s{sJ}, 1
        s_lshl_b32 s60, s60, 10
        s_add_u32 s{sT0}, s{sT0}, s60
        s_add_u32 s{sT0}, s{sT0}, s{sHO}
        s_add_u32 s{sT0}, s{sT0}, {112*2048}
        buffer_store_dwordx4 v[120:123], v{vL16}, {srd(S_WS)}, s{sT0} offen sc1
        buffer_store_dwordx4 v[120:123], v{vL16}, {srd(S_WS)}, s{sT0} offen offset:2048 sc1""")
    def gemm1(n, rd, mfs, nrd, kq):
        order = [("w", 0)] * 2 + [("w", 1)] * 2 + [("w", 2)] * 2 + [("n", 0)]
        def wait_for(k):
            last = max(i for i, t in enumerate(order) if t == ("w", k))
            g(f"s_waitcnt vmcnt({len(order) - 1 - last})")
        for k in range(2):
            wait_for(k)
            for r in rd(k): r()
        g(f"s_waitcnt lgkmcnt({nrd})")
        for k in range(n):
            m = [(lambda f=f: (g("s_setprio 0"), f(), g("s_setprio 2"))) for f in mfs(k)]
            m[0]()
            if k == kq:
                g.wait_cnt(C_H1, 4, sleep=1)
                g(f"s_mov_b32 s{sIT}, s{sSO}")
                g.kv_dma(1, sJ)
                g(f"s_mov_b32 s{sSO}, s{sIT}")
                reset_o()
                order.extend([("q", 0)] * 10)
            if k + 3 < n:
                g.fill(k % 3, S_W1); order.extend([("w", k + 3)] * 2)
            m[1]()
            if k + 2 < n:
                wait_for(k + 2)
                if k + 2 == kq + 3: g.arrive(C_H1C)
                r = rd(k + 2)
                r[0]()
            m[2]()
            if k + 2 < n: r[1]()
            m[3]()
            if k + 1 < n:
                g(f"s_waitcnt lgkmcnt({nrd if k + 2 < n else 0})")
                probe(k)
            if k + 2 == n:
                g.arrive(C_G1)
                g(f"""s_lshl_b32 s{sIT}, s{sJ}, 10
                s_add_u32 s{sIT}, s{sIT}, {WS_KVF + 4096}""")
                g.poll_issue(8, sIT, 8192)
    def h_cvt(mt):
        for nt in range(2):
            a = ACC + 32*mt + 16*nt; o = 64 + 8 * (2*mt + nt)
            for i in range(8):
                g(f"v_cvt_pk_bf16_f32 v{o+i}, v{a+2*i}, v{a+2*i+1}")
            for i in range(8):
                g(f"v_pk_max_i16 v{o+i}, v{o+i}, 0")
    def h_store(mt, sM_):
        for nt in range(2):
            o = 64 + 8 * (2*mt + nt)
            g(f"buffer_store_dwordx4 {vr(o,4)}, v{vL16}, {srd(S_WS)}, s{sM_} offen offset:{nt*1024} sc1")
            g(f"buffer_store_dwordx4 {vr(o+4,4)}, v{vL16}, {srd(S_WS)}, s{sM_} offen offset:{2048+nt*1024} sc1")
    g(f"""
    v_and_b32 v25, 31, v{vLANE}
    v_mul_u32_u24 v{vXF}, {XP}, v25
    v_lshl_add_u32 v{vXF}, v{vHB}, 4, v{vXF}
    v_add_u32 v{vXF}, {R2}, v{vXF}
    s_cmp_eq_u32 s{sPR}, 0
    s_cbranch_scc1 L_G1_N
    v_lshl_add_u32 v{vWF}, v{vHB}, 10, v{vTR}
    v_add_u32 v{vWF}, s{sRG}, v{vWF}
    """)
    FS = [32, 48, 64]
    def rd_w(ks):
        b = FS[ks % 3]; va = vWF; sl = (ks % 3) * 2048
        def r0():
            g(f"ds_read_b128 {vr(b,4)}, v{vXF} offset:{ks*32}")
            g(f"ds_read_b128 {vr(b+4,4)}, v{vXF} offset:{32*XP+ks*32}")
        def r1():
            for mt in range(2):
                for i in range(2):
                    g(f"ds_read_b64_tr_b16 {vr(b+8+4*mt+2*i,2)}, v{va} offset:{sl+mt*256+i*512}")
        return [r0, r1]
    def mf_w(ks):
        b = FS[ks % 3]
        return [(lambda mt=mt, nt=nt: g.mf(ACC + 32*mt + 16*nt, b + 8 + 4*mt, b + 4*nt, ks == 0)) for mt in range(2) for nt in range(2)]
    gemm1(32, rd_w, mf_w, 6, O("kq", 13))
    if O("probe", 0):
        g(f"""s_lshl_b32 s{sT0}, s2, 2
        s_add_u32 s{sT0}, s{sT0}, s{sJ}
        s_lshl_b32 s{sT0}, s{sT0}, 8
        s_add_u32 s{sT0}, s{sT0}, {WS_DBG + 0x80000}
        v_lshlrev_b32 v30, 2, v{vLANE}
        buffer_store_dword v31, v30, {srd(S_WS)}, s{sT0} offen""")
    g.nop(10)
    h_cvt(0); h_cvt(1)
    g(f"""s_branch L_G1_DONE
    L_G1_N:
    v_lshl_add_u32 v{vWF}, v{vHB}, 9, v{vTR}
    v_add_u32 v{vWF}, s{sRG}, v{vWF}""")
    FN = [32, 56, 80]
    def rd_n(sl_):
        b = FN[sl_ % 3]; va = vWF; so = (sl_ % 3) * 2048
        def half(sub):
            ks = 2 * sl_ + sub; bb = b + 12 * sub
            g(f"ds_read_b128 {vr(bb,4)}, v{vXF} offset:{ks*32}")
            g(f"ds_read_b128 {vr(bb+4,4)}, v{vXF} offset:{32*XP+ks*32}")
            for i in range(2):
                g(f"ds_read_b64_tr_b16 {vr(bb+8+2*i,2)}, v{va} offset:{so+sub*1024+i*256}")
        return [lambda: half(0), lambda: (g("s_waitcnt lgkmcnt(10)"), half(1))]
    def mf_n(sl_):
        b = FN[sl_ % 3]
        return [(lambda sub=sub, nt=nt: g.mf(ACC + 16*nt, b + 12*sub + 8, b + 12*sub + 4*nt, sl_ == 0 and sub == 0)) for sub in range(2) for nt in range(2)]
    gemm1(16, rd_n, mf_n, 8, O("kqn", 8))
    g.nop(12)
    h_cvt(0)
    g("L_G1_DONE:")
    g.stamp(6)
    NK2 = 28
    g(f"""v_lshl_add_u32 v{vDA}, v{vROW}, 10, v{vCOL}
    v_add_u32 v{vDB}, {8*1024-1024}, v{vDA}
    s_mov_b32 s{sSTEP}, 16384
    v_lshl_add_u32 v{vWF}, v{vHB}, 9, v{vTR}
    v_add_u32 v{vWF}, s{sRG}, v{vWF}""")
    g.get_nonce()
    g.poll_flags(8, sIT, 8192, sleep=4, issued=True)
    g.arrive(C_G1)
    g.wait_cnt(C_QD, 4, sleep=2)
    g.wait_cnt(C_G1, 8, sleep=1)
    g.kv_dma(2, sJ); g.kv_dma(3, sJ)
    g(f"""s_lshl_b32 s{sT0}, s{sMT}, 12
    s_add_u32 s{sT1}, s{sT0}, s{sHO}
    s_add_u32 s{sT2}, s{sT1}, 4096
    s_waitcnt vmcnt(0)""")
    g.arrive(C_H2)
    g.stamp(5)
    h_store(0, sT1)
    g(f"""s_cmp_eq_u32 s{sPR}, 0
    s_cbranch_scc1 L_HS1""")
    h_store(1, sT2)
    g(f"""L_HS1:
    v_lshrrev_b32 v100, 2, v{vLANE}
    v_and_b32 v{vT}, 3, v{vLANE}
    v_lshlrev_b32 v{vT}, 7, v{vT}
    v_and_b32 v101, 3, v100
    v_lshl_add_u32 v100, v100, 10, v{vT}
    v_lshl_add_u32 v101, v101, 10, v{vT}
    s_lshr_b32 s60, s{sCB}, 2
    s_lshl_b32 s60, s60, 9
    s_mul_i32 s{sT0}, s{sIDX}, {56*1024}
    s_lshl_b32 s{sT2}, s{sJ}, 14
    s_add_u32 s{sT0}, s{sT0}, s{sT2}
    s_add_u32 s{sT0}, s{sT0}, s60
    v_add_u32 v100, s{sT0}, v100
    s_lshl_b32 s{sT0}, s{sIDX}, 14
    s_lshl_b32 s{sT2}, s{sJ}, 12
    s_add_u32 s{sT0}, s{sT0}, s{sT2}
    s_add_u32 s{sT0}, s{sT0}, s60
    v_add_u32 v101, s{sT0}, v101
    s_lshl_b32 s{sT1}, s{sCB}, 9
    s_lshl_b32 s{sT2}, s{sJ}, 7
    s_add_u32 s{sT1}, s{sT1}, s{sT2}
    s_add_u32 s{sT1}, s{sT1}, s{sFL}""")
    g("s_waitcnt vmcnt(0)")
    g.publish(sT1, 12)
    g.arrive(C_RST)
    if O("pf2", 1):
        g(f"""buffer_load_dword v{vDUM}, v100, {srd(S_W2)}, 0 offen
        buffer_load_dword v{vDUM}, v101, {srd(S_WO)}, 0 offen""")
    ND = O("nd", 6)
    NT = NK2 + 8
    def fill2(t):
        if t == 0:
            g(f"""s_lshl_b32 s{sSO}, s{sJ}, 17
            s_lshl_b32 s{sT0}, s{sCB}, 7
            s_add_u32 s{sSO}, s{sSO}, s{sT0}""")
        if t == 8:
            g(f"""s_mul_i32 s{sSO}, s{sJ}, {NK2*16384}
            s_lshl_b32 s{sT0}, s{sCB}, 7
            s_add_u32 s{sSO}, s{sSO}, s{sT0}""")
        g.fill(t % 3, S_WO if t < 8 else S_W2)
    NH = O("nh", 7)
    HB = [120 - 8*i for i in range(NH)]
    OFR = [32 + 8 * i for i in range(8)]
    def o_load(i):
        for nt in range(2):
            g(f"buffer_load_dwordx4 {vr(OFR[i]+4*nt,4)}, v{vL16}, {srd(S_WS)}, s{60 + i // 2} offen offset:{(i%2)*2048+nt*1024} sc1")
    def o_addr():
        g(f"""s_lshl_b32 s60, s{sJ}, 14
        s_add_u32 s60, s60, s{sHO}
        s_add_u32 s60, s60, {112*2048}
        s_add_u32 s61, s60, 4096
        s_add_u32 s62, s60, 8192
        s_add_u32 s63, s60, 12288""")
    WB = [32, 40]
    WO = 192
    sHS = sIT
    def ldh(ks):
        b = HB[ks % NH]
        g(f"buffer_load_dwordx4 {vr(b,4)}, v{vL16}, {srd(S_WS)}, s{sHS} offen sc1")
        g(f"buffer_load_dwordx4 {vr(b+4,4)}, v{vL16}, {srd(S_WS)}, s{sHS} offen offset:1024 sc1")
        g(f"s_add_u32 s{sHS}, s{sHS}, 2048")
    def rd2(t):
        b = WO + 8 * t if t < 8 else WB[t % 2]; sl = (t % 3) * 2048
        for mt in range(2):
            for i in range(2):
                g(f"ds_read_b64_tr_b16 {vr(b+4*mt+2*i,2)}, v{vWF} offset:{sl+mt*256+i*1024}")
    order = []
    def issued(tag, n): order.extend([tag] * n)
    def wait_for(tag):
        last = max(i for i, t in enumerate(order) if t == tag)
        g(f"s_waitcnt vmcnt({len(order) - 1 - last})")
    for t in range(3):
        fill2(t); issued(("w", t), 2)
    g.stamp(7)
    if O("gidle", 0): g("s_branch L_G_SKIP")
    wait_for(("w", 0))
    rd2(0)
    g("s_waitcnt lgkmcnt(0)")
    fill2(3); issued(("w", 3), 2)
    for t in range(NT):
        ks = t - 8
        if t == 7:
            g(f"""s_and_b32 s{sT0}, s{sJ}, 2
            s_add_u32 s{sT0}, s{sT0}, s{sJ}
            s_lshl_b32 s{sT0}, s{sT0}, 9
            s_add_u32 s{sT1}, s{sFL}, s{sT0}""")
            g.poll_flags(12, sT1, 4096, sleep=8)
            g.stamp(8)
            g(f"""s_setprio {O('gprio2', 0)}
            s_mul_i32 s{sHS}, s{sJ}, {NK2*2048}
            s_add_u32 s{sHS}, s{sHS}, s{sHO}""")
            for k in range(NH - 1):
                ldh(k); issued(("h", k), 2)
            if O("tp", 45): g.wait_cnt(C_PRG, 4 * (O("tp", 45) // 16) + 1, sleep=8)
        if ND and ks == NK2 - ND:
            g(f"buffer_load_dwordx4 {vr(vXR,4)}, v{vXO}, {srd(S_X)}, 0 offen"); issued(("x", 0), 1)
            g.stamp(9)
            o_addr()
            g(f"""s_lshl_b32 s{sT1}, s{sJ}, 2
            v_add_u32 v25, s{sT1}, v{vC}""")
            g.wait_cnt(C_AD0, 1, sleep=2, v=25)
            g("s_setprio 3")
        if t + 1 < NT:
            wait_for(("w", t + 1))
            rd2(t + 1)
        if ks >= 0:
            if ks + NH - 1 < NK2:
                ldh(ks + NH - 1); issued(("h", ks + NH - 1), 2)
            wait_for(("h", ks))
            b = WB[t % 2]; hb_ = HB[ks % NH]
        def refill2():
            if t + 1 < NT:
                g("s_waitcnt lgkmcnt(0)")
                if t + 4 < NT:
                    fill2(t + 4); issued(("w", t + 4), 2)
        if ks >= 0:
            for mt in range(2):
                for nt in range(2):
                    g.mf(ACC + 32*mt + 16*nt, b + 4*mt, hb_ + 4*nt, ks == 0)
        refill2()
    if not ND:
        g(f"buffer_load_dwordx4 {vr(vXR,4)}, v{vXO}, {srd(S_X)}, 0 offen")
        g.stamp(9)
    g("L_G_SKIP:")
    if O("gidle", 0) or not ND: o_addr()
    g(f"""v_and_b32 v25, 31, v{vLANE}
    v_mul_u32_u24 v25, {PP}, v25
    v_lshl_add_u32 v25, v{vHB}, 4, v25
    s_mul_i32 s{sT0}, s{sJ}, {PIMG}
    v_add_u32 v25, s{sT0}, v25""")
    g.wait_cnt(C_ADONE, 4, sleep=1)
    g("s_setprio 3")
    g.stamp(12)
    NST = O("nst", 4); KP = 8 // NST
    def o_issue(st):
        for i in range(KP * st, KP * st + KP): o_load(i)
    def o_check(st):
        r = [OFR[i] + k for i in range(KP * st, KP * st + KP) for k in range(8)]
        acc = [vT, vT1]
        g(f"v_max3_u32 v{vT}, v{r[0]}, v{r[1]}, v{r[2]}")
        g(f"v_max3_u32 v{vT1}, v{r[3]}, v{r[4]}, v{r[5]}")
        for n_, k in enumerate(range(6, len(r), 2)):
            g(f"v_max3_u32 v{acc[n_%2]}, v{acc[n_%2]}, v{r[k]}, v{r[k+1]}")
        g(f"""v_max_u32 v{vT}, v{vT}, v{vT1}
        v_cmp_eq_u32 vcc, -1, v{vT}
        s_cmp_lg_u64 vcc, 0""")
    g(f"s_mov_b32 s{sSPIN}, {SPIN}")
    for i in range(8): o_load(i)
    for st in range(NST):
        g(f"""L_OW{st}:
        s_waitcnt vmcnt({2 * KP * (NST - 1 - st)})""")
        o_check(st)
        g(f"""s_cbranch_scc1 L_OR{st}
        L_OM{st}:""")
        for i in range(KP * st, KP * st + KP):
            for mt in range(2):
                for nt in range(2):
                    g.mf(ACC + 32*mt + 16*nt, WO + 8*i + 4*mt, OFR[i] + 4*nt)
        def retry(st=st):
            g(f"""L_OR{st}:
            s_sub_u32 s{sSPIN}, s{sSPIN}, 1
            s_cselect_b32 s{sSPIN}, 0, s{sSPIN}
            s_cbranch_scc1 L_OM{st}""")
            g("s_waitcnt vmcnt(0)")
            for t_ in range(st, NST): o_issue(t_)
            g(f"s_branch L_OW{st}")
        g.out_of_line(retry)
    g.stamp(13)
    g.nop(9)
    for mt in range(2):
        for nt in range(2):
            for q in range(4):
                a = ACC + 32*mt + 16*nt + 4*q
                g(f"ds_write_b128 v25, {vr(a,4)} offset:{nt*32*PP + mt*128 + q*32}")
    g("s_waitcnt lgkmcnt(0)")


def final(g, O, debug):
    g(f"""L_FINAL:
    v_lshrrev_b32 v{vT}, 3, v0
    v_and_b32 v{vT1}, 7, v0
    v_mul_u32_u24 v{vT}, {PP}, v{vT}
    v_lshl_add_u32 v{vT}, v{vT1}, 5, v{vT}
    s_waitcnt vmcnt(0)""")
    for d in range(4):
        g(f"v_lshlrev_b32 v{64+2*d}, 16, v{vXR+d}")
        g(f"v_and_b32 v{65+2*d}, 0xffff0000, v{vXR+d}")
    g("s_barrier")
    for j in range(4):
        g(f"ds_read_b128 {vr(32+8*j,4)}, v{vT} offset:{j*PIMG}")
        g(f"ds_read_b128 {vr(36+8*j,4)}, v{vT} offset:{j*PIMG+16}")
    for j in range(4):
        g(f"s_waitcnt lgkmcnt({6-2*j})")
        for d in range(4):
            g(f"v_pk_add_f32 {vr(64+2*d,2)}, {vr(64+2*d,2)}, {vr(32+8*j+2*d,2)}")
    for d in range(4):
        g(f"v_cvt_pk_bf16_f32 v{72+d}, v{64+2*d}, v{65+2*d}")
    g(f"buffer_store_dwordx4 v[72:75], v{vXO}, {srd(S_OUT)}, 0 offen{['', ' sc1', ' nt', ' sc0 sc1'][O('outsc', 1)]}")
    if debug:
        g.stamp(14)
        g("s_waitcnt vmcnt(0)")
        g.stamp(15)
        g(f"""s_waitcnt lgkmcnt(0)
        s_lshl_b32 s{sT0}, s2, 3
        s_add_u32 s{sT0}, s{sT0}, s{sW}
        s_lshl_b32 s{sT0}, s{sT0}, 7
        s_add_u32 s{sT0}, s{sT0}, {WS_DBG}
        v_mov_b32 v{vT}, 0""")
        for i in range(16):
            g(f"v_writelane_b32 v{vT}, s{sSTAMP+2*i}, {i}")
        g(f"v_writelane_b32 v{vT}, s{sRETRY}, 16")
        g(f"v_writelane_b32 v{vT}, s{sRB}, 17")
        g(f"v_writelane_b32 v{vT}, s{sCB}, 18")
        g(f"""v_lshlrev_b32 v{vT1}, 2, v{vLANE}
        s_mov_b32 exec_hi, 0
        buffer_store_dword v{vT}, v{vT1}, {srd(S_WS)}, s{sT0} offen""")
        if O("dbgmax", 0):
            g(f"""s_load_dwordx2 s[{S_DBG}:{S_DBG+1}], s[0:1], 72
            s_mov_b32 s{S_DBG+2}, 256
            s_mov_b32 s{S_DBG+3}, 0x20000
            v_subrev_u32 v{vT}, s{sN}, v{vT}
            s_waitcnt lgkmcnt(0)
            s_cmp_lg_u32 s{sW}, {O("dbgmax", 0) - 1}
            s_cbranch_scc1 L_END
            s_mov_b64 exec, 0xfffe
            buffer_atomic_smax v{vT}, v{vT1}, {srd(S_DBG)}, 0 offen""")
    if O("amp", 0):
        st = O("amp", 0) % 100; role = O("amp", 0) // 100
        if st == 50:
            g(f"""s_sub_u32 s62, s{sSTAMP+26}, s{sSTAMP+24}
            s_lshr_b32 s62, s62, 4""")
        elif st == 51:
            g(f"s_sub_u32 s62, s{sSTAMP+16}, s{sSTAMP+14}")
        else:
            g(f"s_sub_u32 s62, s{sSTAMP+2*st}, s{sN}")
        g(f"""s_lshl_b32 s62, s62, 2
        s_cmp_{'lt' if role == 1 else 'ge'}_u32 s{sW}, 4
        s_cselect_b32 s62, s62, 0
        s_max_i32 s62, s62, 0
        s_add_u32 s62, s62, 4000
        L_PAD:
        s_memrealtime s[60:61]
        s_waitcnt lgkmcnt(0)
        s_sub_u32 s60, s60, s{sN}
        s_cmp_lt_u32 s60, s62
        s_cbranch_scc1 L_PAD""")
    g("""L_END:
    s_endpgm""")


def a_role(g, O, debug):
    FOFF = float(O('foff', 100))
    g(f"""L_A_PRE:
    s_cmp_eq_u32 s{sPR}, 0
    s_cbranch_scc1 L_WQP
    s_setprio 2
    L_WQP:""")
    g.stamp(4)
    wq_dma(g)
    pf_w1(g); NPF = 2
    QACC = 144
    g(f"""
    v_and_b32 v25, 31, v{vLANE}
    s_and_b32 s{sT0}, s{sW}, 1
    s_mul_i32 s{sT0}, s{sT0}, {32*XP}
    s_add_u32 s{sT0}, s{sT0}, {R2}
    v_mul_u32_u24 v{vXF}, {XP}, v25
    v_lshl_add_u32 v{vXF}, v{vHB}, 4, v{vXF}
    v_add_u32 v{vXF}, s{sT0}, v{vXF}
    s_lshr_b32 s{sT0}, s{sW}, 1
    s_lshl_b32 s{sT0}, s{sT0}, 8
    v_lshl_add_u32 v{vWF}, v{vHB}, 10, v{vTR}
    v_add_u32 v{vWF}, s{sT0}, v{vWF}
    """)
    xq = lambda ks: (32 + 4 * ks) if ks < 28 else (160 + 4 * (ks - 28))
    g.wait_cnt(C_XN, 8, sleep=1)
    g(f"""s_cmp_lg_u32 s{sPR}, 0
    s_cbranch_scc1 L_XQ""")
    g.wait_cnt(C_KVDONE, 4, sleep=1)
    g("L_XQ:")
    for ks in range(32):
        g(f"ds_read_b128 {vr(xq(ks),4)}, v{vXF} offset:{ks*32}")
        if ks % 8 == 7 and ks < 31: g("s_waitcnt lgkmcnt(4)")
    g(f"""s_waitcnt vmcnt({8 + NPF})
    s_setprio 2""")
    g.arrive(C_WQ)
    g.wait_cnt(C_WQ, 4)
    g.stamp(10)
    FB = 176; NS = 8
    def rdq(ks):
        b = FB + 4 * (ks % NS)
        o = R1 + ks * 2048
        g(f"ds_read_b64_tr_b16 {vr(b,2)}, v{vWF} offset:{o}")
        g(f"ds_read_b64_tr_b16 {vr(b+2,2)}, v{vWF} offset:{o+512}")
    for ks in range(7): rdq(ks)
    for ks in range(32):
        b = FB + 4 * (ks % NS)
        g(f"s_waitcnt lgkmcnt({min(12, 2*(31-ks))})")
        g.mf(QACC, b, xq(ks), ks == 0)
        if ks + 7 == 16:
            g(f"s_waitcnt vmcnt({NPF})")
            g.arrive(C_WQ2)
            g.wait_cnt(C_WQ2, 4)
        if ks + 7 < 32: rdq(ks + 7)
    g.arrive(C_QD)
    g.stamp(5)
    QA, QB = 24, 28
    g.get_nonce()
    g(f"s_mov_b32 s{sIT}, {WS_KVF}")
    g.poll_issue(16, sIT, 8192)
    g(f"s_mov_b32 s{sT0}, {f2u(QSCALE):#x}")
    for i in range(16):
        g(f"v_mul_f32 v{QACC+i}, s{sT0}, v{QACC+i}")
    for i in range(8):
        g(f"v_cvt_pk_bf16_f32 v{QA+i}, v{QACC+2*i}, v{QACC+2*i+1}")
    SA = [32, 48]; SB = [64, 80]; CA, CB_ = 96, 112; OA, OB = 128, 144
    KF = [160, 164]; VF = [168, 176]; vIDX, vKA, vVA = 184, 185, 186
    vAD, vCK, vCV = 187, 188, 189
    def zero_state():
        for i in range(0, 16, 2):
            g(f"v_mov_b64 {vr(OA+i,2)}, 0"); g(f"v_mov_b64 {vr(OB+i,2)}, 0"); g(f"v_mov_b64 {vr(SB[1]+i,2)}, 0")
        for i in range(0, 8, 2):
            g(f"v_mov_b64 {vr(VF[1]+i,2)}, 0")
    g(f"""
    v_mov_b32 v{vIDX}, 0xdddddddd
    v_mov_b32 v{vKA}, v{vL16}
    v_and_b32 v{vT}, 31, v{vLANE}
    v_lshrrev_b32 v{vT1}, 5, v{vLANE}
    v_lshlrev_b32 v{vT1}, 8, v{vT1}
    v_lshl_add_u32 v{vT1}, v{vT}, 4, v{vT1}
    v_mov_b32 v{vT2}, 528
    v_mov_b32 v{vT3}, 512
    v_and_b32 v{vVA}, 0x1b, v{vT}
    v_cmp_eq_u32 vcc, 16, v{vVA}
    s_nop 1
    v_cndmask_b32 v{vT2}, v{vT2}, v{vT3}, vcc
    v_cmp_gt_u32 vcc, 16, v{vT}
    s_nop 1
    v_cndmask_b32 v{vVA}, v{vT2}, v{vT1}, vcc
    v_add_u32 v{vVA}, 1024, v{vVA}
    s_mov_b32 s{sRETRY}, 0
    s_lshl_b32 s{sT0}, s{sCB}, 13
    s_lshr_b32 s{sT1}, s{sW}, 1
    s_lshl_b32 s{sT1}, s{sT1}, 12
    s_add_u32 s{sT0}, s{sT0}, s{sT1}
    s_and_b32 s{sT1}, s{sW}, 1
    s_lshl_b32 s{sT1}, s{sT1}, 10
    s_add_u32 s{sT0}, s{sT0}, s{sT1}
    s_add_u32 s{sT0}, s{sT0}, s{sHO}
    s_add_u32 s{sOO}, s{sT0}, {112*2048}
    s_lshl_b32 s{sT0}, s{sW}, 2
    v_add_u32 v{vAD}, s{sT0}, v{vC}
    v_mov_b32 v{vCK}, v{vC}
    s_mov_b32 s{sSTEP}, 4
    """)
    zero_state()
    g.wait_cnt(C_QD, 4)
    g("s_setprio 0")
    g.poll_flags(16, sIT, 8192, sleep=O("kvsleep", 1), issued=True)
    g("s_setprio 3")
    g.stamp(6)
    NSUB = O("nsub", 2)
    KX = [KF[0], 164, 192, 196, 200, 204, 208]
    for t in range(NSUB):
        if t: g(f"s_mov_b32 s{sT0}, {t*REC}")
        g(f"buffer_load_dwordx4 {vr(KX[t],4)}, v{vL16}, {srd(S_WS)}, {'s%d' % sT0 if t else '0'} offen sc1")
    g.kv_dma(0, sW, 1)
    g(f"s_mov_b32 s{sT1}, {WS_KVF + 2048}")
    g.poll_issue(16, sT1, 8192)
    AB = O("abl", 0)
    def qk(S, K, Q, C): g(f"v_mfma_f32_32x32x16_bf16 {vr(S,16)}, {vr(K,4)}, {vr(Q,4)}, {C}")
    def pv(O_, V, P):
        if AB == 1: return
        if AB == 5: g(f"v_mfma_f32_32x32x16_bf16 {vr(O_,16)}, {vr(V,4)}, {vr(P,4)}, {vr(O_,16)}"); return
        g(f"v_smfmac_f32_32x32x32_bf16 {vr(O_,16)}, {vr(V,4)}, {vr(P,8)}, v{vIDX}")
    def max16(S, d):
        g(f"v_max3_f32 v{d}, v{S}, v{S+1}, v{S+2}")
        for i in range(3, 15, 2):
            g(f"v_max3_f32 v{d}, v{d}, v{S+i}, v{S+i+1}")
        g(f"v_max_f32 v{d}, v{d}, v{S+15}")
    def xhalf_max(d, t):
        g(f"""v_mov_b32 v{t}, v{d}
        s_nop 1
        v_permlane32_swap_b32 v{d}, v{t}
        s_nop 1
        v_max_f32 v{d}, v{d}, v{t}""")
    def accmax(S, d, first):
        if first: return max16(S, d)
        for i in range(0, 16, 2):
            g(f"v_max3_f32 v{d}, v{d}, v{S+i}, v{S+i+1}")
    vMA, vMB = 190, 191
    g.stamp(1)
    g("s_waitcnt vmcnt(4)")
    g.stamp(2)
    SX = [(SA[0], SB[0]), (SA[1], 212)]
    for t in range(NSUB):
        qk(SX[t % 2][0], KX[t], QA, "0"); qk(SX[t % 2][1], KX[t], QB, "0")
        if t:
            accmax(SX[(t-1) % 2][0], vMA, t == 1); accmax(SX[(t-1) % 2][1], vMB, t == 1)
        elif NSUB > 1: g.nop(9)
    if NSUB == 1: g.nop(11)
    accmax(SX[(NSUB-1) % 2][0], vMA, NSUB == 1); accmax(SX[(NSUB-1) % 2][1], vMB, NSUB == 1)
    xhalf_max(vMA, vT2); xhalf_max(vMB, vT2)
    g(f"""v_add_f32 v{vT}, {f2u(FOFF):#x}, v{vMA}
    v_add_f32 v{vT1}, {f2u(FOFF):#x}, v{vMB}
    L_ATT_START:
    v_sub_f32 v{CA}, 0, v{vT}
    v_sub_f32 v{CA+1}, 0, v{vT}
    v_sub_f32 v{CB_}, 0, v{vT1}
    v_sub_f32 v{CB_+1}, 0, v{vT1}""")
    for i in range(2, 16, 2):
        g(f"v_mov_b64 {vr(CA+i,2)}, {vr(CA,2)}")
    g(f"""s_mov_b32 s{sIT}, s{sRETRY}
    s_cmp_lg_u32 s{sRETRY}, 0""")
    qk(SA[0], KF[0], QA, vr(CA, 16))
    for i in range(2, 16, 2):
        g(f"v_mov_b64 {vr(CB_+i,2)}, {vr(CB_,2)}")
    g("s_cbranch_scc1 L_ATT_GO")
    g.stamp(3)
    g("s_waitcnt vmcnt(0)")
    g.stamp(11)
    g.poll_flags(16, sT1, 8192, sleep=1, issued=True)
    g.arrive(C_H1)
    g.kv_dma(0, sW, 2)
    g.wait_cnt(C_H1, 4)
    g(f"""L_ATT_GO:
    s_setprio {O('aprio', 1)}""")
    g.stamp(7); g.stamp(12, True)
    g("""s_nop 1
    .p2align 6
    L_ATT:""")
    UN = 16
    SEP = O("sep", 1)
    def exps(S, lo, hi, first64=False):
        for i in range(lo, hi):
            if SEP:
                g(f"v_exp_f32{'_e64' if (first64 and i == lo) else ''} v{S+16+i}, v{S+i}"); continue
            if AB == 2: g(f"v_mul_f32{'_e64' if (first64 and i == lo) else ''} v{S+i}, 0, v{S+i}"); g(f"v_mul_f32 v{vT}, 0, v{vT}"); g("s_nop 0") if False else None; continue
            if AB == 3: g(f"v_exp_f32{'_e64' if (first64 and i == lo) else ''} v{192+i}, v{S+i}"); continue
            g(f"v_exp_f32{'_e64' if (first64 and i == lo) else ''} v{S+i}, v{S+i}")
    def side(it, fn):
        l = g.lab("SB"); r = g.lab("SR")
        g(f"""s_cmp_eq_u32 s{sIT}, {it}
        s_cbranch_scc1 {l}
        {r}:""")
        def blk():
            g(f"{l}:"); fn(); g(f"s_branch {r}")
        g.out_of_line(blk)
    def spin(v, off, target):
        l = g.lab("SB"); r = g.lab("SR")
        g(f"""s_cmp_lt_u32 s{sT2}, {target}
        s_cbranch_scc1 {l}
        {r}:""")
        def blk():
            g(f"{l}:"); g.wait_cnt(off, target, v=v); g(f"s_branch {r}")
        g.out_of_line(blk)
    CHK = {6: (vC, C_H1B, 4), UN - 2: (vCK, 0, 4)}
    for t in range(UN):
        p = t % 2
        sa, sb, san = (SA[0], SB[0], SA[0]) if SEP else (SA[p], SB[p], SA[1-p])
        pa, pbp = (SA[1], SB[1]) if SEP else (SA[p], SB[1-p])
        qk(sb, KF[p], QB, vr(CB_, 16))
        if AB != 4:
            g(f"ds_read_b128 {vr(KF[1-p],4)}, v{vKA} offset:{(t+1)*REC}")
            g(f"ds_read_b128 {vr(VF[p],4)}, v{vVA} offset:{t*REC}")
            g(f"ds_read_b128 {vr(VF[p]+4,4)}, v{vVA} offset:{t*REC+544}")
        if t in CHK: g(f"ds_read_b32 v{vCV}, v{CHK[t][0]} offset:{CHK[t][1]}")
        exps(sa, 0, 4)
        pv(OB, VF[1-p], pbp)
        exps(sa, 4, 10)
        pv(OB, VF[1-p] + 4, pbp + 8)
        g("s_waitcnt lgkmcnt(0)")
        exps(sa, 10, 16, True)
        qk(san, KF[1-p], QA, vr(CA, 16))
        if t in CHK:
            g(f"v_readfirstlane_b32 s{sT2}, v{vCV}")
            exps(sb, 0, 4, True)
        else:
            exps(sb, 0, 4)
        pv(OA, VF[p], pa)
        if t == 3:
            g(f"""s_waitcnt vmcnt(0)
            s_mov_b64 exec, 1
            ds_add_u32 v{vC}, v{vONE} offset:{C_H1B}
            s_mov_b64 exec, -1
            s_nop 0""")
        if O("tp", 45) and t == O("tp", 45) % 16:
            g(f"""s_mov_b64 exec, 1
            s_nop 0
            ds_add_u32 v{vC}, v{vONE} offset:{C_PRG}
            s_mov_b64 exec, -1
            s_nop 0""")
        if t == UN - 1:
            g(f"v_add_u32_e64 v{vCK}, s{sSTEP}, v{vCK}")
        if t == UN - 1:
            g(f"""v_add_u32 v{vKA}, {UN*REC}, v{vKA}
            v_add_u32 v{vVA}, {UN*REC}, v{vVA}""")
        exps(sb, 4, 10)
        pv(OA, VF[p] + 4, pa + 8)
        if debug and O("itstamp", 0):
            if t == 4: side(0, lambda: g.stamp(3, True))
            if t == 8: side(0, lambda: g.stamp(4, True))
            if t == 0: side(1, lambda: g.stamp(1, True)); side(2, lambda: g.stamp(2, True)); side(3, lambda: g.stamp(11, True))
        if debug and O("clkprobe", 0) and t % 4 == 0:
            g(f"""s_memtime s[60:61]
            s_memrealtime s[62:63]
            s_lshl_b32 s{sT0}, s{sIT}, 2
            s_add_u32 s{sT0}, s{sT0}, {t // 4}
            s_mov_b32 m0, s{sT0}
            s_waitcnt lgkmcnt(0)
            v_writelane_b32 v192, s60, m0
            v_writelane_b32 v193, s62, m0""")
        if t in CHK: spin(*CHK[t])
        if t == UN - 1:
            g(f"""s_add_u32 s{sIT}, s{sIT}, 1
            s_bitcmp0_b32 s{sIT}, 2""")
        exps(sb, 10, 16)
    g("s_cbranch_scc1 L_ATT")
    pv(OB, VF[1], SB[1]); pv(OB, VF[1] + 4, SB[1] + 8)
    g.stamp(8); g.stamp(13, True)
    g("s_setprio 3")
    g.arrive(C_AD0, v=vAD)
    def check(O_, t, r, m):
        g(f"v_fma_f32 v{t}, v{O_}, 0, v{O_+8}")
        for i in range(1, 8):
            g(f"v_fma_f32 v{t}, v{O_+i}, 0, v{t}")
        g(f"""v_rcp_f32 v{r}, v{O_+8}
        v_cmp_nlt_f32 {m}, v{t}, v{vT2}""")
    def scale(O_, r, d):
        for i in range(8):
            g(f"v_mul_f32 v{O_+i}, v{O_+i}, v{r}")
        for i in range(4):
            g(f"v_cvt_pk_bf16_f32 v{d+i}, v{O_+2*i}, v{O_+2*i+1}")
        for i in range(4):
            g(f"v_min_u32 v{d+i}, -2, v{d+i}")
    g(f"""s_setreg_imm32_b32 hwreg(HW_REG_MODE, 4, 2), 3
    v_mov_b32 v{vT2}, {f2u(2.0**110):#x}""")
    check(OA, vT, vT3, f"s[{sM}:{sM+1}]")
    check(OB, vT, vT1, "vcc")
    scale(OA, vT3, 32)
    g(f"""s_or_b64 vcc, vcc, s[{sM}:{sM+1}]
    {'s_nop 0' if AB else 's_cbranch_scc1 L_FALLBACK'}
    L_ATT_OK:
    buffer_store_dwordx4 v[32:35], v{vL16}, {srd(S_WS)}, s{sOO} offen sc1""")
    scale(OB, vT1, 36)
    g(f"buffer_store_dwordx4 v[36:39], v{vL16}, {srd(S_WS)}, s{sOO} offen offset:2048 sc1")
    def fallback():
        g(f"""L_FALLBACK:
        s_cmp_lg_u32 s{sRETRY}, 0
        s_cbranch_scc1 L_ATT_OK
        s_mov_b32 s{sRETRY}, 16
        v_mov_b32 v{vCK}, v{vC}
        s_mov_b32 s{sSTEP}, 0
        v_subrev_u32 v{vKA}, {64*REC}, v{vKA}
        v_subrev_u32 v{vVA}, {64*REC}, v{vVA}
        v_mov_b32 v{vT3}, v{vKA}
        v_mov_b32 v{vT}, 0xff800000
        v_mov_b32 v{vT1}, 0xff800000
        s_mov_b32 s{sIT}, 0
        L_MAXP:
        ds_read_b128 {vr(KF[0],4)}, v{vT3}
        v_add_u32 v{vT3}, {REC}, v{vT3}
        s_waitcnt lgkmcnt(0)""")
        qk(SA[0], KF[0], QA, "0"); qk(SB[0], KF[0], QB, "0")
        g.nop(12)
        for i in range(0, 16, 2):
            g(f"v_max3_f32 v{vT}, v{vT}, v{SA[0]+i}, v{SA[0]+i+1}")
        for i in range(0, 16, 2):
            g(f"v_max3_f32 v{vT1}, v{vT1}, v{SB[0]+i}, v{SB[0]+i+1}")
        g(f"""s_add_u32 s{sIT}, s{sIT}, 1
        s_cmp_lt_u32 s{sIT}, 64
        s_cbranch_scc1 L_MAXP
        ds_read_b128 {vr(KF[0],4)}, v{vKA}""")
        xhalf_max(vT, vT2); xhalf_max(vT1, vT2)
        zero_state()
        g(f"""s_waitcnt lgkmcnt(0)
        s_branch L_ATT_START""")
    g.out_of_line(fallback)
    g.arrive(C_ADONE)
    if debug and O("clkprobe", 0):
        g(f"""s_lshl_b32 s{sT0}, s2, 2
        s_add_u32 s{sT0}, s{sT0}, s{sW}
        s_lshl_b32 s{sT0}, s{sT0}, 9
        s_add_u32 s{sT0}, s{sT0}, {WS_DBG + 0x100000}
        v_lshlrev_b32 v30, 3, v{vLANE}
        buffer_store_dwordx2 v[192:193], v30, {srd(S_WS)}, s{sT0} offen""")
    g(f"buffer_load_dwordx4 {vr(vXR,4)}, v{vXO}, {srd(S_X)}, 0 offen")
    g.stamp(9)
    g("s_branch L_FINAL")


def gen(debug=False, opt=None):
    opt = opt or {}
    O = lambda k, d: opt.get(k, d)
    g = G(debug)
    prologue(g, O)
    layernorm(g, O)
    g_role(g, O)
    final(g, O, debug)
    a_role(g, O, debug)
    g.L += g.tail
    g("L_CODE_END:")
    ref = open(f"cdna_kernels/{NAME}.s.ref").read().split("\n")
    hdr = [l for l in ref if l.startswith(";") and "@launch" not in l]
    out = hdr + [f"; @launch grid=(256,1,1) block=(512,1,1) lds={LDS_BYTES}",
                 '.amdgcn_target "amdgcn-amd-amdhsa--gfx950"', ".text", f".globl {NAME}_kernel", ".p2align 8",
                 f".type {NAME}_kernel,@function", f"{NAME}_kernel:"] + g.L + [
        '.section .rodata,"a"', ".p2align 6", f".amdhsa_kernel {NAME}_kernel",
        "  .amdhsa_next_free_vgpr 256", "  .amdhsa_next_free_sgpr 102", "  .amdhsa_accum_offset 256",
        "  .amdhsa_group_segment_fixed_size 0", "  .amdhsa_kernarg_size 88", "  .amdhsa_user_sgpr_count 2",
        "  .amdhsa_user_sgpr_kernarg_segment_ptr 1", "  .amdhsa_system_sgpr_workgroup_id_x 1", ".end_amdhsa_kernel", ""]
    return "\n".join(out)


if __name__ == "__main__":
    ap = argparse.ArgumentParser()
    ap.add_argument("-o", default=f"cdna_kernels/{NAME}.s")
    ap.add_argument("--debug", action="store_true")
    ap.add_argument("opts", nargs="*")
    a = ap.parse_args()
    opt = {k: int(v) for k, v in (o.split("=") for o in a.opts)}
    open(a.o, "w").write(gen(a.debug, opt))
```
